```python
import torch

def _softmax(x, axis=-1):
    return torch.softmax(x, dim=axis)
def _gelu(x):
    return torch.nn.functional.gelu(x, approximate="tanh")
def _silu(x):
    return torch.nn.functional.silu(x)
def _sigmoid(x):
    return torch.sigmoid(x)
def _layernorm(x, axis=-1, eps=1e-5):
    m = x.mean(dim=axis, keepdim=True)
    v = x.var(dim=axis, keepdim=True, unbiased=False)
    return (x - m) / torch.sqrt(v + eps)
def _scatter_add(tgt, idx, src, axis=0):
    return tgt.clone().index_add_(axis, idx, src)
def _segment_sum(src, seg, n):
    out = torch.zeros((n,) + src.shape[1:], dtype=src.dtype)
    return out.index_add_(0, seg, src)
def _pad(x, pw):
    flat = tuple(v for pair in reversed(pw) for v in pair)
    return torch.nn.functional.pad(x, flat)

kernel_name = 'parallel_sum__linear_kernel_hedgehog__geglu_ffn__prompt'

def setup_inputs():

    _w = (lambda a: (lambda t: t.to(torch.bfloat16) if t.is_floating_point() else t)(torch.as_tensor(a)))
    def _A_setup():
        B, S, D, H = 1, 2048, 448, 16
        Dh = D // H
        return {
            "x": _w((lambda *s: torch.randn(*s, dtype=torch.bfloat16) * 0.05)(B, S, D)),
            "wqkv": _w((lambda *s: torch.randn(*s, dtype=torch.bfloat16) * 0.8)(D, 3 * D)),
            "w_phi": _w((lambda *s: torch.randn(*s, dtype=torch.bfloat16) * 0.8)(H, Dh, Dh) * (Dh ** -0.5)),
            "wo": _w((lambda *s: torch.randn(*s, dtype=torch.bfloat16) * 0.2)(D, D)),
        }
    _A_in = _A_setup()

    def _B_setup():
        B, S, D, F = 1, 2048, 448, 1792
        return {
            "x": _w((lambda *s: torch.randn(*s, dtype=torch.bfloat16) * 0.05)(B, S, D)),
            "w_gate": _w((lambda *s: torch.randn(*s, dtype=torch.bfloat16) * 0.1)(D, F)),
            "w_up": _w((lambda *s: torch.randn(*s, dtype=torch.bfloat16) * 0.1)(D, F)),
            "w_down": _w((lambda *s: torch.randn(*s, dtype=torch.bfloat16) * 0.1)(F, D)),
        }
    _B_in = _B_setup()

    return {
        "A_x": _A_in["x"],
        "A_wqkv": _A_in["wqkv"],
        "A_w_phi": _A_in["w_phi"],
        "A_wo": _A_in["wo"],
        "B_x": _B_in["x"],
        "B_w_gate": _B_in["w_gate"],
        "B_w_up": _B_in["w_up"],
        "B_w_down": _B_in["w_down"],
    }

def reference(A_x, A_wqkv, A_w_phi, A_wo, B_x, B_w_gate, B_w_up, B_w_down):
    def _A_ref(x, wqkv, w_phi, wo):
        B, S, D = x.shape
        H = 16; Dh = D // H
        qkv = (lambda x, *d: x.permute(*d))((x @ wqkv).reshape(B, S, 3, H, Dh), 2, 0, 3, 1, 4)
        q, k, v = qkv[0], qkv[1], qkv[2]
        pq = torch.einsum("bhsd,hdf->bhsf", q, w_phi)
        pk = torch.einsum("bhsd,hdf->bhsf", k, w_phi)
        phi_q = torch.concatenate([_softmax(pq, axis=-1), _softmax(-pq, axis=-1)], axis=-1)
        phi_k = torch.concatenate([_softmax(pk, axis=-1), _softmax(-pk, axis=-1)], axis=-1)
        kv = torch.einsum("bhsf,bhsd->bhfd", phi_k, v)
        z  = torch.einsum("bhsf->bhf", phi_k)
        num = torch.einsum("bhqf,bhfd->bhqd", phi_q, kv)
        den = torch.einsum("bhqf,bhf->bhq", phi_q, z)[..., None] + 1e-6
        o = num / den
        return (lambda x, *d: x.permute(*d))(o, 0, 2, 1, 3).reshape(B, S, D) @ wo

    def _B_ref(x, w_gate, w_up, w_down):
        return (_gelu(x @ w_gate) * (x @ w_up)) @ w_down

    x = A_x
    xn = _layernorm(x, axis=-1)
    return x + _A_ref(xn, A_wqkv, A_w_phi, A_wo) + _B_ref(xn, B_w_gate, B_w_up, B_w_down)
```

```python
import re

class Reg:
    __slots__ = ("f", "n", "c")
    def __init__(self, f, n, c=1):
        self.f, self.n, self.c = f, n, c
    def __str__(self):
        return f"{self.f}{self.n}" if self.c == 1 else f"{self.f}[{self.n}:{self.n+self.c-1}]"
    def regs(self):
        return [(self.f, self.n + i) for i in range(self.c)]
    def __getitem__(self, i):
        if isinstance(i, slice):
            st = i.start or 0
            return Reg(self.f, self.n + st, (i.stop - st))
        assert 0 <= i < self.c
        return Reg(self.f, self.n + i, 1)
    def sub(self, i, c):
        assert i + c <= self.c, (i, c, self.c)
        return Reg(self.f, self.n + i, c)

def V(n, c=1): return Reg("v", n, c)
def S(n, c=1): return Reg("s", n, c)
def A(n, c=1): return Reg("a", n, c)
VCC = Reg("vcc", 0, 1)
class _Vcc(Reg):
    def __str__(self): return "vcc"
VCC = _Vcc("vcc", 0, 1)
class _M0(Reg):
    def __str__(self): return "m0"
M0 = _M0("m0", 0, 1)
class _Exec(Reg):
    def __str__(self): return "exec"
EXEC = _Exec("exec", 0, 1)

class Neg:
    def __init__(self, r): self.r = r
    def __str__(self): return f"-{self.r}"
class Abs:
    def __init__(self, r): self.r = r
    def __str__(self): return f"abs({self.r})"

TRANS = ("v_exp_f32", "v_log_f32", "v_rcp_f32", "v_rsq_f32", "v_sqrt_f32", "v_sin_f32", "v_cos_f32")

class Inst:
    __slots__ = ("op", "ops", "mods", "defs", "uses", "kind", "tag", "raw", "passes", "srcc", "srcab", "comment")
    def __init__(self, op, ops=(), mods="", tag=None, raw=None):
        self.op, self.ops, self.mods, self.tag, self.raw = op, list(ops), mods, tag, raw
        self.defs, self.uses = [], []
        self.passes = 0; self.srcc = []; self.srcab = []
        self.comment = None
        self.kind = classify(op, mods)
        analyze(self)
    def text(self):
        if self.raw is not None: return self.raw
        s = self.op
        if self.ops: s += " " + ", ".join(fmt(o) for o in self.ops)
        if self.mods: s += " " + self.mods
        if self.comment: s += "   ; " + self.comment
        return s

def fmt(o):
    if isinstance(o, float):
        return {0.5:"0.5",1.0:"1.0",2.0:"2.0",4.0:"4.0",-0.5:"-0.5",-1.0:"-1.0",-2.0:"-2.0",-4.0:"-4.0",0.0:"0"}[o]
    if isinstance(o, int):
        return str(o) if -16 <= o <= 64 else hex(o & 0xFFFFFFFF)
    return str(o)

def regs_of(o):
    if isinstance(o, (Neg, Abs)): return regs_of(o.r)
    if isinstance(o, Reg): return o.regs()
    return []

def classify(op, mods):
    if op.startswith("v_mfma"): return "mfma"
    if op.startswith("v_dot"): return "dot"
    if op in TRANS: return "trans"
    if op.startswith("v_"): return "valu"
    if op.startswith("buffer_load") or op.startswith("global_load"):
        return "dma" if (" lds" in (" " + mods) or "_lds_" in op) else "vload"
    if op.startswith("buffer_store") or op.startswith("global_store"): return "vstore"
    if op.startswith("buffer_atomic") or op.startswith("global_atomic"): return "vatomic"
    if op.startswith("buffer_wbl2") or op.startswith("buffer_inv"): return "vcache"
    if op.startswith("ds_read") or op.startswith("ds_bpermute") or op.startswith("ds_swizzle") or op.startswith("ds_permute"): return "lread"
    if op.startswith("ds_write") or op.startswith("ds_add"): return "lwrite"
    if op.startswith("s_load") or op.startswith("s_memtime") or op.startswith("s_memrealtime") or op.startswith("s_buffer_load"): return "smem"
    if op == "s_waitcnt": return "wait"
    if op == "s_barrier": return "barrier"
    if op == "s_nop": return "nop"
    if op in ("label",): return "label"
    if op.startswith("s_cbranch") or op == "s_branch" or op == "s_endpgm": return "branch"
    if op == "WAITTAG": return "waittag"
    if op.startswith("s_"): return "salu"
    raise ValueError(op)

def analyze(i):
    op, o, k = i.op, i.ops, i.kind
    D, U = [], []
    if k == "mfma":
        D = regs_of(o[0]); i.srcab = regs_of(o[1]) + regs_of(o[2]); i.srcc = regs_of(o[3]); U = i.srcab + i.srcc
        i.passes = 8 if "32x32" in op else 4
    elif k in ("valu", "trans", "dot"):
        if op.startswith("v_cmp"):
            D = regs_of(o[0]); U = sum((regs_of(x) for x in o[1:]), [])
        elif op.startswith("v_permlane") and "swap" in op:
            D = regs_of(o[0]) + regs_of(o[1]); U = list(D)
        elif op in ("v_add_co_u32", "v_sub_co_u32", "v_subrev_co_u32"):
            D = regs_of(o[0]) + regs_of(o[1]); U = sum((regs_of(x) for x in o[2:]), [])
        elif op in ("v_addc_co_u32", "v_subb_co_u32"):
            D = regs_of(o[0]) + regs_of(o[1]); U = sum((regs_of(x) for x in o[2:]), [])
        else:
            D = regs_of(o[0]); U = sum((regs_of(x) for x in o[1:]), [])
            if op.startswith("v_fmac") or op.startswith("v_dot2c") or op.startswith("v_pk_fmac") or op == "v_writelane_b32":
                U += D
    elif k == "vload":
        D = regs_of(o[0]); U = sum((regs_of(x) for x in o[1:]), [])
    elif k == "dma":
        U = sum((regs_of(x) for x in o), []) + [("m0", 0)]
    elif k == "vstore":
        U = sum((regs_of(x) for x in o), [])
    elif k == "vatomic":
        U = sum((regs_of(x) for x in o), [])
        if "sc0" in i.mods: D = regs_of(o[0])
    elif k == "lread":
        D = regs_of(o[0]); U = sum((regs_of(x) for x in o[1:]), [])
    elif k == "lwrite":
        U = sum((regs_of(x) for x in o), [])
    elif k == "smem":
        D = regs_of(o[0]); U = sum((regs_of(x) for x in o[1:]), [])
    elif k == "salu":
        if op.startswith("s_cmp") or op.startswith("s_bitcmp"):
            U = sum((regs_of(x) for x in o), []); D = [("scc", 0)]
        elif op in ("s_setprio", "s_sleep", "s_set_gpr_idx_off"):
            pass
        else:
            D = regs_of(o[0]); U = sum((regs_of(x) for x in o[1:]), [])
            if op.startswith("s_cselect") or op.startswith("s_addc") or op.startswith("s_cmov"): U.append(("scc", 0))
            if "saveexec" in op: D.append(("exec", 0)); U.append(("exec", 0))
            if op.startswith("s_addk") or op.startswith("s_mulk"): U += D
    i.defs, i.uses = D, U

class Prog:
    def __init__(self):
        self.L = []
    def I(self, op, *ops, mods="", tag=None, c=None):
        i = Inst(op, ops, mods, tag); i.comment = c
        self.L.append(i); return i
    def raw(self, text):
        i = Inst("label", raw=text); self.L.append(i); return i
    def label(self, name):
        return self.raw(name + ":")
    def waittag(self, *tags):
        i = Inst("WAITTAG"); i.tag = set(tags); self.L.append(i); return i
    def extend(self, other):
        self.L.extend(other.L if isinstance(other, Prog) else other)

VM_KINDS = ("vload", "dma", "vstore", "vatomic", "vcache")
LG_KINDS = ("lread", "lwrite")

def insert_waits(L):
    out = []
    vm = []
    lg = []
    sm = []
    def emit_wait(nv, nl):
        parts = []
        if nv is not None: parts.append(f"vmcnt({min(nv,63)})")
        if nl is not None: parts.append(f"lgkmcnt({min(nl,15)})")
        if parts:
            w = Inst("s_waitcnt", raw="s_waitcnt " + " ".join(parts)); w.kind = "wait"; out.append(w)
    for i in L:
        need_v = None; need_l = None
        if i.kind == "waittag":
            for idx, p in enumerate(vm):
                if p.tag in i.tag: need_v = len(vm) - 1 - idx
            for idx, p in enumerate(lg):
                if p.tag in i.tag: need_l = len(lg) - 1 - idx
            if any(p.tag in i.tag for p in sm): need_l = 0
        elif i.kind == "wait":
            m = re.search(r"vmcnt\((\d+)\)", i.text());
            if m: need_v = int(m.group(1))
            m = re.search(r"lgkmcnt\((\d+)\)", i.text())
            if m: need_l = int(m.group(1))
        else:
            touched = set(i.defs) | set(i.uses)
            if touched:
                for idx, p in enumerate(vm):
                    if p.defs and touched & set(p.defs):
                        if i.kind == "vload" and p.kind == "vload" and not (set(i.uses) & set(p.defs)): continue
                        need_v = len(vm) - 1 - idx
                for idx, p in enumerate(lg):
                    if p.defs and touched & set(p.defs): need_l = len(lg) - 1 - idx
                for p in sm:
                    if touched & set(p.defs): need_l = 0
        if need_l is not None and sm: need_l = 0
        if need_v is not None and need_v >= len(vm): need_v = None
        if need_l is not None and need_l >= len(lg) and not sm: need_l = None
        if need_v is not None or need_l is not None:
            emit_wait(need_v, need_l)
            if need_v is not None:
                nv = min(need_v, 63); vm = vm[len(vm) - nv:] if nv else []
            if need_l is not None:
                nl = min(need_l, 15); lg = lg[len(lg) - nl:] if nl else []
                if nl == 0: sm = []
        if i.kind in ("waittag", "wait"): continue
        out.append(i)
        if i.kind in VM_KINDS: vm.append(i)
        elif i.kind in LG_KINDS: lg.append(i)
        elif i.kind == "smem": sm.append(i)
    return out

def states(i):
    if i.kind == "nop": return int(i.ops[0]) + 1
    if i.kind == "label": return 0
    return 1

def required_gap(p, c):
    g = 0
    pd, pu, cd, cu = set(p.defs), set(p.uses), set(c.defs), set(c.uses)
    pk, ck = p.kind, c.kind
    isvalu = lambda k: k in ("valu", "trans", "dot")
    vd = {r for r in pd if r[0] in "va"}
    sd = {r for r in pd if r[0] in ("s", "vcc")}
    if isvalu(pk):
        if ck == "mfma" and vd & cu: g = max(g, 2)
        if pk == "trans" and isvalu(ck) and ck != "trans" and vd & (cu | cd): g = max(g, 1)
        if pk == "trans" and ck == "trans" and vd & cu: g = max(g, 1)
        if c.op.startswith("v_permlane") and vd & cu: g = max(g, 2)
        if c.op in ("v_readfirstlane_b32", "v_readlane_b32") and vd & cu: g = max(g, 1)
        if "dpp" in c.mods or "row_" in c.mods or "quad_perm" in c.mods:
            if vd & cu: g = max(g, 2)
        if sd:
            if isvalu(ck) and sd & cu: g = max(g, 4 if c.op in ("v_readlane_b32", "v_writelane_b32") else 2)
            if ck in VM_KINDS and sd & cu: g = max(g, 5)
            if ck in ("salu", "branch", "smem") and sd & cu: g = max(g, 1)
        if pk == "dot" and (isvalu(ck) or ck == "mfma" or ck in VM_KINDS or ck in LG_KINDS):
            if vd & (cu | cd):
                if c.op == p.op:
                    srcs = [set(regs_of(x)) for x in c.ops[1:3]]
                    if any(vd & s for s in srcs): g = max(g, 3)
                else: g = max(g, 3)
        if ("op_sel" in p.mods or "sdwa" in p.op or "dst_sel" in p.mods) and isvalu(ck) and vd & (cu | cd): g = max(g, 1)
        if ("exec", 0) in pd and ck == "mfma": g = max(g, 4)
    if pk == "mfma":
        n = p.passes
        big = {4: 8, 8: 12, 16: 20}[n]
        if ck == "mfma":
            if pd & set(c.srcab): g = max(g, big)
            if pd & set(c.srcc):
                if not (p.defs == c.srcc and p.passes == c.passes): g = max(g, {4: 6, 8: 10, 16: 18}[n])
            elif pd & cd and not (p.defs == c.defs):
                g = max(g, big)
            elif pd & cd:
                g = max(g, big)
        elif isvalu(ck) or ck in VM_KINDS or ck in LG_KINDS:
            if pd & (cu | cd): g = max(g, big)
        if isvalu(ck) and set(p.srcc) & cd: g = max(g, {4: 3, 8: 7, 16: 15}[n])
    if pk == "salu" and ("m0", 0) in pd and (ck == "dma"): g = max(g, 1)
    if pk in ("vstore", "vatomic") and ("x4" in p.op or "x3" in p.op):
        data = set(regs_of(p.ops[0])) if p.op.startswith("buffer") else set(regs_of(p.ops[1]))
        if data & cd: g = max(g, 2 if isvalu(ck) else 1)
    if pk == "lwrite" and ("b128" in p.op or "b96" in p.op):
        data = set(regs_of(p.ops[1]))
        if data & cd and isvalu(ck): g = max(g, 2)
    return g

def insert_nops(L, window=24):
    out = []
    for c in L:
        if c.kind != "label":
            need = 0
            dist = 0
            for p in reversed(out):
                if dist >= window: break
                r = required_gap(p, c)
                if r > dist: need = max(need, r - dist)
                dist += states(p)
            while need > 0:
                k = min(need, 16)
                out.append(Inst("s_nop", (k - 1,)))
                need -= k
        out.append(c)
    return out

def finalize(prog):
    L = insert_waits(prog.L)
    L = insert_nops(L)
    return L

def render(L):
    return "\n".join(("" if i.kind == "label" else "    ") + i.text() for i in L) + "\n"

def interleave(main, filler, per, start=0):
    out = []; fi = 0; acc = 0.0; cnt = 0
    for i in main:
        out.append(i)
        if i.kind == "mfma":
            cnt += 1
            if cnt > start:
                acc += per
                while acc >= 1 and fi < len(filler):
                    out.append(filler[fi]); fi += 1; acc -= 1
    out.extend(filler[fi:])
    return out

def kernel_header(name):
    return f".globl {name}\n.p2align 8\n.type {name},@function\n{name}:\n"

def kernel_desc(name, vgpr, sgpr=102, accum=None):
    if accum is None: accum = (vgpr + 3) // 4 * 4
    return (f".amdhsa_kernel {name}\n  .amdhsa_next_free_vgpr {vgpr}\n  .amdhsa_next_free_sgpr {sgpr}\n"
            f"  .amdhsa_accum_offset {accum}\n  .amdhsa_group_segment_fixed_size 0\n  .amdhsa_kernarg_size 88\n"
            f"  .amdhsa_user_sgpr_count 2\n  .amdhsa_user_sgpr_kernarg_segment_ptr 1\n  .amdhsa_system_sgpr_workgroup_id_x 1\n"
            f".end_amdhsa_kernel\n")
```

```python
import sys, struct
from asmgen import *

NAME = "parallel_sum__linear_kernel_hedgehog__geglu_ffn__prompt"
AF_OFF  = 0x0000000
W2F_OFF = 0x0A00000
PQF_OFF = 0x0C00000
KVP_OFF = 0x1000000
WS_BYTES = 0x1400000
NKS = 144

def f2u(x): return struct.unpack("<I", struct.pack("<f", x))[0]
LOG2E = 1.4426950408889634
GC1 = -2.0 * 0.7978845608028654 * LOG2E
GC2 = GC1 * 0.044715

def srd(p, d, base, nbytes):
    p.I("s_mov_b32", S(d), S(base))
    p.I("s_and_b32", S(d + 1), S(base + 1), 0xFFFF)
    p.I("s_mov_b32", S(d + 2), nbytes)
    p.I("s_mov_b32", S(d + 3), 0x20000)

SLOT = 24576; NSLOT = 5; ABASE = SLOT * NSLOT; ASLOT = 8192
K1_LDS = ABASE + 3 * ASLOT

def gelu_tile(p, acc, tmp, out, cC2):
    t = tmp
    for j in range(8): p.I("v_mul_f32", t[j], acc[j], acc[j])
    for j in range(8): p.I("v_fmaak_f32", t[j], t[j], cC2, f2u(GC1))
    for j in range(8): p.I("v_mul_f32", t[j], t[j], acc[j])
    for j in range(8): p.I("v_exp_f32", t[j], t[j])
    for j in range(8): p.I("v_mul_f32", t[8 + j], acc[j], acc[8 + j])
    for j in range(8): p.I("v_add_f32", t[j], 1.0, t[j])
    for j in range(8): p.I("v_rcp_f32", t[j], t[j])
    for j in range(8): p.I("v_mul_f32", t[j], t[j], t[8 + j])
    for j in range(4): p.I("v_cvt_pk_bf16_f32", out[j], t[2 * j], t[2 * j + 1])

def softmax_tile(p, acc, wphi, pacc, tmp, pos, neg, vmask, sL):
    qb = tmp.sub(0, 8)
    for i in range(8): p.I("v_cvt_pk_bf16_f32", qb[i], acc[2 * i], acc[2 * i + 1])
    p.I("v_mfma_f32_32x32x16_bf16", pacc, wphi.sub(0, 4), qb.sub(0, 4), 0)
    p.I("v_mfma_f32_32x32x16_bf16", pacc, wphi.sub(4, 4), qb.sub(4, 4), pacc)
    for i in range(8): p.I("v_cvt_pk_bf16_f32", qb[i], pacc[2 * i], pacc[2 * i + 1])
    for i in range(8):
        p.I("v_lshlrev_b32", acc[2 * i], 16, qb[i])
        p.I("v_and_b32", acc[2 * i + 1], 0xFFFF0000, qb[i])
    mx, mn, t0, t1 = tmp[8], tmp[9], tmp[10], tmp[11]
    p.I("v_max3_f32", mx, acc[0], acc[1], acc[2])
    p.I("v_min3_f32", mn, acc[0], acc[1], acc[2])
    for i in range(6):
        p.I("v_max3_f32", mx, mx, acc[3 + 2 * i], acc[4 + 2 * i])
        p.I("v_min3_f32", mn, mn, acc[3 + 2 * i], acc[4 + 2 * i])
    p.I("v_max_f32", mx, mx, acc[15])
    p.I("v_min_f32", mn, mn, acc[15])
    p.I("v_mov_b32", t0, mx)
    p.I("v_mov_b32", t1, mn)
    p.I("v_permlane32_swap_b32", mx, t0)
    p.I("v_permlane32_swap_b32", mn, t1)
    p.I("v_max_f32", mx, mx, t0)
    p.I("v_min_f32", mn, mn, t1)
    p.I("v_mul_f32", mx, sL, mx)
    p.I("v_mul_f32", mn, sL, mn)
    for i in range(16): p.I("v_fma_f32", pacc[i], acc[i], sL, Neg(mx))
    for i in range(16): p.I("v_fma_f32", acc[i], Neg(acc[i]), sL, mn)
    for i in range(16): p.I("v_exp_f32", pacc[i], pacc[i])
    for i in range(16): p.I("v_exp_f32", acc[i], acc[i])
    sp, sn, sp2, sn2 = tmp[12], tmp[13], tmp[14], tmp[15]
    p.I("v_add_f32", sp, pacc[0], pacc[1]); p.I("v_add_f32", sn, acc[0], acc[1])
    p.I("v_add_f32", sp2, pacc[2], pacc[3]); p.I("v_add_f32", sn2, acc[2], acc[3])
    for i in range(4, 12, 2):
        p.I("v_add_f32", sp, sp, pacc[i]); p.I("v_add_f32", sn, sn, acc[i])
        p.I("v_add_f32", sp2, sp2, pacc[i + 1]); p.I("v_add_f32", sn2, sn2, acc[i + 1])
    for i in range(12, 16, 2):
        p.I("v_fmac_f32", sp, pacc[i], vmask); p.I("v_fmac_f32", sn, acc[i], vmask)
        p.I("v_fmac_f32", sp2, pacc[i + 1], vmask); p.I("v_fmac_f32", sn2, acc[i + 1], vmask)
    p.I("v_add_f32", sp, sp, sp2); p.I("v_add_f32", sn, sn, sn2)
    p.I("v_mov_b32", t0, sp); p.I("v_mov_b32", t1, sn)
    p.I("v_permlane32_swap_b32", sp, t0)
    p.I("v_permlane32_swap_b32", sn, t1)
    p.I("v_add_f32", sp, sp, t0); p.I("v_add_f32", sn, sn, t1)
    p.I("v_rcp_f32", sp, sp); p.I("v_rcp_f32", sn, sn)
    for i in range(16): p.I("v_mul_f32", pacc[i], pacc[i], sp)
    for i in range(16): p.I("v_mul_f32", acc[i], acc[i], sn)
    for i in range(8): p.I("v_cvt_pk_bf16_f32", pos[i], pacc[2 * i], pacc[2 * i + 1])
    for i in range(8): p.I("v_cvt_pk_bf16_f32", neg[i], acc[2 * i], acc[2 * i + 1])

def gen_k1(cfg):
    name = "k1_kernel"
    txt = kernel_header(name)
    pre = Prog()
    p = pre
    p.I("s_cmp_ge_u32", S(2), 256)
    p.raw("    s_cbranch_scc1 K1_END")
    p.I("s_load_dwordx8", S(4, 8), S(0, 2), 0)
    p.I("s_load_dwordx8", S(12, 8), S(0, 2), 32)
    p.I("s_load_dwordx2", S(24, 2), S(0, 2), 80)
    p.I("v_lshrrev_b32", V(1), 6, V(0))
    p.I("v_readfirstlane_b32", S(3), V(1))
    p.I("v_and_b32", V(0), 63, V(0))
    p.I("s_cmp_ge_u32", S(3), 4)
    p.raw("    s_cbranch_scc1 K1_ROLE1")
    txt += render(finalize(pre))
    for role in (0, 1):
        p = Prog()
        if role == 1: p.label("K1_ROLE1")
        p.I("s_waitcnt", raw=None, mods="") if False else None
        k1_role(p, role, cfg)
        txt += render(finalize(p))
    txt += "K1_END:\n    s_endpgm\n"
    return txt, kernel_desc(name, 256)

def k1_role(p, role, cfg):
    lane = V(0)
    XR = V(8, 56)
    ACC = [V(64 + 16 * t, 16) for t in range(5)]
    BF = [[V(144 + 20 * s + 4 * t, 4) for t in range(5)] for s in range(2)]
    AFr = [V(184, 4), V(188, 4)]
    WPHI = V(192, 8)
    IDN = V(200, 8)
    vQ = [V(208), V(209), V(210)]
    vF = [V(211), V(212), V(213)]
    vAw, vAr = V(214), V(215)
    vDq, vDg, vDu = V(216), V(217), V(218)
    vNegM, vRs = V(219), V(220)
    vMask, vC2 = V(221), V(222)
    vSt = V(223)
    LT = V(224, 16)
    T2 = V(240, 16)
    t1, t2, t3, t4, t5, t6 = V(1), V(2), V(3), V(4), V(5), V(6)
    sW = S(3)
    sR, sJ = S(26), S(27)
    SX, SQKV, SG, SU, SWS, SPHI, SWD, SWO = [S(28 + 4 * i, 4) for i in range(8)]
    sT0, sT1, sT2, sT3 = S(60), S(61), S(62), S(63)
    sOffQ, sOffG = S(64), S(65)
    sLdsW = S(66)
    sL = S(67)
    sM28 = S(68, 2)
    sAF, sPQ = S(70), S(71)

    if cfg["k1map"] == 0:
        p.I("s_and_b32", sT0, S(2), 7); p.I("s_lshr_b32", sT1, S(2), 3)
        p.I("s_and_b32", sT2, sT0, 1); p.I("s_lshl_b32", sT2, sT2, 3)
        p.I("s_and_b32", sT3, sT1, 7); p.I("s_add_u32", sR, sT2, sT3)
        p.I("s_lshr_b32", sT2, sT0, 1); p.I("s_lshl_b32", sT2, sT2, 2)
        p.I("s_lshr_b32", sT3, sT1, 3); p.I("s_add_u32", sJ, sT2, sT3)
    else:
        p.I("s_and_b32", sT0, S(2), 7); p.I("s_lshr_b32", sT1, S(2), 3)
        p.I("s_lshl_b32", sT2, sT0, 1); p.I("s_lshr_b32", sT3, sT1, 4); p.I("s_add_u32", sR, sT2, sT3)
        p.I("s_and_b32", sJ, sT1, 15)
    p.I("v_and_b32", t1, 15, lane)
    p.I("v_lshrrev_b32", t2, 4, lane)
    p.I("s_lshl_b32", sT0, sR, 7); p.I("s_lshl_b32", sT1, sW, 4); p.I("s_add_u32", sT0, sT0, sT1)
    p.I("v_add_u32", t3, sT0, t1)
    p.I("v_mul_u32_u24", t3, 896, t3)
    p.I("v_lshl_add_u32", t3, t2, 4, t3)
    p.raw("    s_waitcnt lgkmcnt(0)")
    srd(p, SX.n, 4, 2048 * 896)
    for i in range(14):
        p.I("buffer_load_dwordx4", XR.sub(4 * i, 4), t3, SX, 0, mods=f"offen offset:{64*i}")
    srd(p, SQKV.n, 6, 448 * 2688)
    srd(p, SG.n, 14, 448 * 3584)
    srd(p, SU.n, 16, 448 * 3584)
    BIG = 0x7FFF0000
    p.I("v_mul_u32_u24", t1, 0x5556, lane); p.I("v_lshrrev_b32", t1, 18, t1)
    p.I("v_mul_u32_u24", t2, 12, t1); p.I("v_sub_u32", t2, lane, t2)
    p.I("v_lshrrev_b32", t4, 2, t2)
    p.I("v_add_u32", t4, 1, t4)
    p.I("v_cmp_eq_u32", VCC, 3, t4)
    p.I("v_cndmask_b32", t4, t4, 0, VCC)
    p.I("v_mul_u32_u24", t4, 896, t4)
    p.I("v_and_b32", t2, 3, t2)
    p.I("v_lshl_add_u32", t4, t2, 4, t4)
    p.I("s_lshl_b32", sT0, sW, 2)
    p.I("v_add_u32", t1, sT0, t1)
    p.I("v_mul_u32_u24", t1, 2688, t1)
    p.I("v_add_u32", t4, t4, t1)
    p.I("s_mul_i32", sT1, sJ, 56)
    p.I("v_add_u32", t4, sT1, t4)
    p.I("v_mov_b32", t5, BIG)
    p.I("v_cmp_gt_u32", VCC, 48, lane)
    p.I("v_cndmask_b32", vDq, t5, t4, VCC)
    def gu_off(dst, lreg, cond_op, cond_val):
        p.I("v_mul_u32_u24", t1, 0x4925, lreg); p.I("v_lshrrev_b32", t1, 18, t1)
        p.I("v_mul_u32_u24", t2, 14, t1); p.I("v_sub_u32", t2, lreg, t2)
        p.I("v_add_u32", t1, sT0, t1)
        p.I("v_mul_u32_u24", t1, 3584, t1)
        p.I("v_lshl_add_u32", t1, t2, 4, t1)
        p.I("v_add_u32", t1, sT2, t1)
        p.I(cond_op, VCC, cond_val, lane)
        p.I("v_cndmask_b32", dst, t5, t1, VCC)
    p.I("s_mul_i32", sT2, sJ, 224)
    gu_off(vDg, lane, "v_cmp_gt_u32", 56)
    p.I("v_subrev_u32", t6, 8, lane)
    p.I("v_and_b32", t6, 63, t6)
    gu_off(vDu, t6, "v_cmp_lt_u32", 7)
    p.I("s_mul_i32", sLdsW, sW, 3072)
    p.I("s_mov_b32", sOffQ, 0); p.I("s_mov_b32", sOffG, 0)

    def dma_chunk(q, c):
        slot = (c % NSLOT) * SLOT
        q.I("s_add_u32", M0, sLdsW, slot)
        q.I("buffer_load_dwordx4", vDq, SQKV, sOffQ, mods="offen lds", tag=f"dma{c}")
        q.I("s_add_u32", M0, sLdsW, slot + 1024)
        q.I("buffer_load_dwordx4", vDg, SG, sOffG, mods="offen lds", tag=f"dma{c}")
        q.I("s_add_u32", M0, sLdsW, slot + 2048)
        q.I("buffer_load_dwordx4", vDu, SU, sOffG, mods="offen lds", tag=f"dma{c}")
        q.I("s_add_u32", sOffQ, sOffQ, 32 * 2688)
        q.I("s_add_u32", sOffG, sOffG, 32 * 3584)
    for c in range(4): dma_chunk(p, c)

    srd(p, SWS.n, 24, WS_BYTES)
    srd(p, SPHI.n, 8, 16 * 1568)
    srd(p, SWD.n, 18, 1792 * 896)
    srd(p, SWO.n, 10, 448 * 896)
    WT = V(64, 16)
    p.I("v_and_b32", t1, 31, lane)
    p.I("v_lshrrev_b32", t2, 5, lane)
    p.I("v_subrev_u32", t3, 24, t1)
    p.I("v_cmp_lt_u32", VCC, 27, t1)
    p.I("v_cndmask_b32", t3, t1, t3, VCC)
    p.I("v_lshlrev_b32", t3, 1, t3)
    p.I("v_mul_u32_u24", t4, 4 * 56, t2)
    p.I("v_add_u32", t3, t3, t4)
    p.I("s_mul_i32", sT0, sJ, 1568)
    p.I("v_add_u32", t3, sT0, t3)
    p.I("v_cmp_eq_u32", VCC, 1, t2)
    p.I("v_cndmask_b32", t4, t3, t5, VCC)
    for s in range(2):
        for j in range(8):
            d0 = 16 * s + 8 * (j >> 2) + (j & 3)
            addr = t4 if d0 + 4 >= 28 else t3
            p.I("buffer_load_ushort", WT[8 * s + j], addr, SPHI, 0, mods=f"offen offset:{d0*56}")
    W2T = V(80, 8)
    p.I("s_lshl_b32", sT0, S(2), 3); p.I("s_add_u32", sT0, sT0, sW)
    p.I("s_mul_i32", sT1, sT0, 0x1C72); p.I("s_lshr_b32", sT1, sT1, 20)
    p.I("s_mul_i32", sT2, sT1, 144); p.I("s_sub_u32", sT2, sT0, sT2)
    p.I("s_sub_u32", sT3, sT2, 112); p.I("s_lshr_b32", S(72), sT3, 1); p.I("s_mul_i32", S(72), S(72), 28)
    p.I("s_and_b32", S(73), sT2, 1); p.I("s_lshl_b32", S(74), S(73), 4); p.I("s_add_u32", S(72), S(72), S(74))
    p.I("s_lshl_b32", S(74), sT2, 4)
    p.I("s_cmp_lt_u32", sT2, 112)
    p.I("s_cselect_b32", S(72), S(74), S(72))
    p.I("s_cselect_b32", S(76), S(SWD.n), S(SWO.n))
    p.I("s_cselect_b32", S(77), S(SWD.n + 1), S(SWO.n + 1))
    p.I("s_cselect_b32", S(78), S(SWD.n + 2), S(SWO.n + 2))
    p.I("s_cselect_b32", S(73), 0, S(73))
    p.I("s_mov_b32", S(79), 0x20000)
    p.I("s_mul_i32", S(72), S(72), 896)
    p.I("s_lshl_b32", S(74), sT1, 6); p.I("s_add_u32", S(72), S(72), S(74))
    p.I("v_mul_u32_u24", t3, 4 * 896, t2)
    p.I("v_lshl_add_u32", t3, t1, 1, t3)
    p.I("v_add_u32", t3, S(72), t3)
    p.I("v_and_b32", t4, S(73), t2)
    p.I("v_cmp_eq_u32", VCC, 1, t4)
    p.I("v_cndmask_b32", t4, t3, t5, VCC)
    p.I("v_add_u32", t6, 8 * 896, t4)
    p.I("v_cndmask_b32", t6, t6, t5, VCC)
    for j in range(8):
        addr = t3 if j < 4 else t6
        p.I("buffer_load_ushort", W2T[j], addr, S(76, 4), 0, mods=f"offen offset:{(j&3)*896}")
    sW2dst = S(75)
    p.I("s_lshl_b32", sW2dst, sT0, 10); p.I("s_add_u32", sW2dst, sW2dst, W2F_OFF)
    p.I("s_cmp_lt_u32", sT0, 14 * NKS)
    p.I("s_cselect_b32", sW2dst, sW2dst, 0x7FFF0000)
    p.I("s_mov_b32", sL, f2u(LOG2E))
    p.I("v_mov_b32", vC2, f2u(GC2))
    p.I("v_cmp_eq_u32", VCC, 0, t2)
    p.I("v_cndmask_b32", vMask, 0, 1.0, VCC)
    p.I("v_cmp_eq_u32", sM28, 28, t1)
    p.I("v_lshlrev_b32", vSt, 4, lane)
    p.I("v_lshlrev_b32", t3, 2, t2); p.I("v_sub_u32", t3, t1, t3)
    for s in range(2):
        for i in range(4):
            f0 = 16 * s + 8 * ((2 * i) >> 2) + ((2 * i) & 3)
            p.I("v_cmp_eq_u32", VCC, f0, t3)
            p.I("v_cndmask_b32", t4, 0, V(7), VCC) if False else None
            p.I("v_mov_b32", t4, 0x3F80)
            p.I("v_cndmask_b32", IDN[4 * s + i], 0, t4, VCC)
            p.I("v_cmp_eq_u32", VCC, f0 + 1, t3)
            p.I("v_mov_b32", t4, 0x3F800000)
            p.I("v_cndmask_b32", IDN[4 * s + i], IDN[4 * s + i], t4, VCC)
    p.I("v_lshrrev_b32", t3, 4, lane); p.I("v_and_b32", t3, 1, t3)
    p.I("v_lshrrev_b32", t4, 2, lane); p.I("v_and_b32", t4, 3, t4)
    p.I("v_and_b32", t6, 3, lane)
    p.I("v_mul_u32_u24", vQ[0], 6144, t2)
    p.I("v_lshl_add_u32", vQ[0], t6, 3, vQ[0])
    p.I("v_mov_b32", vF[0], vQ[0])
    p.I("v_mul_u32_u24", t6, 192, t4); p.I("v_add_u32", vQ[0], vQ[0], t6)
    p.I("v_lshl_add_u32", vQ[0], t3, 5, vQ[0])
    p.I("v_mul_u32_u24", t6, 224, t4); p.I("v_add_u32", vF[0], vF[0], t6)
    p.I("v_mul_u32_u24", t6, 1152, t3); p.I("v_add_u32", vF[0], vF[0], t6)
    p.I("v_add_u32", vF[0], 1024, vF[0])
    for b in (1, 2):
        p.I("v_add_u32", vQ[b], 49152 * b, vQ[0]); p.I("v_add_u32", vF[b], 49152 * b, vF[0])
    p.I("v_lshrrev_b32", t3, 4, lane)
    p.I("v_lshlrev_b32", vAw, 9, t3)
    p.I("v_and_b32", t4, 15, lane)
    p.I("v_lshl_add_u32", vAw, t4, 4, vAw)
    p.I("s_lshr_b32", sT0, sW, 1); p.I("s_lshl_b32", sT0, sT0, 11)
    p.I("s_and_b32", sT1, sW, 1); p.I("s_lshl_b32", sT1, sT1, 8)
    p.I("s_add_u32", sT0, sT0, sT1); p.I("s_add_u32", sT0, sT0, ABASE)
    p.I("v_add_u32", vAw, sT0, vAw)
    p.I("s_and_b32", sT0, sW, 3); p.I("s_lshl_b32", sT1, sT0, 11); p.I("s_add_u32", sT1, sT1, ABASE)
    p.I("v_add_u32", vAr, sT1, vSt)
    p.I("s_lshl_b32", sT1, sR, 2); p.I("s_add_u32", sT1, sT1, sT0)
    p.I("s_mul_i32", sAF, sT1, NKS * 1024)
    p.I("s_mul_i32", sT2, sJ, 7 * 1024); p.I("s_add_u32", sAF, sAF, sT2)
    p.I("s_lshl_b32", sPQ, sT1, 16); p.I("s_lshl_b32", sT2, sJ, 12); p.I("s_add_u32", sPQ, sPQ, sT2)
    p.I("s_add_u32", sPQ, sPQ, PQF_OFF)

    sm, sq, sm2, sq2 = LT[0], LT[1], LT[2], LT[3]
    ones = LT[4]
    p.I("v_mov_b32", ones, 0x3F803F80)
    for r in (sm, sq, sm2, sq2): p.I("v_mov_b32", r, 0)
    for i in range(0, 56, 2):
        p.I("v_dot2c_f32_bf16", sm, XR[i], ones)
        p.I("v_dot2c_f32_bf16", sq, XR[i], XR[i])
        p.I("v_dot2c_f32_bf16", sm2, XR[i + 1], ones)
        p.I("v_dot2c_f32_bf16", sq2, XR[i + 1], XR[i + 1])
    p.I("v_add_f32", sm, sm, sm2); p.I("v_add_f32", sq, sq, sq2)
    for sw in ("v_permlane16_swap_b32", "v_permlane32_swap_b32"):
        p.I("v_mov_b32", sm2, sm); p.I("v_mov_b32", sq2, sq)
        p.I(sw, sm, sm2); p.I(sw, sq, sq2)
        p.I("v_add_f32", sm, sm, sm2); p.I("v_add_f32", sq, sq, sq2)
    p.I("v_mul_f32", sm, f2u(1.0 / 448), sm)
    p.I("v_mul_f32", sq, f2u(1.0 / 448), sq)
    p.I("v_fma_f32", sq, Neg(sm), sm, sq)
    p.I("v_max_f32", sq, 0, sq)
    p.I("v_cvt_pk_bf16_f32", sm2, sm, sq)
    p.I("v_lshlrev_b32", vNegM, 16, sm2)
    p.I("v_and_b32", sq, 0xFFFF0000, sm2)
    p.I("v_add_f32", sq, f2u(1e-5), sq)
    p.I("v_cvt_pk_bf16_f32", sq, sq, sq)
    p.I("v_and_b32", sq, 0xFFFF0000, sq)
    p.I("v_sqrt_f32", sq, sq)
    p.I("v_cvt_pk_bf16_f32", sq, sq, sq)
    p.I("v_and_b32", sq, 0xFFFF0000, sq)
    p.I("v_rcp_f32", vRs, sq)

    def ln_chunk(q, c):
        x = XR.sub(4 * c, 4)
        for i in range(4):
            q.I("v_lshlrev_b32", LT[2 * i], 16, x[i])
            q.I("v_and_b32", LT[2 * i + 1], 0xFFFF0000, x[i])
        for i in range(8): q.I("v_sub_f32", LT[i], LT[i], vNegM)
        for i in range(4): q.I("v_cvt_pk_bf16_f32", LT[8 + i], LT[2 * i], LT[2 * i + 1])
        for i in range(4):
            q.I("v_lshlrev_b32", LT[2 * i], 16, LT[8 + i])
            q.I("v_and_b32", LT[2 * i + 1], 0xFFFF0000, LT[8 + i])
        for i in range(8): q.I("v_mul_f32", LT[i], LT[i], vRs)
        for i in range(4): q.I("v_cvt_pk_bf16_f32", x[i], LT[2 * i], LT[2 * i + 1])
        q.I("ds_write_b128", vAw, x, mods=f"offset:{(c % 3) * ASLOT}", tag=f"aw{c}")

    ln_chunk(p, 0); ln_chunk(p, 1)
    for i in range(8): p.I("v_lshl_or_b32", WPHI[i], WT[2 * i + 1], 16, WT[2 * i])
    for i in range(4): p.I("v_lshl_or_b32", T2[i], W2T[2 * i + 1], 16, W2T[2 * i])
    p.I("buffer_store_dwordx4", T2.sub(0, 4), vSt, SWS, sW2dst, mods="offen")

    tiles = [("q", 0), ("q", 1), ("f", 0), ("f", 1), ("f", 2)] if role == 0 else [("q", 2), ("f", 3), ("f", 4), ("f", 5), ("f", 6)]
    def frag_reads(c, ks, t):
        slot = c % NSLOT; b = slot // 2
        off = (slot % 2) * SLOT + ks * 12288
        kind, idx = tiles[t]
        base = vQ[b] if kind == "q" else vF[b]
        off += idx * (64 if kind == "q" else 32)
        dst = BF[ks][t]
        return [Inst("ds_read_b64_tr_b16", (dst.sub(2 * pp, 2), base), f"offset:{off + pp*3072}") for pp in range(2)]
    def a_read(c, ks):
        return Inst("ds_read_b128", (AFr[ks], vAr), f"offset:{(c % 3) * ASLOT + ks * 1024}")
    def mfma(c, ks, t):
        first = (c == 0 and ks == 0)
        cin = 0 if first else ACC[t]
        if role == 0 and t == 1:
            return Inst("v_mfma_f32_32x32x16_bf16", (ACC[t], AFr[ks], BF[ks][t], cin))
        return Inst("v_mfma_f32_32x32x16_bf16", (ACC[t], BF[ks][t], AFr[ks], cin))

    p.waittag("dma0", "dma1", "aw0", "aw1")
    p.I("s_barrier")
    p.L.append(a_read(0, 0))
    for t in range(5): p.L.extend(frag_reads(0, 0, t))
    for c in range(14):
        fill = Prog()
        if c + 4 < 14: dma_chunk(fill, c + 4)
        if c + 2 < 14: ln_chunk(fill, c + 2)
        main = []
        for ks in range(2):
            nc, nks = (c, 1) if ks == 0 else (c + 1, 0)
            for t in range(5):
                main.append(mfma(c, ks, t))
                if nc < 14:
                    if t == 0: main.append(a_read(nc, nks))
                    main.extend(frag_reads(nc, nks, t))
        p.L.extend(interleave(main, fill.L, len(fill.L) / 9.0))
        if c + 1 < 14:
            p.waittag(f"dma{c+2}", f"aw{c+2}")
            p.I("s_barrier")

    TMP = V(8, 56)
    for t in range(5):
        kind, idx = tiles[t]
        if kind == "f":
            o = T2.sub(4 * (t & 3), 4)
            gelu_tile(p, ACC[t], TMP.sub(0, 16), o, vC2)
            p.I("buffer_store_dwordx4", o, vSt, SWS, sAF, mods=f"offen offset:{idx*1024}" if idx < 4 else "offen") if idx < 4 else None
            if idx >= 4:
                p.I("s_add_u32", sT0, sAF, idx * 1024)
                p.I("buffer_store_dwordx4", o, vSt, SWS, sT0, mods="offen")
    POS, NEG = V(144, 8), V(152, 8)
    PACC = V(160, 16)
    softmax_tile(p, ACC[0], WPHI, PACC, TMP.sub(0, 24), POS, NEG, vMask, sL)
    if role == 1:
        for s in range(4):
            src = (POS if s < 2 else NEG).sub(4 * (s & 1), 4)
            p.I("buffer_store_dwordx4", src, vSt, SWS, sPQ, mods=f"offen offset:{s*1024}")
        p.I("s_barrier")
        p.I("s_barrier")
    else:
        VB = TMP.sub(24, 8)
        p.I("v_mov_b32", t1, 0x3F803F80)
        for i in range(8): p.I("v_cvt_pk_bf16_f32", VB[i], ACC[1][2 * i], ACC[1][2 * i + 1])
        for i in range(8): p.I("v_cndmask_b32", VB[i], VB[i], t1, sM28)
        KV = [ACC[2], ACC[3]]
        for ft, src in enumerate((POS, NEG)):
            Tt = ACC[ft]
            p.I("v_mfma_f32_32x32x16_bf16", Tt, src.sub(0, 4), IDN.sub(0, 4), 0)
            p.I("v_mfma_f32_32x32x16_bf16", Tt, src.sub(4, 4), IDN.sub(4, 4), Tt)
        for ft in range(2):
            PT = TMP.sub(32 + 8 * ft, 8)
            for i in range(8): p.I("v_cvt_pk_bf16_f32", PT[i], ACC[ft][2 * i], ACC[ft][2 * i + 1])
            p.I("v_mfma_f32_32x32x16_bf16", KV[ft], PT.sub(0, 4), VB.sub(0, 4), 0)
            p.I("v_mfma_f32_32x32x16_bf16", KV[ft], PT.sub(4, 4), VB.sub(4, 4), KV[ft])
        p.I("s_barrier")
        p.I("s_lshl_b32", sT0, sW, 13)
        p.I("v_add_u32", t2, sT0, vSt)
        for q in range(8):
            p.I("ds_write_b128", t2, KV[q >> 2].sub(4 * (q & 3), 4), mods=f"offset:{q*1024}", tag="kvw")
        p.waittag("kvw")
        p.I("s_barrier")
    p.I("s_lshl_b32", sT0, sW, 10)
    p.I("v_add_u32", t2, sT0, vSt)
    RD = V(64, 16)
    for r in range(4): p.I("ds_read_b128", RD.sub(4 * r, 4), t2, mods=f"offset:{r*8192}")
    for i in range(4): p.I("v_add_f32", RD[i], RD[i], RD[4 + i])
    for i in range(4): p.I("v_add_f32", RD[8 + i], RD[8 + i], RD[12 + i])
    for i in range(4): p.I("v_add_f32", RD[i], RD[i], RD[8 + i])
    p.I("s_lshl_b32", sT1, sR, 4); p.I("s_add_u32", sT1, sT1, sJ); p.I("s_lshl_b32", sT1, sT1, 13)
    p.I("s_add_u32", sT1, sT1, sT0); p.I("s_add_u32", sT1, sT1, KVP_OFF)
    p.I("buffer_store_dwordx4", RD.sub(0, 4), vSt, SWS, sT1, mods="offen")
    p.I("s_endpgm")

def gen_k15(cfg):
    name = "k15_kernel"
    p = Prog()
    lane = V(0); sW = S(3); SWS = S(8, 4)
    p.I("s_cmp_ge_u32", S(2), 256)
    p.raw("    s_cbranch_scc1 K15_END")
    p.I("s_load_dwordx2", S(4, 2), S(0, 2), 80)
    p.I("v_lshrrev_b32", V(1), 6, V(0))
    p.I("v_readfirstlane_b32", sW, V(1))
    p.I("v_and_b32", V(0), 63, V(0))
    vSt = V(1)
    p.I("v_lshlrev_b32", vSt, 4, lane)
    sH, sTq, sT0, sT1, sT2 = S(12), S(13), S(14), S(15), S(16)
    p.I("s_and_b32", sH, S(2), 15); p.I("s_lshr_b32", sTq, S(2), 4)
    srd(p, SWS.n, 4, WS_BYTES)
    p.I("s_lshl_b32", sT0, sH, 13); p.I("s_lshl_b32", sT1, sW, 11); p.I("s_add_u32", sT0, sT0, sT1)
    p.I("s_add_u32", sT0, sT0, KVP_OFF)
    PL = V(16, 128)
    for R in range(16):
        for qq in range(2):
            p.I("buffer_load_dwordx4", PL.sub(8 * R + 4 * qq, 4), vSt, SWS, sT0, mods=f"offen offset:{qq*1024}")
        if R < 15: p.I("s_add_u32", sT0, sT0, 16 * 8192)
    PQ = V(144, 16)
    p.I("s_lshl_b32", sT1, sTq, 2); p.I("s_add_u32", sT1, sT1, sW)
    p.I("s_lshl_b32", sT0, sT1, 16); p.I("s_lshl_b32", sT2, sH, 12); p.I("s_add_u32", sT0, sT0, sT2)
    p.I("s_add_u32", sT0, sT0, PQF_OFF)
    for s in range(4): p.I("buffer_load_dwordx4", PQ.sub(4 * s, 4), vSt, SWS, sT0, mods=f"offen offset:{s*1024}")
    vM = V(2)
    p.I("v_lshrrev_b32", V(3), 5, lane)
    p.I("s_and_b32", sT0, sW, 1)
    p.I("v_and_b32", V(3), sT0, V(3))
    p.I("v_cmp_eq_u32", VCC, 0, V(3))
    p.I("v_cndmask_b32", vM, 0, 1.0, VCC)
    st = 8
    while st >= 1:
        for R in range(st):
            for i in range(8): p.I("v_add_f32", PL[8 * R + i], PL[8 * R + i], PL[8 * (R + st) + i])
        st //= 2
    for i in range(4, 8): p.I("v_mul_f32", PL[i], PL[i], vM)
    KF = V(4, 4)
    for i in range(4): p.I("v_cvt_pk_bf16_f32", KF[i], PL[2 * i], PL[2 * i + 1])
    p.I("s_lshl_b32", sT0, sW, 10)
    p.I("v_add_u32", V(3), sT0, vSt)
    p.I("ds_write_b128", V(3), KF, tag="kf")
    p.waittag("kf")
    p.I("s_barrier")
    KV = V(16, 16)
    for s in range(4): p.I("ds_read_b128", KV.sub(4 * s, 4), vSt, mods=f"offset:{s*1024}")
    N = V(32, 16)
    for s in range(4):
        p.I("v_mfma_f32_32x32x16_bf16", N, KV.sub(4 * s, 4), PQ.sub(4 * s, 4), 0 if s == 0 else N)
    T = V(48, 8)
    for i in range(8): p.I("v_cvt_pk_bf16_f32", T[i], N[2 * i], N[2 * i + 1])
    for i in range(8):
        p.I("v_lshlrev_b32", N[2 * i], 16, T[i]); p.I("v_and_b32", N[2 * i + 1], 0xFFFF0000, T[i])
    d0, d1 = V(56), V(57)
    p.I("v_mov_b32", d0, N[12]); p.I("v_mov_b32", d1, N[12])
    p.I("v_permlane32_swap_b32", d0, d1)
    p.I("v_add_f32", d1, f2u(1e-6), d1)
    p.I("v_cvt_pk_bf16_f32", d1, d1, d1)
    p.I("v_and_b32", d1, 0xFFFF0000, d1)
    p.I("v_rcp_f32", d1, d1)
    for i in range(16): p.I("v_mul_f32", N[i], N[i], d1)
    for i in range(8): p.I("v_cvt_pk_bf16_f32", T[i], N[2 * i], N[2 * i + 1])
    p.I("s_mul_i32", sT0, sT1, NKS * 1024); p.I("s_lshl_b32", sT2, sH, 11); p.I("s_add_u32", sT0, sT0, sT2)
    p.I("s_add_u32", sT0, sT0, 112 * 1024)
    for s in range(2): p.I("buffer_store_dwordx4", T.sub(4 * s, 4), vSt, SWS, sT0, mods=f"offen offset:{s*1024}")
    p.label("K15_END")
    p.I("s_endpgm")
    return kernel_header(name) + render(finalize(p)), kernel_desc(name, 160)

K2_ROW = 272
K2_LDS = 4 * 64 * K2_ROW
def gen_k2(cfg):
    name = "k2_kernel"
    p = Prog()
    lane = V(0); sW = S(3); SWS = S(12, 4); SX = S(16, 4); SO = S(20, 4)
    D = cfg["k2depth"]
    p.I("s_cmp_ge_u32", S(2), 224)
    p.raw("    s_cbranch_scc1 K2_END")
    p.I("s_load_dwordx2", S(4, 2), S(0, 2), 0)
    p.I("s_load_dwordx2", S(6, 2), S(0, 2), 64)
    p.I("s_load_dwordx2", S(8, 2), S(0, 2), 80)
    tid = V(1)
    p.I("v_mov_b32", tid, V(0))
    p.I("v_lshrrev_b32", V(2), 6, V(0))
    p.I("v_readfirstlane_b32", sW, V(2))
    p.I("v_and_b32", V(0), 63, V(0))
    sRB, sCB, sT0, sT1, sT2 = S(24), S(25), S(26), S(27), S(28)
    sA = [S(30), S(31)]; sB = [S(32), S(33)]
    p.I("s_and_b32", sT0, S(2), 7); p.I("s_lshr_b32", sT1, S(2), 3)
    p.I("s_mul_i32", sT2, sT1, 37); p.I("s_lshr_b32", sT2, sT2, 8)
    p.I("s_lshl_b32", sRB, sT0, 2); p.I("s_add_u32", sRB, sRB, sT2)
    p.I("s_mul_i32", sT2, sT2, 7); p.I("s_sub_u32", sCB, sT1, sT2)
    p.I("s_mul_i32", sT0, sW, 36 * 1024)
    p.I("s_mul_i32", sA[0], sRB, 2 * NKS * 1024); p.I("s_add_u32", sA[0], sA[0], sT0)
    p.I("s_add_u32", sA[1], sA[0], NKS * 1024)
    p.I("s_mul_i32", sB[0], sCB, 2 * NKS * 1024); p.I("s_add_u32", sB[0], sB[0], sT0); p.I("s_add_u32", sB[0], sB[0], W2F_OFF)
    p.I("s_add_u32", sB[1], sB[0], NKS * 1024)
    VO = V(4, 9)
    p.I("v_lshlrev_b32", VO[0], 4, lane)
    for m in range(1, 9): p.I("v_add_u32", VO[m], 4096 * m, VO[0])
    srd(p, SWS.n, 8, WS_BYTES)
    ACC = [[V(16 + 32 * r + 16 * c, 16) for c in range(2)] for r in range(2)]
    XV = V(80, 8)
    BUF = [V(96 + 16 * d, 16) for d in range(D)]
    def loads(k):
        b = BUF[k % D]; m, o = k // 4, (k % 4) * 1024
        L = []
        for x, so in enumerate((sA[0], sB[0], sA[1], sB[1])):
            L.append(Inst("buffer_load_dwordx4", (b.sub(4 * x, 4), VO[m], SWS, so), f"offen offset:{o}"))
        return L
    for k in range(min(D, 36)): p.L.extend(loads(k))
    srd(p, SX.n, 4, 2048 * 896); srd(p, SO.n, 6, 2048 * 896)
    vG = V(13)
    p.I("v_lshrrev_b32", V(2), 3, tid); p.I("v_and_b32", V(3), 7, tid)
    p.I("s_lshl_b32", sT0, sRB, 6)
    p.I("v_add_u32", vG, sT0, V(2)); p.I("v_mul_u32_u24", vG, 896, vG)
    p.I("v_lshl_add_u32", vG, V(3), 4, vG)
    p.I("s_lshl_b32", sT0, sCB, 7); p.I("v_add_u32", vG, sT0, vG)
    p.I("s_mov_b32", sT1, 32 * 896)
    vLr = V(14)
    p.I("v_mul_u32_u24", vLr, K2_ROW, V(2)); p.I("v_lshl_add_u32", vLr, V(3), 5, vLr)
    vLw = V(15)
    p.I("v_and_b32", V(2), 31, lane); p.I("v_lshrrev_b32", V(3), 5, lane)
    p.I("v_mul_u32_u24", vLw, K2_ROW, V(2)); p.I("v_lshl_add_u32", vLw, V(3), 4, vLw)
    p.I("s_mul_i32", sT0, sW, 64 * K2_ROW); p.I("v_add_u32", vLw, sT0, vLw)
    for k in range(36):
        b = BUF[k % D]
        for r in range(2):
            for c in range(2):
                p.I("v_mfma_f32_32x32x16_bf16", ACC[r][c], b.sub(4 + 8 * c, 4), b.sub(8 * r, 4), 0 if k == 0 else ACC[r][c])
        if k + D < 36: p.L.extend(loads(k + D))
        if k + D == 36:
            p.I("buffer_load_dwordx4", XV.sub(0, 4), vG, SX, 0, mods="offen")
            p.I("buffer_load_dwordx4", XV.sub(4, 4), vG, SX, sT1, mods="offen")
    for r in range(2):
        for c in range(2):
            for g in range(4):
                p.I("ds_write_b128", vLw, ACC[r][c].sub(4 * g, 4), mods=f"offset:{r*32*K2_ROW + (c*32+8*g)*4}", tag="pw")
    p.waittag("pw")
    p.I("s_barrier")
    RD = V(96, 64)
    for pp in range(2):
        for w in range(4):
            for hh in range(2):
                p.I("ds_read_b128", RD.sub(32 * pp + 8 * w + 4 * hh, 4), vLr, mods=f"offset:{w*64*K2_ROW + pp*32*K2_ROW + hh*16}")
    for pp in range(2):
        R = RD.sub(32 * pp, 32)
        for i in range(8): p.I("v_add_f32", R[i], R[i], R[8 + i])
        for i in range(8): p.I("v_add_f32", R[16 + i], R[16 + i], R[24 + i])
        X = XV.sub(4 * pp, 4); T = V(16, 8)
        for i in range(4):
            p.I("v_lshlrev_b32", T[2 * i], 16, X[i]); p.I("v_and_b32", T[2 * i + 1], 0xFFFF0000, X[i])
        for i in range(8): p.I("v_add_f32", R[i], R[i], R[16 + i])
        for i in range(8): p.I("v_add_f32", R[i], R[i], T[i])
        O = V(24 + 4 * pp, 4)
        for i in range(4): p.I("v_cvt_pk_bf16_f32", O[i], R[2 * i], R[2 * i + 1])
        p.I("buffer_store_dwordx4", O, vG, SO, 0 if pp == 0 else sT1, mods="offen")
    p.label("K2_END")
    p.I("s_endpgm")
    nv = 96 + 16 * D
    return kernel_header(name) + render(finalize(p)), kernel_desc(name, min(nv, 256))

def build(cfg):
    hdr = open("cdna_kernels/" + NAME + ".s.ref").read().split("\n")
    head = [l for l in hdr if l.startswith(";") and "@launch" not in l]
    head.append(f"; @launch kernel=k1_kernel grid=(256,1,1) block=(512,1,1) lds={K1_LDS}")
    head.append(f"; @launch kernel=k15_kernel grid=(256,1,1) block=(256,1,1) lds=4096")
    head.append(f"; @launch kernel=k2_kernel grid=(224,1,1) block=(256,1,1) lds={K2_LDS}")
    out = "\n".join(head) + '\n.amdgcn_target "amdgcn-amd-amdhsa--gfx950"\n.text\n'
    descs = ""
    for g in (gen_k1, gen_k15, gen_k2):
        t, d = g(cfg); out += t; descs += ".p2align 6\n" + d
    out += '.section .rodata,"a"\n' + descs
    return out

if __name__ == "__main__":
    cfg = dict(k1map=0, k2depth=10)
    for a in sys.argv[2:]:
        k, v = a.split("="); cfg[k] = int(v)
    open(sys.argv[1], "w").write(build(cfg))
```

```python
import sys, struct
from asmgen import *

NAME = "parallel_sum__linear_kernel_hedgehog__geglu_ffn__prompt"
AF_OFF  = 0x0000000
W2F_OFF = 0x0A00000
PQF_OFF = 0x0C00000
KVP_OFF = 0x1000000
WS_BYTES = 0x1400000
NKS = 144

def f2u(x): return struct.unpack("<I", struct.pack("<f", x))[0]
LOG2E = 1.4426950408889634
GC1 = -2.0 * 0.7978845608028654 * LOG2E
GC2 = GC1 * 0.044715

DBG_OFF = 0x1300000
class Stamps:
    def __init__(self, on, koff): self.on, self.n, self.koff = on, 0, koff
    def stamp(self, p, real=False):
        if not self.on: return
        p.I("s_memrealtime" if real else "s_memtime", S(80 + 2 * self.n, 2)); self.n += 1
        assert self.n <= 10
    def flush(self, p, SWS, sW, nwaves, vt, vt2):
        if not self.on: return
        p.I("s_mul_i32", S(100), S(2), nwaves); p.I("s_add_u32", S(100), S(100), sW); p.I("s_lshl_b32", S(100), S(100), 6)
        p.I("s_add_u32", S(100), S(100), DBG_OFF + self.koff)
        p.I("v_mov_b32", vt2, 0)
        for i in range(self.n):
            p.I("v_mov_b32", vt, S(80 + 2 * i))
            p.I("buffer_store_dword", vt, vt2, SWS, S(100), mods=f"offen offset:{4*i}")
            p.I("s_nop", 1)

def srd(p, d, base, nbytes):
    p.I("s_mov_b32", S(d), S(base))
    p.I("s_and_b32", S(d + 1), S(base + 1), 0xFFFF)
    p.I("s_mov_b32", S(d + 2), nbytes)
    p.I("s_mov_b32", S(d + 3), 0x20000)

SLOT = 24576; NSLOT = 5; ABASE = SLOT * NSLOT; ASLOT = 8192
K1_LDS = ABASE + 3 * ASLOT

def gelu_tile(p, acc, tmp, out, cC2):
    t = tmp
    for j in range(8): p.I("v_mul_f32", t[j], acc[j], acc[j])
    for j in range(8): p.I("v_fmaak_f32", t[j], t[j], cC2, f2u(GC1))
    for j in range(8): p.I("v_mul_f32", t[j], t[j], acc[j])
    for j in range(8): p.I("v_exp_f32", t[j], t[j])
    for j in range(8): p.I("v_mul_f32", t[8 + j], acc[j], acc[8 + j])
    for j in range(8): p.I("v_add_f32", t[j], 1.0, t[j])
    for j in range(8): p.I("v_rcp_f32", t[j], t[j])
    for j in range(8): p.I("v_mul_f32", t[j], t[j], t[8 + j])
    for j in range(4): p.I("v_cvt_pk_bf16_f32", out[j], t[2 * j], t[2 * j + 1])

def softmax_tile(p, acc, wphi, pacc, tmp, pos, neg, vmask, sL):
    qb = tmp.sub(0, 8)
    for i in range(8): p.I("v_cvt_pk_bf16_f32", qb[i], acc[2 * i], acc[2 * i + 1])
    p.I("v_mfma_f32_32x32x16_bf16", pacc, wphi.sub(0, 4), qb.sub(0, 4), 0)
    p.I("v_mfma_f32_32x32x16_bf16", pacc, wphi.sub(4, 4), qb.sub(4, 4), pacc)
    for i in range(8): p.I("v_cvt_pk_bf16_f32", qb[i], pacc[2 * i], pacc[2 * i + 1])
    for i in range(8):
        p.I("v_lshlrev_b32", acc[2 * i], 16, qb[i])
        p.I("v_and_b32", acc[2 * i + 1], 0xFFFF0000, qb[i])
    mx, mn, t0, t1 = tmp[8], tmp[9], tmp[10], tmp[11]
    p.I("v_max3_f32", mx, acc[0], acc[1], acc[2])
    p.I("v_min3_f32", mn, acc[0], acc[1], acc[2])
    for i in range(6):
        p.I("v_max3_f32", mx, mx, acc[3 + 2 * i], acc[4 + 2 * i])
        p.I("v_min3_f32", mn, mn, acc[3 + 2 * i], acc[4 + 2 * i])
    p.I("v_max_f32", mx, mx, acc[15])
    p.I("v_min_f32", mn, mn, acc[15])
    p.I("v_mov_b32", t0, mx)
    p.I("v_mov_b32", t1, mn)
    p.I("v_permlane32_swap_b32", mx, t0)
    p.I("v_permlane32_swap_b32", mn, t1)
    p.I("v_max_f32", mx, mx, t0)
    p.I("v_min_f32", mn, mn, t1)
    p.I("v_mul_f32", mx, sL, mx)
    p.I("v_mul_f32", mn, sL, mn)
    for i in range(16): p.I("v_fma_f32", pacc[i], acc[i], sL, Neg(mx))
    for i in range(16): p.I("v_fma_f32", acc[i], Neg(acc[i]), sL, mn)
    for i in range(16): p.I("v_exp_f32", pacc[i], pacc[i])
    for i in range(16): p.I("v_exp_f32", acc[i], acc[i])
    sp, sn, sp2, sn2 = tmp[12], tmp[13], tmp[14], tmp[15]
    p.I("v_add_f32", sp, pacc[0], pacc[1]); p.I("v_add_f32", sn, acc[0], acc[1])
    p.I("v_add_f32", sp2, pacc[2], pacc[3]); p.I("v_add_f32", sn2, acc[2], acc[3])
    for i in range(4, 12, 2):
        p.I("v_add_f32", sp, sp, pacc[i]); p.I("v_add_f32", sn, sn, acc[i])
        p.I("v_add_f32", sp2, sp2, pacc[i + 1]); p.I("v_add_f32", sn2, sn2, acc[i + 1])
    for i in range(12, 16, 2):
        p.I("v_fmac_f32", sp, pacc[i], vmask); p.I("v_fmac_f32", sn, acc[i], vmask)
        p.I("v_fmac_f32", sp2, pacc[i + 1], vmask); p.I("v_fmac_f32", sn2, acc[i + 1], vmask)
    p.I("v_add_f32", sp, sp, sp2); p.I("v_add_f32", sn, sn, sn2)
    p.I("v_mov_b32", t0, sp); p.I("v_mov_b32", t1, sn)
    p.I("v_permlane32_swap_b32", sp, t0)
    p.I("v_permlane32_swap_b32", sn, t1)
    p.I("v_add_f32", sp, sp, t0); p.I("v_add_f32", sn, sn, t1)
    p.I("v_rcp_f32", sp, sp); p.I("v_rcp_f32", sn, sn)
    for i in range(16): p.I("v_mul_f32", pacc[i], pacc[i], sp)
    for i in range(16): p.I("v_mul_f32", acc[i], acc[i], sn)
    for i in range(8): p.I("v_cvt_pk_bf16_f32", pos[i], pacc[2 * i], pacc[2 * i + 1])
    for i in range(8): p.I("v_cvt_pk_bf16_f32", neg[i], acc[2 * i], acc[2 * i + 1])

def gen_k1(cfg):
    name = "k1_kernel"
    txt = kernel_header(name)
    pre = Prog()
    p = pre
    p.I("s_cmp_ge_u32", S(2), 256)
    p.raw("    s_cbranch_scc1 K1_END")
    p.I("s_load_dwordx8", S(4, 8), S(0, 2), 0)
    p.I("s_load_dwordx8", S(12, 8), S(0, 2), 32)
    p.I("s_load_dwordx2", S(24, 2), S(0, 2), 80)
    p.I("v_lshrrev_b32", V(1), 6, V(0))
    p.I("v_readfirstlane_b32", S(3), V(1))
    p.I("v_and_b32", V(0), 63, V(0))
    p.I("s_cmp_ge_u32", S(3), 4)
    p.raw("    s_cbranch_scc1 K1_ROLE1")
    txt += render(finalize(pre))
    for role in (0, 1):
        p = Prog()
        if role == 1: p.label("K1_ROLE1")
        p.I("s_waitcnt", raw=None, mods="") if False else None
        k1_role(p, role, cfg)
        txt += render(finalize(p))
    txt += "K1_END:\n    s_endpgm\n"
    return txt, kernel_desc(name, 256)

def k1_role(p, role, cfg):
    lane = V(0)
    XR = V(8, 56)
    ACC = [V(64 + 16 * t, 16) for t in range(5)]
    BF = [[V(144 + 20 * s + 4 * t, 4) for t in range(5)] for s in range(2)]
    AFr = [V(184, 4), V(188, 4)]
    WPHI = V(192, 8)
    IDN = V(200, 8)
    vQ = [V(208), V(209), V(210)]
    vF = [V(211), V(212), V(213)]
    vAw, vAr = V(214), V(215)
    vDq, vDg, vDu = V(216), V(217), V(218)
    vNegM, vRs = V(219), V(220)
    vMask, vC2 = V(221), V(222)
    vSt = V(223)
    LT = V(224, 16)
    T2 = V(240, 16)
    t1, t2, t3, t4, t5, t6 = V(1), V(2), V(3), V(4), V(5), V(6)
    sW = S(3)
    sR, sJ = S(26), S(27)
    SX, SQKV, SG, SU, SWS, SPHI, SWD, SWO = [S(28 + 4 * i, 4) for i in range(8)]
    sT0, sT1, sT2, sT3 = S(60), S(61), S(62), S(63)
    sOffQ, sOffG = S(64), S(65)
    sLdsW = S(66)
    sL = S(67)
    sM28 = S(68, 2)
    sAF, sPQ = S(70), S(71)

    st = Stamps(cfg["stamps"], 0)
    st.stamp(p, True); st.stamp(p)
    if cfg["k1map"] == 0:
        p.I("s_and_b32", sT0, S(2), 7); p.I("s_lshr_b32", sT1, S(2), 3)
        p.I("s_and_b32", sT2, sT0, 1); p.I("s_lshl_b32", sT2, sT2, 3)
        p.I("s_and_b32", sT3, sT1, 7); p.I("s_add_u32", sR, sT2, sT3)
        p.I("s_lshr_b32", sT2, sT0, 1); p.I("s_lshl_b32", sT2, sT2, 2)
        p.I("s_lshr_b32", sT3, sT1, 3); p.I("s_add_u32", sJ, sT2, sT3)
    else:
        p.I("s_and_b32", sT0, S(2), 7); p.I("s_lshr_b32", sT1, S(2), 3)
        p.I("s_lshl_b32", sT2, sT0, 1); p.I("s_lshr_b32", sT3, sT1, 4); p.I("s_add_u32", sR, sT2, sT3)
        p.I("s_and_b32", sJ, sT1, 15)
    p.I("v_and_b32", t1, 15, lane)
    p.I("v_lshrrev_b32", t2, 4, lane)
    p.I("s_lshl_b32", sT0, sR, 7); p.I("s_lshl_b32", sT1, sW, 4); p.I("s_add_u32", sT0, sT0, sT1)
    p.I("v_add_u32", t3, sT0, t1)
    p.I("v_mul_u32_u24", t3, 896, t3)
    p.I("v_lshl_add_u32", t3, t2, 4, t3)
    p.raw("    s_waitcnt lgkmcnt(0)")
    srd(p, SX.n, 4, 2048 * 896)
    for i in range(14):
        p.I("buffer_load_dwordx4", XR.sub(4 * i, 4), t3, SX, 0, mods=f"offen offset:{64*i}")
    srd(p, SQKV.n, 6, 448 * 2688)
    srd(p, SG.n, 14, 448 * 3584)
    srd(p, SU.n, 16, 448 * 3584)
    BIG = 0x7FFF0000
    p.I("v_mul_u32_u24", t1, 0x5556, lane); p.I("v_lshrrev_b32", t1, 18, t1)
    p.I("v_mul_u32_u24", t2, 12, t1); p.I("v_sub_u32", t2, lane, t2)
    p.I("v_lshrrev_b32", t4, 2, t2)
    p.I("v_add_u32", t4, 1, t4)
    p.I("v_cmp_eq_u32", VCC, 3, t4)
    p.I("v_cndmask_b32", t4, t4, 0, VCC)
    p.I("v_mul_u32_u24", t4, 896, t4)
    p.I("v_and_b32", t2, 3, t2)
    p.I("v_lshl_add_u32", t4, t2, 4, t4)
    p.I("s_lshl_b32", sT0, sW, 2)
    p.I("v_add_u32", t1, sT0, t1)
    p.I("v_mul_u32_u24", t1, 2688, t1)
    p.I("v_add_u32", t4, t4, t1)
    p.I("s_mul_i32", sT1, sJ, 56)
    p.I("v_add_u32", t4, sT1, t4)
    p.I("v_mov_b32", t5, BIG)
    p.I("v_cmp_gt_u32", VCC, 48, lane)
    p.I("v_cndmask_b32", vDq, t5, t4, VCC)
    def gu_off(dst, lreg, cond_op, cond_val):
        p.I("v_mul_u32_u24", t1, 0x4925, lreg); p.I("v_lshrrev_b32", t1, 18, t1)
        p.I("v_mul_u32_u24", t2, 14, t1); p.I("v_sub_u32", t2, lreg, t2)
        p.I("v_add_u32", t1, sT0, t1)
        p.I("v_mul_u32_u24", t1, 3584, t1)
        p.I("v_lshl_add_u32", t1, t2, 4, t1)
        p.I("v_add_u32", t1, sT2, t1)
        p.I(cond_op, VCC, cond_val, lane)
        p.I("v_cndmask_b32", dst, t5, t1, VCC)
    p.I("s_mul_i32", sT2, sJ, 224)
    gu_off(vDg, lane, "v_cmp_gt_u32", 56)
    p.I("v_subrev_u32", t6, 8, lane)
    p.I("v_and_b32", t6, 63, t6)
    gu_off(vDu, t6, "v_cmp_lt_u32", 7)
    p.I("s_mul_i32", sLdsW, sW, 3072)
    p.I("s_mov_b32", sOffQ, 0); p.I("s_mov_b32", sOffG, 0)

    def dma_chunk(q, c):
        slot = (c % NSLOT) * SLOT
        q.I("s_add_u32", M0, sLdsW, slot)
        if not cfg.get("no_dq"): q.I("buffer_load_dwordx4", vDq, SQKV, sOffQ, mods="offen lds", tag=f"dma{c}")
        q.I("s_add_u32", M0, sLdsW, slot + 1024)
        q.I("buffer_load_dwordx4", vDg, SG, sOffG, mods="offen lds", tag=f"dma{c}")
        q.I("s_add_u32", M0, sLdsW, slot + 2048)
        q.I("buffer_load_dwordx4", vDu, SU, sOffG, mods="offen lds", tag=f"dma{c}")
        q.I("s_add_u32", sOffQ, sOffQ, 32 * 2688)
        q.I("s_add_u32", sOffG, sOffG, 32 * 3584)
    for c in range(cfg.get("npre", 4)): dma_chunk(p, c)

    srd(p, SWS.n, 24, WS_BYTES)
    srd(p, SPHI.n, 8, 16 * 1568)
    srd(p, SWD.n, 18, 1792 * 896)
    srd(p, SWO.n, 10, 448 * 896)
    WT = V(64, 16)
    p.I("v_and_b32", t1, 31, lane)
    p.I("v_lshrrev_b32", t2, 5, lane)
    p.I("v_subrev_u32", t3, 24, t1)
    p.I("v_cmp_lt_u32", VCC, 27, t1)
    p.I("v_cndmask_b32", t3, t1, t3, VCC)
    p.I("v_lshlrev_b32", t3, 1, t3)
    p.I("v_mul_u32_u24", t4, 4 * 56, t2)
    p.I("v_add_u32", t3, t3, t4)
    p.I("s_mul_i32", sT0, sJ, 1568)
    p.I("v_add_u32", t3, sT0, t3)
    p.I("v_cmp_eq_u32", VCC, 1, t2)
    p.I("v_cndmask_b32", t4, t3, t5, VCC)
    for s in range(2):
        for j in range(8):
            d0 = 16 * s + 8 * (j >> 2) + (j & 3)
            addr = t4 if d0 + 4 >= 28 else t3
            if not cfg.get("no_us"): p.I("buffer_load_ushort", WT[8 * s + j], addr, SPHI, 0, mods=f"offen offset:{d0*56}")
    W2T = V(80, 8)
    p.I("s_lshl_b32", sT0, S(2), 3); p.I("s_add_u32", sT0, sT0, sW)
    p.I("s_mul_i32", sT1, sT0, 0x1C72); p.I("s_lshr_b32", sT1, sT1, 20)
    p.I("s_mul_i32", sT2, sT1, 144); p.I("s_sub_u32", sT2, sT0, sT2)
    p.I("s_sub_u32", sT3, sT2, 112); p.I("s_lshr_b32", S(72), sT3, 1); p.I("s_mul_i32", S(72), S(72), 28)
    p.I("s_and_b32", S(73), sT2, 1); p.I("s_lshl_b32", S(74), S(73), 4); p.I("s_add_u32", S(72), S(72), S(74))
    p.I("s_lshl_b32", S(74), sT2, 4)
    p.I("s_cmp_lt_u32", sT2, 112)
    p.I("s_cselect_b32", S(72), S(74), S(72))
    p.I("s_cselect_b32", S(76), S(SWD.n), S(SWO.n))
    p.I("s_cselect_b32", S(77), S(SWD.n + 1), S(SWO.n + 1))
    p.I("s_cselect_b32", S(78), S(SWD.n + 2), S(SWO.n + 2))
    p.I("s_cselect_b32", S(73), 0, S(73))
    p.I("s_mov_b32", S(79), 0x20000)
    p.I("s_mul_i32", S(72), S(72), 896)
    p.I("s_lshl_b32", S(74), sT1, 6); p.I("s_add_u32", S(72), S(72), S(74))
    p.I("v_mul_u32_u24", t3, 4 * 896, t2)
    p.I("v_lshl_add_u32", t3, t1, 1, t3)
    p.I("v_add_u32", t3, S(72), t3)
    p.I("v_and_b32", t4, S(73), t2)
    p.I("v_cmp_eq_u32", VCC, 1, t4)
    p.I("v_cndmask_b32", t4, t3, t5, VCC)
    p.I("v_add_u32", t6, 8 * 896, t4)
    p.I("v_cndmask_b32", t6, t6, t5, VCC)
    for j in range(8):
        addr = t3 if j < 4 else t6
        if not cfg.get("no_us"): p.I("buffer_load_ushort", W2T[j], addr, S(76, 4), 0, mods=f"offen offset:{(j&3)*896}")
    sW2dst = S(75)
    p.I("s_lshl_b32", sW2dst, sT0, 10); p.I("s_add_u32", sW2dst, sW2dst, W2F_OFF)
    p.I("s_cmp_lt_u32", sT0, 14 * NKS)
    p.I("s_cselect_b32", sW2dst, sW2dst, 0x7FFF0000)
    p.I("s_mov_b32", sL, f2u(LOG2E))
    p.I("v_mov_b32", vC2, f2u(GC2))
    p.I("v_cmp_eq_u32", VCC, 0, t2)
    p.I("v_cndmask_b32", vMask, 0, 1.0, VCC)
    p.I("v_cmp_eq_u32", sM28, 28, t1)
    p.I("v_lshlrev_b32", vSt, 4, lane)
    p.I("v_lshlrev_b32", t3, 2, t2); p.I("v_sub_u32", t3, t1, t3)
    for s in range(2):
        for i in range(4):
            f0 = 16 * s + 8 * ((2 * i) >> 2) + ((2 * i) & 3)
            p.I("v_cmp_eq_u32", VCC, f0, t3)
            p.I("v_cndmask_b32", t4, 0, V(7), VCC) if False else None
            p.I("v_mov_b32", t4, 0x3F80)
            p.I("v_cndmask_b32", IDN[4 * s + i], 0, t4, VCC)
            p.I("v_cmp_eq_u32", VCC, f0 + 1, t3)
            p.I("v_mov_b32", t4, 0x3F800000)
            p.I("v_cndmask_b32", IDN[4 * s + i], IDN[4 * s + i], t4, VCC)
    p.I("v_lshrrev_b32", t3, 4, lane); p.I("v_and_b32", t3, 1, t3)
    p.I("v_lshrrev_b32", t4, 2, lane); p.I("v_and_b32", t4, 3, t4)
    p.I("v_and_b32", t6, 3, lane)
    p.I("v_mul_u32_u24", vQ[0], 6144, t2)
    p.I("v_lshl_add_u32", vQ[0], t6, 3, vQ[0])
    p.I("v_mov_b32", vF[0], vQ[0])
    p.I("v_mul_u32_u24", t6, 192, t4); p.I("v_add_u32", vQ[0], vQ[0], t6)
    p.I("v_lshl_add_u32", vQ[0], t3, 5, vQ[0])
    p.I("v_mul_u32_u24", t6, 224, t4); p.I("v_add_u32", vF[0], vF[0], t6)
    p.I("v_mul_u32_u24", t6, 1152, t3); p.I("v_add_u32", vF[0], vF[0], t6)
    p.I("v_add_u32", vF[0], 1024, vF[0])
    for b in (1, 2):
        p.I("v_add_u32", vQ[b], 49152 * b, vQ[0]); p.I("v_add_u32", vF[b], 49152 * b, vF[0])
    p.I("v_lshrrev_b32", t3, 4, lane)
    p.I("v_lshlrev_b32", vAw, 9, t3)
    p.I("v_and_b32", t4, 15, lane)
    p.I("v_lshl_add_u32", vAw, t4, 4, vAw)
    p.I("s_lshr_b32", sT0, sW, 1); p.I("s_lshl_b32", sT0, sT0, 11)
    p.I("s_and_b32", sT1, sW, 1); p.I("s_lshl_b32", sT1, sT1, 8)
    p.I("s_add_u32", sT0, sT0, sT1); p.I("s_add_u32", sT0, sT0, ABASE)
    p.I("v_add_u32", vAw, sT0, vAw)
    p.I("s_and_b32", sT0, sW, 3); p.I("s_lshl_b32", sT1, sT0, 11); p.I("s_add_u32", sT1, sT1, ABASE)
    p.I("v_add_u32", vAr, sT1, vSt)
    p.I("s_lshl_b32", sT1, sR, 2); p.I("s_add_u32", sT1, sT1, sT0)
    p.I("s_mul_i32", sAF, sT1, NKS * 1024)
    p.I("s_mul_i32", sT2, sJ, 7 * 1024); p.I("s_add_u32", sAF, sAF, sT2)
    p.I("s_lshl_b32", sPQ, sT1, 16); p.I("s_lshl_b32", sT2, sJ, 12); p.I("s_add_u32", sPQ, sPQ, sT2)
    p.I("s_add_u32", sPQ, sPQ, PQF_OFF)

    st.stamp(p)
    sm, sq, sm2, sq2 = LT[0], LT[1], LT[2], LT[3]
    ones = LT[4]
    p.I("v_mov_b32", ones, 0x3F803F80)
    for r in (sm, sq, sm2, sq2): p.I("v_mov_b32", r, 0)
    for i in range(0, 56, 2):
        p.I("v_dot2c_f32_bf16", sm, XR[i], ones)
        p.I("v_dot2c_f32_bf16", sq, XR[i], XR[i])
        p.I("v_dot2c_f32_bf16", sm2, XR[i + 1], ones)
        p.I("v_dot2c_f32_bf16", sq2, XR[i + 1], XR[i + 1])
    p.I("v_add_f32", sm, sm, sm2); p.I("v_add_f32", sq, sq, sq2)
    for sw in ("v_permlane16_swap_b32", "v_permlane32_swap_b32"):
        p.I("v_mov_b32", sm2, sm); p.I("v_mov_b32", sq2, sq)
        p.I(sw, sm, sm2); p.I(sw, sq, sq2)
        p.I("v_add_f32", sm, sm, sm2); p.I("v_add_f32", sq, sq, sq2)
    p.I("v_mul_f32", sm, f2u(1.0 / 448), sm)
    p.I("v_mul_f32", sq, f2u(1.0 / 448), sq)
    p.I("v_fma_f32", sq, Neg(sm), sm, sq)
    p.I("v_max_f32", sq, 0, sq)
    p.I("v_cvt_pk_bf16_f32", sm2, sm, sq)
    p.I("v_lshlrev_b32", vNegM, 16, sm2)
    p.I("v_and_b32", sq, 0xFFFF0000, sm2)
    p.I("v_add_f32", sq, f2u(1e-5), sq)
    p.I("v_cvt_pk_bf16_f32", sq, sq, sq)
    p.I("v_and_b32", sq, 0xFFFF0000, sq)
    p.I("v_sqrt_f32", sq, sq)
    p.I("v_cvt_pk_bf16_f32", sq, sq, sq)
    p.I("v_and_b32", sq, 0xFFFF0000, sq)
    p.I("v_rcp_f32", vRs, sq)

    def ln_chunk(q, c):
        x = XR.sub(4 * c, 4)
        for i in range(4):
            q.I("v_lshlrev_b32", LT[2 * i], 16, x[i])
            q.I("v_and_b32", LT[2 * i + 1], 0xFFFF0000, x[i])
        for i in range(8): q.I("v_sub_f32", LT[i], LT[i], vNegM)
        for i in range(4): q.I("v_cvt_pk_bf16_f32", LT[8 + i], LT[2 * i], LT[2 * i + 1])
        for i in range(4):
            q.I("v_lshlrev_b32", LT[2 * i], 16, LT[8 + i])
            q.I("v_and_b32", LT[2 * i + 1], 0xFFFF0000, LT[8 + i])
        for i in range(8): q.I("v_mul_f32", LT[i], LT[i], vRs)
        for i in range(4): q.I("v_cvt_pk_bf16_f32", x[i], LT[2 * i], LT[2 * i + 1])
        q.I("ds_write_b128", vAw, x, mods=f"offset:{(c % 3) * ASLOT}", tag=f"aw{c}")

    st.stamp(p)
    ln_chunk(p, 0); ln_chunk(p, 1)
    for i in range(8): p.I("v_lshl_or_b32", WPHI[i], WT[2 * i + 1], 16, WT[2 * i])
    for i in range(4): p.I("v_lshl_or_b32", T2[i], W2T[2 * i + 1], 16, W2T[2 * i])
    p.I("buffer_store_dwordx4", T2.sub(0, 4), vSt, SWS, sW2dst, mods="offen")

    tiles = [("q", 0), ("q", 1), ("f", 0), ("f", 1), ("f", 2)] if role == 0 else [("q", 2), ("f", 3), ("f", 4), ("f", 5), ("f", 6)]
    def frag_reads(c, ks, t):
        slot = c % NSLOT; b = slot // 2
        off = (slot % 2) * SLOT + ks * 12288
        kind, idx = tiles[t]
        base = vQ[b] if kind == "q" else vF[b]
        off += idx * (64 if kind == "q" else 32)
        dst = BF[ks][t]
        return [Inst("ds_read_b64_tr_b16", (dst.sub(2 * pp, 2), base), f"offset:{off + pp*3072}") for pp in range(2)]
    def a_read(c, ks):
        return Inst("ds_read_b128", (AFr[ks], vAr), f"offset:{(c % 3) * ASLOT + ks * 1024}")
    def mfma(c, ks, t):
        first = (c == 0 and ks == 0)
        cin = 0 if first else ACC[t]
        if role == 0 and t == 1:
            return Inst("v_mfma_f32_32x32x16_bf16", (ACC[t], AFr[ks], BF[ks][t], cin))
        return Inst("v_mfma_f32_32x32x16_bf16", (ACC[t], BF[ks][t], AFr[ks], cin))

    st.stamp(p)
    p.waittag("dma0", "dma1", "aw0", "aw1")
    p.I("s_barrier")
    st.stamp(p)
    p.L.append(a_read(0, 0))
    for t in range(5): p.L.extend(frag_reads(0, 0, t))
    for c in range(14):
        fill = Prog()
        if c + 4 < 14 and not cfg.get("no_dma"): dma_chunk(fill, c + 4)
        if c + 2 < 14 and not cfg.get("no_ln"): ln_chunk(fill, c + 2)
        main = []
        for ks in range(2):
            nc, nks = (c, 1) if ks == 0 else (c + 1, 0)
            for t in range(5):
                main.append(mfma(c, ks, t))
                if nc < 14:
                    if t == 0: main.append(a_read(nc, nks))
                    main.extend(frag_reads(nc, nks, t))
        p.L.extend(interleave(main, fill.L, len(fill.L) / 9.0))
        if c + 1 < 14:
            p.waittag(f"dma{c+2}", f"aw{c+2}")
            if not cfg.get("no_bar"): p.I("s_barrier")

    st.stamp(p)
    TMP = V(8, 56)
    for t in range(5):
        kind, idx = tiles[t]
        if kind == "f":
            o = T2.sub(4 * (t & 3), 4)
            gelu_tile(p, ACC[t], TMP.sub(0, 16), o, vC2)
            p.I("buffer_store_dwordx4", o, vSt, SWS, sAF, mods=f"offen offset:{idx*1024}" if idx < 4 else "offen") if idx < 4 else None
            if idx >= 4:
                p.I("s_add_u32", sT0, sAF, idx * 1024)
                p.I("buffer_store_dwordx4", o, vSt, SWS, sT0, mods="offen")
    POS, NEG = V(144, 8), V(152, 8)
    PACC = V(160, 16)
    softmax_tile(p, ACC[0], WPHI, PACC, TMP.sub(0, 24), POS, NEG, vMask, sL)
    if role == 1:
        for s in range(4):
            src = (POS if s < 2 else NEG).sub(4 * (s & 1), 4)
            p.I("buffer_store_dwordx4", src, vSt, SWS, sPQ, mods=f"offen offset:{s*1024}")
        p.I("s_barrier")
        p.I("s_barrier")
    else:
        VB = TMP.sub(24, 8)
        p.I("v_mov_b32", t1, 0x3F803F80)
        for i in range(8): p.I("v_cvt_pk_bf16_f32", VB[i], ACC[1][2 * i], ACC[1][2 * i + 1])
        for i in range(8): p.I("v_cndmask_b32", VB[i], VB[i], t1, sM28)
        KV = [ACC[2], ACC[3]]
        for ft, src in enumerate((POS, NEG)):
            Tt = ACC[ft]
            p.I("v_mfma_f32_32x32x16_bf16", Tt, src.sub(0, 4), IDN.sub(0, 4), 0)
            p.I("v_mfma_f32_32x32x16_bf16", Tt, src.sub(4, 4), IDN.sub(4, 4), Tt)
        for ft in range(2):
            PT = TMP.sub(32 + 8 * ft, 8)
            for i in range(8): p.I("v_cvt_pk_bf16_f32", PT[i], ACC[ft][2 * i], ACC[ft][2 * i + 1])
            p.I("v_mfma_f32_32x32x16_bf16", KV[ft], PT.sub(0, 4), VB.sub(0, 4), 0)
            p.I("v_mfma_f32_32x32x16_bf16", KV[ft], PT.sub(4, 4), VB.sub(4, 4), KV[ft])
        p.I("s_barrier")
        p.I("s_lshl_b32", sT0, sW, 13)
        p.I("v_add_u32", t2, sT0, vSt)
        for q in range(8):
            p.I("ds_write_b128", t2, KV[q >> 2].sub(4 * (q & 3), 4), mods=f"offset:{q*1024}", tag="kvw")
        p.waittag("kvw")
        p.I("s_barrier")
    st.stamp(p)
    p.I("s_lshl_b32", sT0, sW, 10)
    p.I("v_add_u32", t2, sT0, vSt)
    RD = V(64, 16)
    for r in range(4): p.I("ds_read_b128", RD.sub(4 * r, 4), t2, mods=f"offset:{r*8192}")
    for i in range(4): p.I("v_add_f32", RD[i], RD[i], RD[4 + i])
    for i in range(4): p.I("v_add_f32", RD[8 + i], RD[8 + i], RD[12 + i])
    for i in range(4): p.I("v_add_f32", RD[i], RD[i], RD[8 + i])
    p.I("s_lshl_b32", sT1, sR, 4); p.I("s_add_u32", sT1, sT1, sJ); p.I("s_lshl_b32", sT1, sT1, 13)
    p.I("s_add_u32", sT1, sT1, sT0); p.I("s_add_u32", sT1, sT1, KVP_OFF)
    p.I("buffer_store_dwordx4", RD.sub(0, 4), vSt, SWS, sT1, mods="offen")
    st.stamp(p); st.stamp(p, True)
    st.flush(p, SWS, sW, 8, t1, t3)
    p.I("s_endpgm")

def gen_k15(cfg):
    name = "k15_kernel"
    p = Prog()
    lane = V(0); sW = S(3); SWS = S(8, 4)
    p.I("s_cmp_ge_u32", S(2), 256)
    p.raw("    s_cbranch_scc1 K15_END")
    p.I("s_load_dwordx2", S(4, 2), S(0, 2), 80)
    p.I("v_lshrrev_b32", V(1), 6, V(0))
    p.I("v_readfirstlane_b32", sW, V(1))
    p.I("v_and_b32", V(0), 63, V(0))
    vSt = V(1)
    p.I("v_lshlrev_b32", vSt, 4, lane)
    sH, sTq, sT0, sT1, sT2 = S(12), S(13), S(14), S(15), S(16)
    p.I("s_and_b32", sH, S(2), 15); p.I("s_lshr_b32", sTq, S(2), 4)
    srd(p, SWS.n, 4, WS_BYTES)
    p.I("s_lshl_b32", sT0, sH, 13); p.I("s_lshl_b32", sT1, sW, 11); p.I("s_add_u32", sT0, sT0, sT1)
    p.I("s_add_u32", sT0, sT0, KVP_OFF)
    PL = V(16, 128)
    for R in range(16):
        for qq in range(2):
            p.I("buffer_load_dwordx4", PL.sub(8 * R + 4 * qq, 4), vSt, SWS, sT0, mods=f"offen offset:{qq*1024}")
        if R < 15: p.I("s_add_u32", sT0, sT0, 16 * 8192)
    PQ = V(144, 16)
    p.I("s_lshl_b32", sT1, sTq, 2); p.I("s_add_u32", sT1, sT1, sW)
    p.I("s_lshl_b32", sT0, sT1, 16); p.I("s_lshl_b32", sT2, sH, 12); p.I("s_add_u32", sT0, sT0, sT2)
    p.I("s_add_u32", sT0, sT0, PQF_OFF)
    for s in range(4): p.I("buffer_load_dwordx4", PQ.sub(4 * s, 4), vSt, SWS, sT0, mods=f"offen offset:{s*1024}")
    vM = V(2)
    p.I("v_lshrrev_b32", V(3), 5, lane)
    p.I("s_and_b32", sT0, sW, 1)
    p.I("v_and_b32", V(3), sT0, V(3))
    p.I("v_cmp_eq_u32", VCC, 0, V(3))
    p.I("v_cndmask_b32", vM, 0, 1.0, VCC)
    st = 8
    while st >= 1:
        for R in range(st):
            for i in range(8): p.I("v_add_f32", PL[8 * R + i], PL[8 * R + i], PL[8 * (R + st) + i])
        st //= 2
    for i in range(4, 8): p.I("v_mul_f32", PL[i], PL[i], vM)
    KF = V(4, 4)
    for i in range(4): p.I("v_cvt_pk_bf16_f32", KF[i], PL[2 * i], PL[2 * i + 1])
    p.I("s_lshl_b32", sT0, sW, 10)
    p.I("v_add_u32", V(3), sT0, vSt)
    p.I("ds_write_b128", V(3), KF, tag="kf")
    p.waittag("kf")
    p.I("s_barrier")
    KV = V(16, 16)
    for s in range(4): p.I("ds_read_b128", KV.sub(4 * s, 4), vSt, mods=f"offset:{s*1024}")
    N = V(32, 16)
    for s in range(4):
        p.I("v_mfma_f32_32x32x16_bf16", N, KV.sub(4 * s, 4), PQ.sub(4 * s, 4), 0 if s == 0 else N)
    T = V(48, 8)
    for i in range(8): p.I("v_cvt_pk_bf16_f32", T[i], N[2 * i], N[2 * i + 1])
    for i in range(8):
        p.I("v_lshlrev_b32", N[2 * i], 16, T[i]); p.I("v_and_b32", N[2 * i + 1], 0xFFFF0000, T[i])
    d0, d1 = V(56), V(57)
    p.I("v_mov_b32", d0, N[12]); p.I("v_mov_b32", d1, N[12])
    p.I("v_permlane32_swap_b32", d0, d1)
    p.I("v_add_f32", d1, f2u(1e-6), d1)
    p.I("v_cvt_pk_bf16_f32", d1, d1, d1)
    p.I("v_and_b32", d1, 0xFFFF0000, d1)
    p.I("v_rcp_f32", d1, d1)
    for i in range(16): p.I("v_mul_f32", N[i], N[i], d1)
    for i in range(8): p.I("v_cvt_pk_bf16_f32", T[i], N[2 * i], N[2 * i + 1])
    p.I("s_mul_i32", sT0, sT1, NKS * 1024); p.I("s_lshl_b32", sT2, sH, 11); p.I("s_add_u32", sT0, sT0, sT2)
    p.I("s_add_u32", sT0, sT0, 112 * 1024)
    for s in range(2): p.I("buffer_store_dwordx4", T.sub(4 * s, 4), vSt, SWS, sT0, mods=f"offen offset:{s*1024}")
    p.label("K15_END")
    p.I("s_endpgm")
    return kernel_header(name) + render(finalize(p)), kernel_desc(name, 160)

K2_ROW = 272
K2_LDS = 4 * 64 * K2_ROW
def gen_k2(cfg):
    name = "k2_kernel"
    p = Prog()
    lane = V(0); sW = S(3); SWS = S(12, 4); SX = S(16, 4); SO = S(20, 4)
    D = cfg["k2depth"]
    p.I("s_cmp_ge_u32", S(2), 224)
    p.raw("    s_cbranch_scc1 K2_END")
    p.I("s_load_dwordx2", S(4, 2), S(0, 2), 0)
    p.I("s_load_dwordx2", S(6, 2), S(0, 2), 64)
    p.I("s_load_dwordx2", S(8, 2), S(0, 2), 80)
    tid = V(1)
    st = Stamps(cfg["stamps"], 0x40000)
    st.stamp(p, True); st.stamp(p)
    p.I("v_mov_b32", tid, V(0))
    p.I("v_lshrrev_b32", V(2), 6, V(0))
    p.I("v_readfirstlane_b32", sW, V(2))
    p.I("v_and_b32", V(0), 63, V(0))
    sRB, sCB, sT0, sT1, sT2 = S(24), S(25), S(26), S(27), S(28)
    sA = [S(30), S(31)]; sB = [S(32), S(33)]
    p.I("s_and_b32", sT0, S(2), 7); p.I("s_lshr_b32", sT1, S(2), 3)
    p.I("s_mul_i32", sT2, sT1, 37); p.I("s_lshr_b32", sT2, sT2, 8)
    p.I("s_lshl_b32", sRB, sT0, 2); p.I("s_add_u32", sRB, sRB, sT2)
    p.I("s_mul_i32", sT2, sT2, 7); p.I("s_sub_u32", sCB, sT1, sT2)
    p.I("s_mul_i32", sT0, sW, 36 * 1024)
    p.I("s_mul_i32", sA[0], sRB, 2 * NKS * 1024); p.I("s_add_u32", sA[0], sA[0], sT0)
    p.I("s_add_u32", sA[1], sA[0], NKS * 1024)
    p.I("s_mul_i32", sB[0], sCB, 2 * NKS * 1024); p.I("s_add_u32", sB[0], sB[0], sT0); p.I("s_add_u32", sB[0], sB[0], W2F_OFF)
    p.I("s_add_u32", sB[1], sB[0], NKS * 1024)
    VO = V(4, 9)
    p.I("v_lshlrev_b32", VO[0], 4, lane)
    for m in range(1, 9): p.I("v_add_u32", VO[m], 4096 * m, VO[0])
    srd(p, SWS.n, 8, WS_BYTES)
    ACC = [[V(16 + 32 * r + 16 * c, 16) for c in range(2)] for r in range(2)]
    XV = V(80, 8)
    BUF = [V(96 + 16 * d, 16) for d in range(D)]
    def loads(k):
        b = BUF[k % D]; m, o = k // 4, (k % 4) * 1024
        L = []
        for x, so in enumerate((sA[0], sB[0], sA[1], sB[1])):
            L.append(Inst("buffer_load_dwordx4", (b.sub(4 * x, 4), VO[m], SWS, so), f"offen offset:{o}"))
        return L
    for k in range(min(D, 36)): p.L.extend(loads(k))
    srd(p, SX.n, 4, 2048 * 896); srd(p, SO.n, 6, 2048 * 896)
    vG = V(13)
    p.I("v_lshrrev_b32", V(2), 3, tid); p.I("v_and_b32", V(3), 7, tid)
    p.I("s_lshl_b32", sT0, sRB, 6)
    p.I("v_add_u32", vG, sT0, V(2)); p.I("v_mul_u32_u24", vG, 896, vG)
    p.I("v_lshl_add_u32", vG, V(3), 4, vG)
    p.I("s_lshl_b32", sT0, sCB, 7); p.I("v_add_u32", vG, sT0, vG)
    p.I("s_mov_b32", sT1, 32 * 896)
    vLr = V(14)
    p.I("v_mul_u32_u24", vLr, K2_ROW, V(2)); p.I("v_lshl_add_u32", vLr, V(3), 5, vLr)
    vLw = V(15)
    p.I("v_and_b32", V(2), 31, lane); p.I("v_lshrrev_b32", V(3), 5, lane)
    p.I("v_mul_u32_u24", vLw, K2_ROW, V(2)); p.I("v_lshl_add_u32", vLw, V(3), 4, vLw)
    p.I("s_mul_i32", sT0, sW, 64 * K2_ROW); p.I("v_add_u32", vLw, sT0, vLw)
    st.stamp(p)
    for k in range(36):
        b = BUF[k % D]
        if k in (1, 18): st.stamp(p)
        for r in range(2):
            for c in range(2):
                p.I("v_mfma_f32_32x32x16_bf16", ACC[r][c], b.sub(4 + 8 * c, 4), b.sub(8 * r, 4), 0 if k == 0 else ACC[r][c])
        if k + D < 36: p.L.extend(loads(k + D))
        if k + D == 36:
            p.I("buffer_load_dwordx4", XV.sub(0, 4), vG, SX, 0, mods="offen")
            p.I("buffer_load_dwordx4", XV.sub(4, 4), vG, SX, sT1, mods="offen")
    for r in range(2):
        for c in range(2):
            for g in range(4):
                p.I("ds_write_b128", vLw, ACC[r][c].sub(4 * g, 4), mods=f"offset:{r*32*K2_ROW + (c*32+8*g)*4}", tag="pw")
    st.stamp(p)
    p.waittag("pw")
    p.I("s_barrier")
    RD = V(96, 64)
    for pp in range(2):
        for w in range(4):
            for hh in range(2):
                p.I("ds_read_b128", RD.sub(32 * pp + 8 * w + 4 * hh, 4), vLr, mods=f"offset:{w*64*K2_ROW + pp*32*K2_ROW + hh*16}")
    for pp in range(2):
        R = RD.sub(32 * pp, 32)
        for i in range(8): p.I("v_add_f32", R[i], R[i], R[8 + i])
        for i in range(8): p.I("v_add_f32", R[16 + i], R[16 + i], R[24 + i])
        X = XV.sub(4 * pp, 4); T = V(16, 8)
        for i in range(4):
            p.I("v_lshlrev_b32", T[2 * i], 16, X[i]); p.I("v_and_b32", T[2 * i + 1], 0xFFFF0000, X[i])
        for i in range(8): p.I("v_add_f32", R[i], R[i], R[16 + i])
        for i in range(8): p.I("v_add_f32", R[i], R[i], T[i])
        if cfg.get("perturb"):
            for i in range(8): p.I("v_mul_f32", R[i], f2u(1.0 + cfg["perturb"] / 1000.0), R[i])
        O = V(24 + 4 * pp, 4)
        for i in range(4): p.I("v_cvt_pk_bf16_f32", O[i], R[2 * i], R[2 * i + 1])
        p.I("buffer_store_dwordx4", O, vG, SO, 0 if pp == 0 else sT1, mods="offen")
    st.stamp(p); st.stamp(p, True)
    st.flush(p, SWS, sW, 4, V(2), V(3))
    p.label("K2_END")
    p.I("s_endpgm")
    nv = 96 + 16 * D
    return kernel_header(name) + render(finalize(p)), kernel_desc(name, min(nv, 256))

def build(cfg):
    hdr = open("cdna_kernels/" + NAME + ".s.ref").read().split("\n")
    head = [l for l in hdr if l.startswith(";") and "@launch" not in l]
    head.append(f"; @launch kernel=k1_kernel grid=(256,1,1) block=(512,1,1) lds={K1_LDS}")
    head.append(f"; @launch kernel=k15_kernel grid=(256,1,1) block=(256,1,1) lds=4096")
    head.append(f"; @launch kernel=k2_kernel grid=(224,1,1) block=(256,1,1) lds={K2_LDS}")
    out = "\n".join(head) + '\n.amdgcn_target "amdgcn-amd-amdhsa--gfx950"\n.text\n'
    descs = ""
    for g in (gen_k1, gen_k15, gen_k2):
        t, d = g(cfg); out += t; descs += ".p2align 6\n" + d
    out += '.section .rodata,"a"\n' + descs
    return out

if __name__ == "__main__":
    cfg = dict(k1map=0, k2depth=10, stamps=0)
    for a in sys.argv[2:]:
        k, v = a.split("="); cfg[k] = int(v)
    open(sys.argv[1], "w").write(build(cfg))
```

```python
import sys, struct
from asmgen import *

NAME = "parallel_sum__linear_kernel_hedgehog__geglu_ffn__prompt"
AF_OFF  = 0x0000000
W2F_OFF = 0x0A00000
PQF_OFF = 0x0C00000
KVP_OFF = 0x1000000
WS_BYTES = 0x1400000
DBG_OFF = 0x1300000
NKS = 144
BIG = 0x7FFF0000
MF = "v_mfma_f32_32x32x16_bf16"

def f2u(x): return struct.unpack("<I", struct.pack("<f", x))[0]
LOG2E = 1.4426950408889634
GC1 = -2.0 * 0.7978845608028654 * LOG2E
GC2 = GC1 * 0.044715

class Stamps:
    def __init__(self, on, koff): self.on, self.n, self.koff = on, 0, koff
    def stamp(self, p, real=False):
        if not self.on: return
        p.I("s_memrealtime" if real else "s_memtime", S(80 + 2 * self.n, 2)); self.n += 1
        assert self.n <= 10
    def flush(self, p, SWS, sW, nwaves, vt, vt2):
        if not self.on: return
        p.I("s_mul_i32", S(100), S(2), nwaves); p.I("s_add_u32", S(100), S(100), sW); p.I("s_lshl_b32", S(100), S(100), 6)
        p.I("s_add_u32", S(100), S(100), DBG_OFF + self.koff)
        p.I("v_mov_b32", vt2, 0)
        for i in range(self.n):
            p.I("v_mov_b32", vt, S(80 + 2 * i))
            p.I("buffer_store_dword", vt, vt2, SWS, S(100), mods=f"offen offset:{4*i}")
            p.I("s_nop", 1)

def srd(p, d, base, nbytes):
    p.I("s_mov_b32", S(d), S(base))
    p.I("s_and_b32", S(d + 1), S(base + 1), 0xFFFF)
    p.I("s_mov_b32", S(d + 2), nbytes)
    p.I("s_mov_b32", S(d + 3), 0x20000)

def gelu_tile(p, acc, t, out, cC2):
    for j in range(8): p.I("v_mul_f32", t[j], acc[j], acc[j])
    for j in range(8): p.I("v_fmaak_f32", t[j], t[j], cC2, f2u(GC1))
    for j in range(8): p.I("v_mul_f32", t[j], t[j], acc[j])
    for j in range(8):
        p.I("v_exp_f32", t[j], t[j])
        p.I("v_mul_f32", acc[8 + j], acc[j], acc[8 + j])
    for j in range(8): p.I("v_add_f32", t[j], 1.0, t[j])
    for j in range(8): p.I("v_rcp_f32", t[j], t[j])
    for j in range(8): p.I("v_mul_f32", t[j], t[j], acc[8 + j])
    for j in range(4): p.I("v_cvt_pk_bf16_f32", out[j], t[2 * j], t[2 * j + 1])

def softmax_tile(p, acc, wphi, pacc, tmp, pos, neg, vmask, sL):
    qb = tmp.sub(0, 8)
    for i in range(8): p.I("v_cvt_pk_bf16_f32", qb[i], acc[2 * i], acc[2 * i + 1])
    p.I(MF, pacc, wphi.sub(0, 4), qb.sub(0, 4), 0)
    p.I(MF, pacc, wphi.sub(4, 4), qb.sub(4, 4), pacc)
    mx, mn, t0, t1 = tmp[8], tmp[9], tmp[10], tmp[11]
    P = pacc
    p.I("v_max3_f32", mx, P[0], P[1], P[2])
    p.I("v_min3_f32", mn, P[0], P[1], P[2])
    for i in range(6):
        p.I("v_max3_f32", mx, mx, P[3 + 2 * i], P[4 + 2 * i])
        p.I("v_min3_f32", mn, mn, P[3 + 2 * i], P[4 + 2 * i])
    p.I("v_max_f32", mx, mx, P[15])
    p.I("v_min_f32", mn, mn, P[15])
    p.I("v_mov_b32", t0, mx)
    p.I("v_mov_b32", t1, mn)
    p.I("v_permlane32_swap_b32", mx, t0)
    p.I("v_permlane32_swap_b32", mn, t1)
    p.I("v_max_f32", mx, mx, t0)
    p.I("v_min_f32", mn, mn, t1)
    p.I("v_mul_f32", mx, sL, mx)
    p.I("v_mul_f32", mn, sL, mn)
    for i in range(16): p.I("v_fma_f32", acc[i], Neg(P[i]), sL, mn)
    for i in range(16): p.I("v_fma_f32", P[i], P[i], sL, Neg(mx))
    for i in range(16): p.I("v_exp_f32", acc[i], acc[i])
    for i in range(16): p.I("v_exp_f32", P[i], P[i])
    sp, sn, sp2, sn2 = tmp[12], tmp[13], tmp[14], tmp[15]
    p.I("v_add_f32", sn, acc[0], acc[1]); p.I("v_add_f32", sn2, acc[2], acc[3])
    p.I("v_add_f32", sp, P[0], P[1]); p.I("v_add_f32", sp2, P[2], P[3])
    for i in range(4, 12, 2):
        p.I("v_add_f32", sn, sn, acc[i]); p.I("v_add_f32", sn2, sn2, acc[i + 1])
        p.I("v_add_f32", sp, sp, P[i]); p.I("v_add_f32", sp2, sp2, P[i + 1])
    for i in range(12, 16, 2):
        p.I("v_fmac_f32", sn, acc[i], vmask); p.I("v_fmac_f32", sn2, acc[i + 1], vmask)
        p.I("v_fmac_f32", sp, P[i], vmask); p.I("v_fmac_f32", sp2, P[i + 1], vmask)
    p.I("v_add_f32", sp, sp, sp2); p.I("v_add_f32", sn, sn, sn2)
    p.I("v_mov_b32", t0, sp); p.I("v_mov_b32", t1, sn)
    p.I("v_permlane32_swap_b32", sp, t0)
    p.I("v_permlane32_swap_b32", sn, t1)
    p.I("v_add_f32", sp, sp, t0); p.I("v_add_f32", sn, sn, t1)
    p.I("v_rcp_f32", sp, sp); p.I("v_rcp_f32", sn, sn)
    for i in range(16): p.I("v_mul_f32", P[i], P[i], sp)
    for i in range(16): p.I("v_mul_f32", acc[i], acc[i], sn)
    for i in range(8): p.I("v_cvt_pk_bf16_f32", pos[i], P[2 * i], P[2 * i + 1])
    for i in range(8): p.I("v_cvt_pk_bf16_f32", neg[i], acc[2 * i], acc[2 * i + 1])

SLOT = 24576; NSLOT = 5; ABASE = SLOT * NSLOT; ABLK = 32 * 528
FLAG_LDS = ABASE + 2 * ABLK
K1_LDS = FLAG_LDS + 64

def gen_k1(cfg):
    name = "k1_kernel"
    txt = kernel_header(name)
    p = Prog()
    p.I("s_cmp_ge_u32", S(2), 256)
    p.raw("    s_cbranch_scc1 K1_END")
    p.I("s_load_dwordx8", S(4, 8), S(0, 2), 0)
    p.I("s_load_dwordx8", S(12, 8), S(0, 2), 32)
    p.I("s_load_dwordx2", S(24, 2), S(0, 2), 80)
    p.I("v_lshrrev_b32", V(1), 6, V(0))
    p.I("v_readfirstlane_b32", S(3), V(1))
    p.I("v_and_b32", V(0), 63, V(0))
    p.I("s_cmp_ge_u32", S(3), 6)
    p.raw("    s_cbranch_scc1 K1_ROLE2")
    p.I("s_cmp_ge_u32", S(3), 4)
    p.raw("    s_cbranch_scc1 K1_ROLE1")
    txt += render(finalize(p))
    for role in (0, 1, 2):
        p = Prog()
        if role: p.label(f"K1_ROLE{role}")
        k1_role(p, role, cfg)
        txt += render(finalize(p))
    txt += "K1_END:\n    s_endpgm\n"
    return txt, kernel_desc(name, 256)

def k1_role(p, role, cfg):
    NT = 3 if role == 0 else 2
    lane = V(0)
    XR = V(8, 56)
    ACC = [[V(64 + 32 * t + 16 * i, 16) for i in range(2)] for t in range(3)]
    BF = [[V(160 + 12 * s + 4 * t, 4) for t in range(3)] for s in range(2)]
    AFr = [[V(184 + 8 * s + 4 * i, 4) for i in range(2)] for s in range(2)]
    WPHI = V(200, 8); IDN = V(208, 8)
    vQ = [V(216), V(217), V(218)]; vF = [V(219), V(220), V(221)]
    vAw, vAr = V(222), V(223)
    vDq, vDg, vDu = V(224), V(225), V(226)
    vSt = V(227)
    vR = [V(228), V(229)]; vNM = [V(230), V(231)]
    vMask, vC2 = V(232), V(233)
    LT = V(236, 16)
    t1, t2, t3, t4, t5, t6, t7 = [V(i) for i in range(1, 8)]
    sW = S(3); sR, sJ = S(26), S(27)
    SX, SQKV, SG, SU, SWS, SPHI, SWD, SWO = [S(28 + 4 * i, 4) for i in range(8)]
    sT0, sT1, sT2, sT3 = S(60), S(61), S(62), S(63)
    sOffQ, sOffG, sLdsW, sL = S(64), S(65), S(66), S(67)
    sM28 = S(68, 2)
    sAF, sPQ, sRot = S(70), S(71), S(72)
    st = Stamps(cfg["stamps"], 0)
    st.stamp(p, True); st.stamp(p)
    p.I("s_and_b32", sT0, S(2), 7); p.I("s_lshr_b32", sT1, S(2), 3)
    if cfg["k1map"] == 0:
        p.I("s_and_b32", sT2, sT0, 1); p.I("s_lshl_b32", sT2, sT2, 3)
        p.I("s_and_b32", sT3, sT1, 7); p.I("s_add_u32", sR, sT2, sT3)
        p.I("s_lshr_b32", sT2, sT0, 1); p.I("s_lshl_b32", sT2, sT2, 2)
        p.I("s_lshr_b32", sJ, sT1, 3); p.I("s_add_u32", sJ, sT2, sJ)
        p.I("s_cmp_eq_u32", sT3, 7); p.I("s_cselect_b32", sRot, 0, sT3)
    elif cfg["k1map"] == 1:
        p.I("s_lshl_b32", sT2, sT0, 1); p.I("s_lshr_b32", sT3, sT1, 4); p.I("s_add_u32", sR, sT2, sT3)
        p.I("s_and_b32", sJ, sT1, 15)
        p.I("s_mul_i32", sRot, sT3, 3)
        p.I("s_add_u32", sRot, sRot, sT0); p.I("s_cmp_ge_u32", sRot, 7); p.I("s_cselect_b32", sT2, 7, 0); p.I("s_sub_u32", sRot, sRot, sT2)
    else:
        p.I("s_and_b32", sT2, sT0, 3); p.I("s_lshl_b32", sT2, sT2, 2)
        p.I("s_and_b32", sT3, sT1, 3); p.I("s_add_u32", sR, sT2, sT3)
        p.I("s_lshr_b32", sT2, sT0, 2); p.I("s_lshl_b32", sT2, sT2, 3)
        p.I("s_lshr_b32", sJ, sT1, 2); p.I("s_add_u32", sJ, sT2, sJ)
        p.I("s_lshl_b32", sRot, sT3, 1)
    if not cfg["rot"]: p.I("s_mov_b32", sRot, 0)
    p.I("v_lshrrev_b32", t1, 3, lane)
    p.I("v_and_b32", t2, 7, lane)
    p.I("s_lshl_b32", sT0, sR, 7); p.I("s_lshl_b32", sT1, sW, 4); p.I("s_add_u32", sT0, sT0, sT1)
    p.I("v_add_u32", t3, sT0, t1)
    p.I("v_mul_u32_u24", t3, 896, t3)
    p.I("v_lshl_add_u32", t3, t2, 4, t3)
    p.I("v_add_u32", t4, 8 * 896, t3)
    p.I("s_lshl_b32", sT0, sRot, 7)
    p.raw("    s_waitcnt lgkmcnt(0)")
    srd(p, SX.n, 4, 2048 * 896)
    def xr(b, g): return XR.sub((2 * b + g) * 4, 4)
    for b in range(7):
        p.I("buffer_load_dwordx4", xr(b, 0), t3, SX, sT0, mods="offen")
        p.I("buffer_load_dwordx4", xr(b, 1), t4, SX, sT0, mods="offen")
        if b < 6:
            p.I("s_add_u32", sT0, sT0, 128); p.I("s_cmp_eq_u32", sT0, 896); p.I("s_cselect_b32", sT0, 0, sT0)
    p.I("v_mul_u32_u24", vAw, 528, t2)
    p.I("v_lshl_add_u32", vAw, t1, 4, vAw)
    p.I("s_lshr_b32", sT0, sW, 1); p.I("s_mul_i32", sT0, sT0, 8 * 528)
    p.I("s_and_b32", sT1, sW, 1); p.I("s_lshl_b32", sT1, sT1, 8)
    p.I("s_add_u32", sT0, sT0, sT1); p.I("s_add_u32", sT0, sT0, ABASE)
    p.I("v_add_u32", vAw, sT0, vAw)
    srd(p, SQKV.n, 6, 448 * 2688)
    srd(p, SG.n, 14, 448 * 3584)
    srd(p, SU.n, 16, 448 * 3584)
    p.I("v_mul_u32_u24", t1, 0x5556, lane); p.I("v_lshrrev_b32", t1, 18, t1)
    p.I("v_mul_u32_u24", t2, 12, t1); p.I("v_sub_u32", t2, lane, t2)
    p.I("v_lshrrev_b32", t4, 2, t2)
    p.I("v_add_u32", t4, 1, t4)
    p.I("v_cmp_eq_u32", VCC, 3, t4)
    p.I("v_cndmask_b32", t4, t4, 0, VCC)
    p.I("v_mul_u32_u24", t4, 896, t4)
    p.I("v_and_b32", t2, 3, t2)
    p.I("v_lshl_add_u32", t4, t2, 4, t4)
    p.I("s_lshl_b32", sT0, sW, 2)
    p.I("v_add_u32", t1, sT0, t1)
    p.I("v_mul_u32_u24", t1, 2688, t1)
    p.I("v_add_u32", t4, t4, t1)
    p.I("s_mul_i32", sT1, sJ, 56)
    p.I("v_add_u32", t4, sT1, t4)
    p.I("v_mov_b32", t5, BIG)
    p.I("v_cmp_gt_u32", VCC, 48, lane)
    p.I("v_cndmask_b32", vDq, t5, t4, VCC)
    def gu_off(dst, lreg, cond_op, cond_val):
        p.I("v_mul_u32_u24", t1, 0x4925, lreg); p.I("v_lshrrev_b32", t1, 18, t1)
        p.I("v_mul_u32_u24", t2, 14, t1); p.I("v_sub_u32", t2, lreg, t2)
        p.I("v_add_u32", t1, sT0, t1)
        p.I("v_mul_u32_u24", t1, 3584, t1)
        p.I("v_lshl_add_u32", t1, t2, 4, t1)
        p.I("v_add_u32", t1, sT2, t1)
        p.I(cond_op, VCC, cond_val, lane)
        p.I("v_cndmask_b32", dst, t5, t1, VCC)
    p.I("s_mul_i32", sT2, sJ, 224)
    gu_off(vDg, lane, "v_cmp_gt_u32", 56)
    p.I("v_subrev_u32", t6, 8, lane)
    p.I("v_and_b32", t6, 63, t6)
    gu_off(vDu, t6, "v_cmp_lt_u32", 7)
    p.I("s_mul_i32", sLdsW, sW, 3072)
    p.I("s_mul_i32", sOffQ, sRot, 64 * 2688); p.I("s_mul_i32", sOffG, sRot, 64 * 3584)

    def dma_chunk(q, c):
        slot = (c % NSLOT) * SLOT
        q.I("s_add_u32", M0, sLdsW, slot + 1024)
        q.I("buffer_load_dwordx4", vDg, SG, sOffG, mods="offen lds", tag=f"dma{c}")
        q.I("s_add_u32", M0, sLdsW, slot + 2048)
        q.I("buffer_load_dwordx4", vDu, SU, sOffG, mods="offen lds", tag=f"dma{c}")
        q.I("s_add_u32", M0, sLdsW, slot)
        q.I("buffer_load_dwordx4", vDq, SQKV, sOffQ, mods="offen lds", tag=f"dma{c}")
        q.I("s_add_u32", sOffQ, sOffQ, 32 * 2688)
        q.I("s_add_u32", sOffG, sOffG, 32 * 3584)
        if c % 2 == 1:
            q.I("s_cmp_eq_u32", sOffG, 448 * 3584)
            q.I("s_cselect_b32", sOffQ, 0, sOffQ)
            q.I("s_cselect_b32", sOffG, 0, sOffG)
    for c in range(4): dma_chunk(p, c)
    srd(p, SWS.n, 24, WS_BYTES)
    hf, n31 = t2, t1
    p.I("v_and_b32", n31, 31, lane)
    p.I("v_lshrrev_b32", hf, 5, lane)
    p.I("v_mov_b32", vC2, f2u(GC2))
    p.I("v_lshlrev_b32", vSt, 4, lane)
    p.I("v_lshrrev_b32", t3, 4, lane); p.I("v_and_b32", t3, 1, t3)
    p.I("v_lshrrev_b32", t4, 2, lane); p.I("v_and_b32", t4, 3, t4)
    p.I("v_and_b32", t6, 3, lane)
    p.I("v_mul_u32_u24", t7, 6144, hf)
    p.I("v_lshl_add_u32", t7, t6, 3, t7)
    if role != 0:
        p.I("v_mul_u32_u24", t6, 192, t4); p.I("v_add_u32", vQ[0], t7, t6)
        p.I("v_lshl_add_u32", vQ[0], t3, 5, vQ[0])
        for b in (1, 2): p.I("v_add_u32", vQ[b], 49152 * b, vQ[0])
    if role != 1:
        p.I("v_mul_u32_u24", t6, 224, t4); p.I("v_add_u32", vF[0], t7, t6)
        p.I("v_mul_u32_u24", t6, 1152, t3); p.I("v_add_u32", vF[0], vF[0], t6)
        if role == 0:
            p.I("s_lshr_b32", sT0, sW, 1); p.I("s_mul_i32", sT0, sT0, 96); p.I("s_add_u32", sT0, sT0, 1024)
            p.I("v_add_u32", vF[0], sT0, vF[0])
        else:
            p.I("v_add_u32", vF[0], 1024, vF[0])
        for b in (1, 2): p.I("v_add_u32", vF[b], 49152 * b, vF[0])
    p.I("v_mul_u32_u24", vAr, 528, hf)
    p.I("v_lshl_add_u32", vAr, n31, 4, vAr)
    p.I("s_and_b32", sT0, sW, 1); p.I("s_mul_i32", sT1, sT0, 16 * 528); p.I("s_add_u32", sT1, sT1, ABASE)
    p.I("v_add_u32", vAr, sT1, vAr)
    p.I("s_lshl_b32", sT1, sR, 2); p.I("s_lshl_b32", sT0, sT0, 1); p.I("s_add_u32", sT1, sT1, sT0)
    p.I("s_mul_i32", sAF, sT1, NKS * 1024)
    p.I("s_mul_i32", sT2, sJ, 7 * 1024); p.I("s_add_u32", sAF, sAF, sT2)
    if role == 0:
        p.I("s_lshr_b32", sT0, sW, 1); p.I("s_mul_i32", sT0, sT0, 3072); p.I("s_add_u32", sAF, sAF, sT0)
    if role == 2:
        p.I("s_add_u32", sAF, sAF, 6 * 1024)
        p.I("s_lshl_b32", sPQ, sT1, 16); p.I("s_lshl_b32", sT2, sJ, 12); p.I("s_add_u32", sPQ, sPQ, sT2)
        p.I("s_add_u32", sPQ, sPQ, PQF_OFF)
    if role == 1:
        p.I("v_mov_b32", t3, FLAG_LDS); p.I("v_mov_b32", t4, 0)
        p.I("ds_write_b32", t3, t4, tag="aw0")

    st.stamp(p)
    sm = [LT[0], LT[1]]; sq = [LT[2], LT[3]]; ones = LT[4]; tt = LT[5]
    p.I("v_mov_b32", ones, 0x3F803F80)
    for r in sm + sq: p.I("v_mov_b32", r, 0)
    for b in range(7):
        for i in range(4):
            for g in range(2):
                p.I("v_dot2c_f32_bf16", sm[g], xr(b, g)[i], ones)
                p.I("v_dot2c_f32_bf16", sq[g], xr(b, g)[i], xr(b, g)[i])
    for mod in ("quad_perm:[1,0,3,2]", "quad_perm:[2,3,0,1]", "row_half_mirror"):
        for r in sm + sq:
            p.I("v_add_f32_dpp", r, r, r, mods=mod + " row_mask:0xf bank_mask:0xf")
    for g in range(2):
        p.I("v_mul_f32", sm[g], f2u(1.0 / 448), sm[g])
        p.I("v_mul_f32", sq[g], f2u(1.0 / 448), sq[g])
    for g in range(2):
        p.I("v_fma_f32", sq[g], Neg(sm[g]), sm[g], sq[g])
        p.I("v_max_f32", sq[g], 0, sq[g])
        p.I("v_add_f32", sq[g], f2u(1e-5), sq[g])
        p.I("v_rsq_f32", vR[g], sq[g])
        p.I("v_mul_f32", vNM[g], Neg(sm[g]), vR[g]) if False else p.I("v_mul_f32_e64", vNM[g], Neg(sm[g]), vR[g])

    def ln_unit(q, b, g):
        x = xr(b, g)
        for i in range(4):
            q.I("v_lshlrev_b32", LT[2 * i], 16, x[i])
            q.I("v_and_b32", LT[2 * i + 1], 0xFFFF0000, x[i])
        for i in range(8): q.I("v_fma_f32", LT[i], LT[i], vR[g], vNM[g])
        for i in range(4): q.I("v_cvt_pk_bf16_f32", x[i], LT[2 * i], LT[2 * i + 1])
    def a_write(q, b, g):
        q.I("ds_write_b128", vAw, xr(b, g), mods=f"offset:{(b % 2) * ABLK + g * 128}", tag=f"aw{b}")
    st.stamp(p)
    ln_unit(p, 0, 0); a_write(p, 0, 0); ln_unit(p, 0, 1); a_write(p, 0, 1)
    ln_unit(p, 1, 0)

    side = {}
    if role != 0:
        WT = V(128, 16); W2T = V(144, 16)
        u1, u2, u3, u4, u5 = V(234), V(235), V(252), V(253), V(254)
        q = Prog()
        srd(q, SPHI.n, 8, 16 * 1568); srd(q, SWD.n, 18, 1792 * 896); srd(q, SWO.n, 10, 448 * 896)
        q.I("s_mov_b32", sL, f2u(LOG2E))
        q.I("v_and_b32", u1, 31, lane); q.I("v_lshrrev_b32", u2, 5, lane); q.I("v_mov_b32", u5, BIG)
        q.I("v_cmp_eq_u32", VCC, 0, u2)
        q.I("v_cndmask_b32", vMask, 0, 1.0, VCC)
        q.I("v_subrev_u32", u3, 24, u1)
        q.I("v_cmp_lt_u32", VCC, 27, u1)
        q.I("v_cndmask_b32", u3, u1, u3, VCC)
        q.I("v_lshlrev_b32", u3, 1, u3)
        q.I("v_mul_u32_u24", u4, 4 * 56, u2)
        q.I("v_add_u32", u3, u3, u4)
        q.I("s_mul_i32", sT0, sJ, 1568)
        q.I("v_add_u32", u3, sT0, u3)
        q.I("v_cmp_eq_u32", VCC, 1, u2)
        q.I("v_cndmask_b32", u4, u3, u5, VCC)
        for s in range(2):
            for j in range(8):
                d0 = 16 * s + 8 * (j >> 2) + (j & 3)
                q.I("buffer_load_ushort", WT[8 * s + j], u4 if d0 + 4 >= 28 else u3, SPHI, 0, mods=f"offen offset:{d0*56}")
        side[1] = q
        for fi in range(2):
            q = Prog()
            a0, a1, a2, a3 = S(73), S(74), S(75), S(76 + 4 * 0)
            SR = S(76, 4); sdst = S(22 + fi)
            q.I("s_lshl_b32", sT0, S(2), 2); q.I("s_add_u32", sT0, sT0, sW); q.I("s_sub_u32", sT0, sT0, 4)
            q.I("s_lshl_b32", sT0, sT0, 1); q.I("s_add_u32", sT0, sT0, fi)
            q.I("s_mul_i32", sT1, sT0, 0x1C72); q.I("s_lshr_b32", sT1, sT1, 20)
            q.I("s_mul_i32", sT2, sT1, 144); q.I("s_sub_u32", sT2, sT0, sT2)
            q.I("s_sub_u32", sT3, sT2, 112); q.I("s_lshr_b32", a0, sT3, 1); q.I("s_mul_i32", a0, a0, 28)
            q.I("s_and_b32", a1, sT2, 1); q.I("s_lshl_b32", a2, a1, 4); q.I("s_add_u32", a0, a0, a2)
            q.I("s_lshl_b32", a2, sT2, 4)
            q.I("s_cmp_lt_u32", sT2, 112)
            q.I("s_cselect_b32", a0, a2, a0)
            q.I("s_cselect_b32", S(76), S(SWD.n), S(SWO.n))
            q.I("s_cselect_b32", S(77), S(SWD.n + 1), S(SWO.n + 1))
            q.I("s_cselect_b32", S(78), S(SWD.n + 2), S(SWO.n + 2))
            q.I("s_cselect_b32", a1, 0, a1)
            q.I("s_mov_b32", S(79), 0x20000)
            q.I("s_mul_i32", a0, a0, 896)
            q.I("s_lshl_b32", a2, sT1, 6); q.I("s_add_u32", a0, a0, a2)
            q.I("v_mul_u32_u24", u3, 4 * 896, u2)
            q.I("v_lshl_add_u32", u3, u1, 1, u3)
            q.I("v_add_u32", u3, a0, u3)
            q.I("v_and_b32", u4, a1, u2)
            q.I("v_cmp_eq_u32", VCC, 1, u4)
            q.I("v_add_u32", u4, 8 * 896, u3)
            q.I("v_cndmask_b32", u4, u4, u5, VCC)
            for j in range(8):
                q.I("buffer_load_ushort", W2T[8 * fi + j], u3 if j < 4 else u4, SR, 0, mods=f"offen offset:{(j&3)*896}")
            q.I("s_lshl_b32", sdst, sT0, 10); q.I("s_add_u32", sdst, sdst, W2F_OFF)
            q.I("s_cmp_lt_u32", sT0, 14 * NKS)
            q.I("s_cselect_b32", sdst, sdst, BIG)
            side[2 + fi] = q
        q = Prog()
        for i in range(8): q.I("v_lshl_or_b32", WPHI[i], WT[2 * i + 1], 16, WT[2 * i])
        for fi in range(2):
            for i in range(4): q.I("v_lshl_or_b32", WT[4 * fi + i], W2T[8 * fi + 2 * i + 1], 16, W2T[8 * fi + 2 * i])
            q.I("buffer_store_dwordx4", WT.sub(4 * fi, 4), vSt, SWS, S(22 + fi), mods="offen")
        side[12] = q
        if role == 1:
            q = Prog()
            q.I("v_cmp_eq_u32", sM28, 28, u1)
            q.I("v_lshlrev_b32", u3, 2, u2); q.I("v_sub_u32", u3, u1, u3)
            q.I("v_mov_b32", u4, 0x3F80); q.I("v_mov_b32", u5, 0x3F800000)
            for s in range(2):
                for i in range(4):
                    f0 = 16 * s + 8 * ((2 * i) >> 2) + ((2 * i) & 3)
                    q.I("v_cmp_eq_u32", VCC, f0, u3)
                    q.I("v_cndmask_b32", IDN[4 * s + i], 0, u4, VCC)
                    q.I("v_cmp_eq_u32", VCC, f0 + 1, u3)
                    q.I("v_cndmask_b32", IDN[4 * s + i], IDN[4 * s + i], u5, VCC)
            side[13] = q

    tiles = [[("f", 0), ("f", 1), ("f", 2)], [("q", 0), ("q", 1)], [("q", 2), ("f", 6)]][role]
    def frag_reads(c, ks, t):
        slot = c % NSLOT; b = slot // 2
        off = (slot % 2) * SLOT + ks * 12288
        kind, idx = tiles[t]
        base = vQ[b] if kind == "q" else vF[b]
        off += idx * (64 if kind == "q" else 32)
        dst = BF[ks][t]
        return [Inst("ds_read_b64_tr_b16", (dst.sub(2 * pp, 2), base), f"offset:{off + pp*3072}") for pp in range(2)]
    def a_read(c, ks, i):
        b = c >> 1; k4 = 2 * (c & 1) + ks
        return Inst("ds_read_b128", (AFr[ks][i], vAr), f"offset:{(b % 2) * ABLK + (i * 4 + k4) * 2 * 528}")
    def mfma(c, ks, t, i):
        cin = 0 if (c == 0 and ks == 0) else ACC[t][i]
        if role == 1 and t == 1:
            return Inst(MF, (ACC[t][i], AFr[ks][i], BF[ks][t], cin))
        return Inst(MF, (ACC[t][i], BF[ks][t], AFr[ks][i], cin))
    def reads(c, ks):
        L = [a_read(c, ks, 0)] + frag_reads(c, ks, 0) + [a_read(c, ks, 1)]
        for t in range(1, NT): L += frag_reads(c, ks, t)
        return L

    st.stamp(p)
    p.waittag("dma0", "dma1", "aw0")
    p.I("s_barrier")
    st.stamp(p)
    p.L.extend(reads(0, 0))
    for c in range(14):
        fill = Prog()
        if c + 4 < 14: dma_chunk(fill, c + 4)
        if c % 2 == 0:
            b = c // 2 + 1
            if b < 7:
                a_write(fill, b, 0); ln_unit(fill, b, 1); a_write(fill, b, 1)
        else:
            b = (c + 3) // 2
            if b < 7: ln_unit(fill, b, 0)
        if c in side: fill.extend(side[c])
        main = []
        nm = 2 * NT
        for ks in range(2):
            nc, nks = (c, 1) if ks == 0 else (c + 1, 0)
            rd = reads(nc, nks) if nc < 14 else []
            ms = [mfma(c, ks, t, i) for t in range(NT) for i in range(2)]
            per = (len(rd) + nm - 2) // (nm - 1) if rd else 0
            for m in ms:
                main.append(m)
                main.extend(rd[:per]); rd = rd[per:]
            main.extend(rd)
        p.L.extend(interleave(main, fill.L, len(fill.L) / (2.0 * nm - 1.5)))
        if c + 1 < 14:
            p.waittag(f"dma{c+2}", f"aw{(c+2)//2}")
            p.I("s_barrier")

    st.stamp(p)
    TMP = V(8, 56)
    OUT = V(160, 40)
    k = 0
    def ffn(t, i, idx):
        nonlocal k
        o = OUT.sub(4 * (k % 6), 4); tm = TMP.sub(8 * (k % 2), 8); k += 1
        gelu_tile(p, ACC[t][i], tm, o, vC2)
        if i == 0:
            p.I("buffer_store_dwordx4", o, vSt, SWS, sAF, mods=f"offen offset:{idx*1024}")
        else:
            p.I("buffer_store_dwordx4", o, vSt, SWS, sT3, mods=f"offen offset:{idx*1024}")
    p.I("s_add_u32", sT3, sAF, NKS * 1024)
    if role == 0:
        for t in range(3):
            for i in range(2): ffn(t, i, t)
    elif role == 2:
        PACC = V(128, 16)
        for i in range(2):
            POS, NEG = V(144 + 0, 8), V(152, 8)
            if i == 1: POS, NEG = TMP.sub(32, 8), TMP.sub(40, 8)
            softmax_tile(p, ACC[0][i], WPHI, PACC, TMP.sub(16, 16), POS, NEG, vMask, sL)
            if i == 1: p.I("s_add_u32", sPQ, sPQ, 1 << 16)
            for s in range(4):
                p.I("buffer_store_dwordx4", (POS if s < 2 else NEG).sub(4 * (s & 1), 4), vSt, SWS, sPQ, mods=f"offen offset:{s*1024}")
        for i in range(2): ffn(1, i, 0)
    else:
        PACC = V(128, 16)
        KV = [V(160, 16), V(176, 16)]
        POS, NEG = V(144, 8), V(152, 8)
        VB = TMP.sub(32, 8); PT = TMP.sub(40, 16)
        p.I("v_mov_b32", t1, 0x3F803F80)
        for i in range(2):
            for r in range(8): p.I("v_cvt_pk_bf16_f32", VB[r], ACC[1][i][2 * r], ACC[1][i][2 * r + 1])
            for r in range(8): p.I("v_cndmask_b32", VB[r], VB[r], t1, sM28)
            softmax_tile(p, ACC[0][i], WPHI, PACC, TMP.sub(16, 16), POS, NEG, vMask, sL)
            Tt = [ACC[0][i], ACC[1][i]]
            for ft, src in enumerate((POS, NEG)):
                p.I(MF, Tt[ft], src.sub(0, 4), IDN.sub(0, 4), 0)
                p.I(MF, Tt[ft], src.sub(4, 4), IDN.sub(4, 4), Tt[ft])
            for ft in range(2):
                for r in range(8): p.I("v_cvt_pk_bf16_f32", PT[8 * ft + r], Tt[ft][2 * r], Tt[ft][2 * r + 1])
                p.I(MF, KV[ft], PT.sub(8 * ft, 4), VB.sub(0, 4), 0 if i == 0 else KV[ft])
                p.I(MF, KV[ft], PT.sub(8 * ft + 4, 4), VB.sub(4, 4), KV[ft])
        KOFF = (12 % NSLOT) * SLOT
        p.I("v_add_u32", t2, KOFF, vSt)
        p.I("v_mov_b32", t3, FLAG_LDS)
        p.I("s_cmp_eq_u32", sW, 4)
        p.raw("    s_nop 15\n    s_cbranch_scc1 K1_KVSUM")
        for q in range(8):
            p.I("ds_write_b128", t2, KV[q >> 2].sub(4 * (q & 3), 4), mods=f"offset:{q*1024}", tag="kvw")
        p.waittag("kvw")
        p.I("v_mov_b32", t4, 1)
        p.I("ds_write_b32", t3, t4)
        st2 = None
        p.raw("    s_branch K1_KVDONE")
        p.label("K1_KVSUM")
        p.raw("    s_mov_b32 s61, 0\nK1_KVSPIN:\n    ds_read_b32 v4, v3\n    s_add_u32 s61, s61, 1\n    s_waitcnt lgkmcnt(0)\n    s_nop 1\n    v_readfirstlane_b32 s60, v4\n    s_lshr_b32 s62, s61, 20\n    s_nop 3\n    s_or_b32 s60, s60, s62\n    s_cmp_eq_u32 s60, 0\n    s_cbranch_scc1 K1_KVSPIN")
        RD = V(64, 32)
        for q in range(8): p.I("ds_read_b128", RD.sub(4 * q, 4), t2, mods=f"offset:{q*1024}")
        p.I("s_lshl_b32", sT1, sR, 4); p.I("s_add_u32", sT1, sT1, sJ); p.I("s_lshl_b32", sT1, sT1, 13)
        p.I("s_add_u32", sT1, sT1, KVP_OFF); p.I("s_add_u32", sT2, sT1, 4096)
        for q in range(8):
            for r in range(4): p.I("v_add_f32", RD[4 * q + r], RD[4 * q + r], KV[q >> 2][4 * (q & 3) + r])
            p.I("buffer_store_dwordx4", RD.sub(4 * q, 4), vSt, SWS, sT1 if q < 4 else sT2, mods=f"offen offset:{(q&3)*1024}")
        p.label("K1_KVDONE")
        p.raw("    s_waitcnt lgkmcnt(0)")
    st.stamp(p); st.stamp(p, True)
    st.flush(p, SWS, sW, 8, t1, t3)
    p.I("s_endpgm")

K2_ROW = 272
K2_LDS = 4 * 64 * K2_ROW
def gen_k2(cfg):
    name = "k2_kernel"
    txt = kernel_header(name)
    p = Prog()
    p.I("s_cmp_ge_u32", S(2), 256)
    p.raw("    s_cbranch_scc1 K2_END")
    p.I("s_load_dwordx2", S(4, 2), S(0, 2), 0)
    p.I("s_load_dwordx4", S(8, 4), S(0, 2), 64)
    p.I("s_load_dwordx2", S(6, 2), S(0, 2), 80)
    p.I("v_mov_b32", V(1), V(0))
    p.I("v_lshrrev_b32", V(2), 6, V(0))
    p.I("v_readfirstlane_b32", S(3), V(2))
    p.I("v_and_b32", V(0), 63, V(0))
    p.I("s_cmp_lt_u32", S(2), 32)
    p.raw("    s_cbranch_scc1 K2_ATT")
    txt += render(finalize(p))
    p = Prog(); k2_gemm(p, cfg); txt += render(finalize(p))
    p = Prog(); p.label("K2_ATT"); k2_att(p, cfg); txt += render(finalize(p))
    txt += "K2_END:\n    s_endpgm\n"
    return txt, kernel_desc(name, 256)

def k2_att(p, cfg):
    lane = V(0); tid = V(1); sW = S(3); SWS = S(12, 4); SD = S(16, 4)
    st = Stamps(cfg["stamps"], 0x40000)
    st.stamp(p, True); st.stamp(p)
    vSt = V(2)
    p.I("v_lshlrev_b32", vSt, 4, lane)
    sH, sHalf, sT0, sT1, sT2, sPQ, sO = S(24), S(25), S(26), S(27), S(28), S(29), S(30)
    p.I("s_lshr_b32", sH, S(2), 1); p.I("s_and_b32", sHalf, S(2), 1)
    p.raw("    s_waitcnt lgkmcnt(0)")
    srd(p, SWS.n, 6, WS_BYTES); srd(p, SD.n, 10, 256)
    p.I("s_lshl_b32", sT0, sH, 13); p.I("s_lshl_b32", sT1, sW, 11); p.I("s_add_u32", sT0, sT0, sT1)
    p.I("s_add_u32", sT0, sT0, KVP_OFF)
    PL = V(16, 128)
    for R in range(16):
        for qq in range(2):
            p.I("buffer_load_dwordx4", PL.sub(8 * R + 4 * qq, 4), vSt, SWS, sT0, mods=f"offen offset:{qq*1024}")
        if R < 15: p.I("s_add_u32", sT0, sT0, 16 * 8192)
    p.I("s_lshl_b32", sT1, sHalf, 5); p.I("s_lshl_b32", sT2, sW, 3); p.I("s_add_u32", sT1, sT1, sT2)
    p.I("s_lshl_b32", sPQ, sT1, 16); p.I("s_lshl_b32", sT2, sH, 12); p.I("s_add_u32", sPQ, sPQ, sT2); p.I("s_add_u32", sPQ, sPQ, PQF_OFF)
    p.I("s_mul_i32", sO, sT1, NKS * 1024); p.I("s_lshl_b32", sT2, sH, 11); p.I("s_add_u32", sO, sO, sT2); p.I("s_add_u32", sO, sO, 112 * 1024)
    PQ = [V(144 + 16 * u, 16) for u in range(6)] + [V(112, 16), V(128, 16)]
    def pq_load(u):
        for s in range(4): p.I("buffer_load_dwordx4", PQ[u].sub(4 * s, 4), vSt, SWS, sPQ, mods=f"offen offset:{s*1024}")
        p.I("s_add_u32", sPQ, sPQ, 1 << 16)
    for u in range(6): pq_load(u)
    vM = V(3)
    p.I("v_lshrrev_b32", V(4), 5, lane)
    p.I("s_and_b32", sT0, sW, 1)
    p.I("v_and_b32", V(4), sT0, V(4))
    p.I("v_cmp_eq_u32", VCC, 0, V(4))
    p.I("v_cndmask_b32", vM, 0, 1.0, VCC)
    st.stamp(p)
    for R in range(1, 16):
        for i in range(8): p.I("v_add_f32", PL[8 * (R & 1) + i], PL[8 * (R & 1) + i], PL[8 * R + i]) if R >= 2 else None
    for i in range(8): p.I("v_add_f32", PL[i], PL[i], PL[8 + i])
    for u in range(6, 8): pq_load(u)
    for i in range(4, 8): p.I("v_mul_f32", PL[i], PL[i], vM)
    KF = V(8, 4)
    for i in range(4): p.I("v_cvt_pk_bf16_f32", KF[i], PL[2 * i], PL[2 * i + 1])
    p.I("s_lshl_b32", sT0, sW, 10)
    p.I("v_add_u32", V(4), sT0, vSt)
    p.I("ds_write_b128", V(4), KF, tag="kf")
    p.waittag("kf")
    p.I("s_barrier")
    st.stamp(p)
    KV = V(16, 16)
    for s in range(4): p.I("ds_read_b128", KV.sub(4 * s, 4), vSt, mods=f"offset:{s*1024}")
    NN = [V(32, 16), V(48, 16)]; TT = [V(64, 8), V(72, 8)]
    def mm(u):
        for s in range(4): p.I(MF, NN[u & 1], KV.sub(4 * s, 4), PQ[u].sub(4 * s, 4), 0 if s == 0 else NN[u & 1])
    mm(0)
    for u in range(8):
        if u + 1 < 8: mm(u + 1)
        N = NN[u & 1]; T = TT[u & 1]
        d0, d1 = V(80), V(81)
        p.I("v_mov_b32", d0, N[12]); p.I("v_mov_b32", d1, N[12])
        p.I("v_permlane32_swap_b32", d0, d1)
        p.I("v_add_f32", d1, f2u(1e-6), d1)
        p.I("v_rcp_f32", d1, d1)
        for i in range(16): p.I("v_mul_f32", N[i], N[i], d1)
        for i in range(8): p.I("v_cvt_pk_bf16_f32", T[i], N[2 * i], N[2 * i + 1])
        for s in range(2): p.I("buffer_store_dwordx4", T.sub(4 * s, 4), vSt, SWS, sO, mods=f"offen offset:{s*1024} sc1", tag="ost")
        p.I("s_add_u32", sO, sO, NKS * 1024)
    p.waittag("ost")
    p.I("s_barrier")
    st.stamp(p)
    p.I("s_cmp_lg_u32", sW, 0)
    p.raw("    s_cbranch_scc1 K2_ATT_DONE")
    p.I("v_mov_b32", V(4), 1)
    p.I("s_lshl_b32", sT0, sHalf, 7)
    p.I("v_mov_b32", V(5), BIG)
    p.I("v_cmp_eq_u32", VCC, 0, lane)
    p.I("v_cndmask_b32", V(5), V(5), 0, VCC)
    p.I("buffer_atomic_add", V(4), V(5), SD, sT0, mods="offen sc1")
    p.label("K2_ATT_DONE")
    st.stamp(p); st.stamp(p); st.stamp(p, True)
    st.flush(p, SWS, sW, 4, V(4), V(5))
    p.I("s_endpgm")

def k2_gemm(p, cfg):
    lane = V(0); tid = V(1); sW = S(3); SWS = S(12, 4); SX = S(16, 4); SO = S(20, 4); SD = S(36, 4)
    D = cfg["k2depth"]
    st = Stamps(cfg["stamps"], 0x40000)
    st.stamp(p, True); st.stamp(p)
    sRB, sCB, sT0, sT1, sT2 = S(24), S(25), S(26), S(27), S(28)
    sA = [S(30), S(31)]; sB = [S(32), S(33)]
    sAo = [S(40), S(41)]; sBo = [S(42), S(43)]
    sFlag = S(44)
    p.I("s_sub_u32", sT2, S(2), 32)
    p.I("s_and_b32", sT0, sT2, 7); p.I("s_lshr_b32", sT1, sT2, 3)
    p.I("s_mul_i32", sT2, sT1, 37); p.I("s_lshr_b32", sT2, sT2, 8)
    p.I("s_lshl_b32", sRB, sT0, 2); p.I("s_add_u32", sRB, sRB, sT2)
    p.I("s_mul_i32", S(45), sT2, 7); p.I("s_sub_u32", sCB, sT1, S(45))
    sRot = S(46)
    p.I("s_lshl_b32", sRot, sT2, 1); p.I("s_add_u32", sRot, sRot, sCB)
    p.I("s_cmp_ge_u32", sRot, 7); p.I("s_cselect_b32", sT0, 7, 0); p.I("s_sub_u32", sRot, sRot, sT0)
    if not cfg["rot2"]: p.I("s_mov_b32", sRot, 0)
    p.I("s_mul_i32", sT0, sW, 28 * 1024)
    p.I("s_mul_i32", sT1, sRB, 2 * NKS * 1024); p.I("s_add_u32", sA[0], sT1, sT0)
    p.I("s_add_u32", sA[1], sA[0], NKS * 1024)
    p.I("s_mul_i32", sT2, sCB, 2 * NKS * 1024); p.I("s_add_u32", sT2, sT2, W2F_OFF); p.I("s_add_u32", sB[0], sT2, sT0)
    p.I("s_add_u32", sB[1], sB[0], NKS * 1024)
    p.I("s_lshl_b32", sT0, sW, 13); p.I("s_add_u32", sT0, sT0, 112 * 1024)
    p.I("s_add_u32", sAo[0], sT1, sT0); p.I("s_add_u32", sAo[1], sAo[0], NKS * 1024)
    p.I("s_add_u32", sBo[0], sT2, sT0); p.I("s_add_u32", sBo[1], sBo[0], NKS * 1024)
    VO = V(4, 9)
    p.I("v_lshlrev_b32", VO[7], 4, lane)
    p.I("v_add_u32", VO[8], 4096, VO[7])
    p.I("s_lshl_b32", sT0, sRot, 12)
    for m in range(7):
        p.I("v_add_u32", VO[m], sT0, VO[7])
        if m < 6:
            p.I("s_add_u32", sT0, sT0, 4096); p.I("s_cmp_eq_u32", sT0, 7 * 4096); p.I("s_cselect_b32", sT0, 0, sT0)
    p.raw("    s_waitcnt lgkmcnt(0)")
    srd(p, SWS.n, 6, WS_BYTES)
    ACC = [[V(16 + 32 * r + 16 * c, 16) for c in range(2)] for r in range(2)]
    XV = V(80, 8)
    vP = V(88); vZ = V(89)
    BUF = [V(96 + 16 * d, 16) for d in range(D)]
    def loads(k):
        b = BUF[k % D]; m, o = k // 4, (k % 4) * 1024
        L = []
        srcs = (sA[0], sB[0], sA[1], sB[1]) if k < 28 else (sAo[0], sBo[0], sAo[1], sBo[1])
        for x, so in enumerate(srcs):
            sc = " sc1" if (k >= 28 and x in (0, 2)) else ""
            L.append(Inst("buffer_load_dwordx4", (b.sub(4 * x, 4), VO[m], SWS, so), f"offen offset:{o}{sc}"))
        return L
    for k in range(D): p.L.extend(loads(k))
    srd(p, SX.n, 4, 2048 * 896); srd(p, SO.n, 8, 2048 * 896); srd(p, SD.n, 10, 256)
    vG = V(13)
    p.I("v_lshrrev_b32", V(2), 3, tid); p.I("v_and_b32", V(3), 7, tid)
    p.I("s_lshl_b32", sT0, sRB, 6)
    p.I("v_add_u32", vG, sT0, V(2)); p.I("v_mul_u32_u24", vG, 896, vG)
    p.I("v_lshl_add_u32", vG, V(3), 4, vG)
    p.I("s_lshl_b32", sT0, sCB, 7); p.I("v_add_u32", vG, sT0, vG)
    p.I("s_mov_b32", sT1, 32 * 896)
    vLr = V(14)
    p.I("v_mul_u32_u24", vLr, K2_ROW, V(2)); p.I("v_lshl_add_u32", vLr, V(3), 5, vLr)
    vLw = V(15)
    p.I("v_and_b32", V(2), 31, lane); p.I("v_lshrrev_b32", V(3), 5, lane)
    p.I("v_mul_u32_u24", vLw, K2_ROW, V(2)); p.I("v_lshl_add_u32", vLw, V(3), 4, vLw)
    p.I("s_mul_i32", sT0, sW, 64 * K2_ROW); p.I("v_add_u32", vLw, sT0, vLw)
    p.I("s_lshr_b32", sFlag, sRB, 4); p.I("s_lshl_b32", sFlag, sFlag, 7)
    p.I("v_mov_b32", vZ, 0)
    st.stamp(p)
    kpoll = 28 - D - cfg["pollahead"]
    for k in range(36):
        b = BUF[k % D]
        if k == 1: st.stamp(p)
        for r in range(2):
            for c in range(2):
                p.I(MF, ACC[r][c], b.sub(4 + 8 * c, 4), b.sub(8 * r, 4), 0 if k == 0 else ACC[r][c])
        if k == kpoll:
            p.I("buffer_load_dword", vP, vZ, SD, sFlag, mods="offen sc1")
        if k + D == 28:
            st.stamp(p)
            p.I("v_readfirstlane_b32", sT0, vP)
            p.I("s_cmp_ge_u32", sT0, 16)
            p.raw("    s_cbranch_scc1 K2_OK\n    s_mov_b32 s47, 0\nK2_SPIN:\n    s_sleep 2\n    buffer_load_dword v88, v89, s[36:39], s44 offen sc1\n    s_add_u32 s47, s47, 1\n    s_waitcnt vmcnt(0)\n    v_readfirstlane_b32 s26, v88\n    s_lshr_b32 s48, s47, 14\n    s_nop 3\n    s_or_b32 s26, s26, s48\n    s_cmp_lt_u32 s26, 16\n    s_cbranch_scc1 K2_SPIN\nK2_OK:")
            st.stamp(p)
        if k + D < 36: p.L.extend(loads(k + D))
        if k + D == 36:
            p.I("buffer_load_dwordx4", XV.sub(0, 4), vG, SX, 0, mods="offen")
            p.I("buffer_load_dwordx4", XV.sub(4, 4), vG, SX, sT1, mods="offen")
    for r in range(2):
        for c in range(2):
            for g in range(4):
                p.I("ds_write_b128", vLw, ACC[r][c].sub(4 * g, 4), mods=f"offset:{r*32*K2_ROW + (c*32+8*g)*4}", tag="pw")
    p.waittag("pw")
    p.I("s_barrier")
    RD = V(96, 64)
    for pp in range(2):
        for w in range(4):
            for hh in range(2):
                p.I("ds_read_b128", RD.sub(32 * pp + 8 * w + 4 * hh, 4), vLr, mods=f"offset:{w*64*K2_ROW + pp*32*K2_ROW + hh*16}")
    for pp in range(2):
        R = RD.sub(32 * pp, 32)
        for i in range(8): p.I("v_add_f32", R[i], R[i], R[8 + i])
        for i in range(8): p.I("v_add_f32", R[16 + i], R[16 + i], R[24 + i])
        X = XV.sub(4 * pp, 4); T = V(16, 8)
        for i in range(4):
            p.I("v_lshlrev_b32", T[2 * i], 16, X[i]); p.I("v_and_b32", T[2 * i + 1], 0xFFFF0000, X[i])
        for i in range(8): p.I("v_add_f32", R[i], R[i], R[16 + i])
        for i in range(8): p.I("v_add_f32", R[i], R[i], T[i])
        O = V(24 + 4 * pp, 4)
        for i in range(4): p.I("v_cvt_pk_bf16_f32", O[i], R[2 * i], R[2 * i + 1])
        p.I("buffer_store_dwordx4", O, vG, SO, 0 if pp == 0 else sT1, mods="offen")
    st.stamp(p); st.stamp(p, True)
    st.flush(p, SWS, sW, 4, V(2), V(3))
    p.I("s_endpgm")

def build(cfg):
    hdr = open("cdna_kernels/" + NAME + ".s.ref").read().split("\n")
    head = [l for l in hdr if l.startswith(";") and "@launch" not in l]
    head.append(f"; @launch kernel=k1_kernel grid=(256,1,1) block=(512,1,1) lds={K1_LDS}")
    head.append(f"; @launch kernel=k2_kernel grid=(256,1,1) block=(256,1,1) lds={K2_LDS}")
    out = "\n".join(head) + '\n.amdgcn_target "amdgcn-amd-amdhsa--gfx950"\n.text\n'
    descs = ""
    for g in (gen_k1, gen_k2):
        t, d = g(cfg); out += t; descs += ".p2align 6\n" + d
    out += '.section .rodata,"a"\n' + descs
    return out

if __name__ == "__main__":
    cfg = dict(k1map=0, k2depth=10, stamps=0, rot=1, rot2=1, pollahead=3)
    for a in sys.argv[2:]:
        k, v = a.split("="); cfg[k] = int(v)
    open(sys.argv[1], "w").write(build(cfg))
```

```python
import sys, struct
from asmgen import *
from gen2 import Stamps, srd, f2u, LOG2E, GC1, GC2, gelu_tile, NAME, MF, BIG, NKS, AF_OFF, W2F_OFF, WS_BYTES, DBG_OFF
QF_OFF = 0x0C00000
FLG_OFF = 0x1100000
KVA_OFF = 0x1000000

def split(L, n):
    k = (len(L) + n - 1) // n
    return [L[i * k:(i + 1) * k] for i in range(n)]

def softmax_core(p, P, E, tmp, pos, neg, vmask, sL):
    mx, mn, t0, t1, sp, sn, sp2, sn2 = [tmp[i] for i in range(8)]
    p.I("v_max3_f32", mx, P[0], P[1], P[2])
    p.I("v_min3_f32", mn, P[0], P[1], P[2])
    for i in range(6):
        p.I("v_max3_f32", mx, mx, P[3 + 2 * i], P[4 + 2 * i])
        p.I("v_min3_f32", mn, mn, P[3 + 2 * i], P[4 + 2 * i])
    p.I("v_max_f32", mx, mx, P[15])
    p.I("v_min_f32", mn, mn, P[15])
    p.I("v_mov_b32", t0, mx)
    p.I("v_mov_b32", t1, mn)
    p.I("v_permlane32_swap_b32", mx, t0)
    p.I("v_permlane32_swap_b32", mn, t1)
    p.I("v_max_f32", mx, mx, t0)
    p.I("v_min_f32", mn, mn, t1)
    p.I("v_mul_f32", mx, sL, mx)
    p.I("v_mul_f32", mn, sL, mn)
    for i in range(16): p.I("v_fma_f32", E[i], Neg(P[i]), sL, mn)
    for i in range(16): p.I("v_fma_f32", P[i], P[i], sL, Neg(mx))
    for i in range(16): p.I("v_exp_f32", E[i], E[i])
    for i in range(16): p.I("v_exp_f32", P[i], P[i])
    p.I("v_add_f32", sn, E[0], E[1]); p.I("v_add_f32", sn2, E[2], E[3])
    p.I("v_add_f32", sp, P[0], P[1]); p.I("v_add_f32", sp2, P[2], P[3])
    for i in range(4, 12, 2):
        p.I("v_add_f32", sn, sn, E[i]); p.I("v_add_f32", sn2, sn2, E[i + 1])
        p.I("v_add_f32", sp, sp, P[i]); p.I("v_add_f32", sp2, sp2, P[i + 1])
    for i in range(12, 16, 2):
        p.I("v_fmac_f32", sn, E[i], vmask); p.I("v_fmac_f32", sn2, E[i + 1], vmask)
        p.I("v_fmac_f32", sp, P[i], vmask); p.I("v_fmac_f32", sp2, P[i + 1], vmask)
    p.I("v_add_f32", sp, sp, sp2); p.I("v_add_f32", sn, sn, sn2)
    p.I("v_mov_b32", t0, sp); p.I("v_mov_b32", t1, sn)
    p.I("v_permlane32_swap_b32", sp, t0)
    p.I("v_permlane32_swap_b32", sn, t1)
    p.I("v_add_f32", sp, sp, t0); p.I("v_add_f32", sn, sn, t1)
    p.I("v_rcp_f32", sp, sp); p.I("v_rcp_f32", sn, sn)
    for i in range(16): p.I("v_mul_f32", P[i], P[i], sp)
    for i in range(16): p.I("v_mul_f32", E[i], E[i], sn)
    for i in range(8): p.I("v_cvt_pk_bf16_f32", pos[i], P[2 * i], P[2 * i + 1])
    for i in range(8): p.I("v_cvt_pk_bf16_f32", neg[i], E[2 * i], E[2 * i + 1])

def wphi_gather(q, WT, SPHI, sHead, sT, lane, u1, u2, u3, u4, u5):
    q.I("v_and_b32", u1, 31, lane); q.I("v_lshrrev_b32", u2, 5, lane); q.I("v_mov_b32", u5, BIG)
    q.I("v_subrev_u32", u3, 24, u1)
    q.I("v_cmp_lt_u32", VCC, 27, u1)
    q.I("v_cndmask_b32", u3, u1, u3, VCC)
    q.I("v_lshlrev_b32", u3, 1, u3)
    q.I("v_mul_u32_u24", u4, 4 * 56, u2)
    q.I("v_add_u32", u3, u3, u4)
    q.I("s_mul_i32", sT, sHead, 1568)
    q.I("v_add_u32", u3, sT, u3)
    q.I("v_cmp_eq_u32", VCC, 1, u2)
    q.I("v_cndmask_b32", u4, u3, u5, VCC)
    for s in range(2):
        for j in range(8):
            d0 = 16 * s + 8 * (j >> 2) + (j & 3)
            q.I("buffer_load_ushort", WT[8 * s + j], u4 if d0 + 4 >= 28 else u3, SPHI, 0, mods=f"offen offset:{d0*56}")

PAGE = 8192; NPG = 14; ASB = PAGE * NPG; ABLK = 32 * 528
VBB = ASB + 2 * ABLK
K1_LDS = VBB + 8192

def gen_k1(cfg):
    name = "k1_kernel"
    txt = kernel_header(name)
    p = Prog()
    sT0, sT1, sT2, sT3 = S(60), S(61), S(62), S(63)
    sR, sJ, sRot = S(26), S(27), S(72)
    p.I("s_cmp_ge_u32", S(2), 256)
    p.raw("    s_cbranch_scc1 K1_END")
    p.I("s_load_dwordx8", S(4, 8), S(0, 2), 0)
    p.I("s_load_dwordx8", S(12, 8), S(0, 2), 32)
    p.I("s_load_dwordx4", S(20, 4), S(0, 2), 64)
    p.I("s_load_dwordx2", S(24, 2), S(0, 2), 80)
    p.I("v_lshrrev_b32", V(1), 6, V(0))
    p.I("v_readfirstlane_b32", S(3), V(1))
    p.I("v_and_b32", V(0), 63, V(0))
    p.I("s_and_b32", sT0, S(2), 7); p.I("s_lshr_b32", sT1, S(2), 3)
    if cfg["k1map"] == 0:
        p.I("s_and_b32", sT2, sT0, 1); p.I("s_lshl_b32", sT2, sT2, 3)
        p.I("s_and_b32", sT3, sT1, 7); p.I("s_add_u32", sR, sT2, sT3)
        p.I("s_lshr_b32", sT2, sT0, 1)
        p.I("s_lshr_b32", sT1, sT1, 3)
        p.I("s_lshl_b32", sJ, sT1, 2); p.I("s_add_u32", sJ, sJ, sT2)
        p.I("s_lshl_b32", sRot, sT1, 1); p.I("s_add_u32", sRot, sRot, sT3)
    else:
        p.I("s_lshl_b32", sT2, sT0, 1); p.I("s_lshr_b32", sT3, sT1, 4); p.I("s_add_u32", sR, sT2, sT3)
        p.I("s_and_b32", sJ, sT1, 15)
        p.I("s_mul_i32", sRot, sT3, 3); p.I("s_and_b32", sT2, sJ, 7); p.I("s_add_u32", sRot, sRot, sT2)
    p.I("s_cmp_ge_u32", sRot, 7); p.I("s_cselect_b32", sT2, 7, 0); p.I("s_sub_u32", sRot, sRot, sT2)
    if not cfg["rot"]: p.I("s_mov_b32", sRot, 0)
    p.I("s_cmp_ge_u32", sJ, 14)
    p.raw("    s_cbranch_scc1 K1_Q")
    p.I("s_cmp_ge_u32", S(3), 4)
    p.raw("    s_cbranch_scc1 K1_F1")
    txt += render(finalize(p))
    for typ in ("F", "Q"):
        for grp in (0, 1):
            p = Prog()
            if typ == "Q" and grp == 0:
                p.label("K1_Q"); p.I("s_cmp_ge_u32", S(3), 4); p.raw("    s_cbranch_scc1 K1_Q1")
            elif grp == 1: p.label(f"K1_{typ}1")
            k1_role(p, typ, grp, cfg)
            txt += render(finalize(p))
    txt += "K1_END:\n    s_endpgm\n"
    return txt, kernel_desc(name, 256)

def k1_role(p, typ, grp, cfg):
    lane = V(0)
    t1, t2, t3, t4, t5, t6, t7 = [V(i) for i in range(1, 8)]
    AK = [V(8 + 4 * k, 4) for k in range(28)]
    Y0 = V(120, 16); X = V(136, 32); Z = V(168, 32)
    def xr(b, g):
        base = 168 + 8 * b if b < 4 else (120 + 8 * (b - 4) if b < 6 else 104)
        return V(base + 4 * g, 4)
    BFR = V(200, 24)
    LT = V(224, 16)
    vB0 = V(240); vBt = [[V(241), V(242)], [V(243), V(244)]]
    vAw, vAr, vD0, vDX, vDY, vSt = V(245), V(246), V(247), V(248), V(249), V(250)
    vR = [V(251), V(252)]; vNM = [V(253), V(254)]
    vMask, vC2 = V(245), V(255)
    u1, u2, u3, u4, u5 = V(1), V(2), V(3), V(4), V(5)
    vTk, vL0 = V(6), V(7)
    w1, w2 = V(200), V(201)
    sW = S(3); sR, sJ, sRot = S(26), S(27), S(72)
    SX, SQKV, SXs, SYs, SWS, SPHI, SD, SW2 = [S(28 + 4 * i, 4) for i in range(8)]
    sT0, sT1, sT2, sT3 = S(60), S(61), S(62), S(63)
    sO0, sOX, sLdsW, sL = S(64), S(65), S(66), S(67)
    sM28 = S(68, 2)
    sOut, sW2d = S(70), S(71)
    sZ, sFl, sWord, sOT = S(73), S(74), S(75), S(76)
    a0, a1, a2 = S(77), S(78), S(79)
    STR = 3584 if typ == "F" else 2688
    DELTA = 128 if typ == "F" else 224
    stp = " sc1" if cfg["sc1"] else ""
    st = Stamps(cfg["stamps"], 0)
    st.stamp(p, True); st.stamp(p)
    r8, k8 = t1, t2
    p.I("v_lshrrev_b32", r8, 3, lane)
    p.I("v_and_b32", k8, 7, lane)
    p.I("s_lshl_b32", sT0, sR, 7); p.I("s_lshl_b32", sT1, sW, 4); p.I("s_add_u32", sT0, sT0, sT1)
    p.I("v_add_u32", t3, sT0, r8)
    p.I("v_mul_u32_u24", t3, 896, t3)
    p.I("v_lshl_add_u32", t3, k8, 4, t3)
    p.I("v_add_u32", t4, 8 * 896, t3)
    p.I("s_lshl_b32", sT0, sRot, 7)
    p.raw("    s_waitcnt lgkmcnt(0)")
    srd(p, SX.n, 4, 2048 * 896)
    for b in range(7):
        p.I("buffer_load_dwordx4", xr(b, 0), t3, SX, sT0, mods="offen")
        p.I("buffer_load_dwordx4", xr(b, 1), t4, SX, sT0, mods="offen")
        if b < 6:
            p.I("s_add_u32", sT0, sT0, 128); p.I("s_cmp_eq_u32", sT0, 896); p.I("s_cselect_b32", sT0, 0, sT0)
    srd(p, SQKV.n, 6, 448 * 2688)
    p.I("v_bfe_u32", t5, r8, 1, 1)
    p.I("v_lshlrev_b32", t5, 2, t5)
    p.I("v_xor_b32", t5, t5, k8)
    p.I("s_lshl_b32", sT0, sW, 3)
    p.I("v_add_u32", t6, sT0, r8)
    p.I("v_lshrrev_b32", t3, 2, t5); p.I("v_mul_u32_u24", t3, 896, t3)
    p.I("v_and_b32", t4, 3, t5); p.I("v_lshl_add_u32", t3, t4, 4, t3)
    p.I("v_mul_u32_u24", t4, 2688, t6); p.I("v_add_u32", t3, t3, t4)
    p.I("s_mul_i32", sT1, sJ, 56); p.I("s_add_u32", sT1, sT1, 896)
    p.I("v_add_u32", vD0, sT1, t3)
    p.I("s_lshl_b32", sLdsW, sW, 10)
    p.I("s_mul_i32", sO0, sRot, 64 * 2688)
    if typ == "F":
        srd(p, SXs.n, 14, 448 * 3584); srd(p, SYs.n, 16, 448 * 3584)
        p.I("v_mul_u32_u24", t4, 3584, t6)
        p.I("s_lshl_b32", sT1, sJ, 8)
        p.I("v_add_u32", t4, sT1, t4)
        p.I("v_lshl_add_u32", vDX, t5, 4, t4)
        p.I("v_xor_b32", t5, 2, t5)
        p.I("v_lshl_add_u32", vDY, t5, 4, t4)
    else:
        srd(p, SXs.n, 6, 448 * 2688); srd(p, SYs.n, 6, 448 * 2688)
        p.I("v_mul_u32_u24", t4, 2688, t6)
        p.I("s_sub_u32", sT1, sJ, 14); p.I("s_mul_i32", sT1, sT1, 448)
        p.I("v_add_u32", t4, sT1, t4)
        p.I("v_lshl_add_u32", vDX, t5, 4, t4)
        p.I("v_add_u32", vDY, 112, vDX)
    p.I("s_mul_i32", sOX, sRot, 64 * STR)
    def slot_of(n):
        if n < 7: return 2 * n
        if n < 14: return n - 7
        return (8 + 2 * (n - 14)) % NPG
    NEED = {}
    for c in range(7): NEED[7 + c] = c // 2 + 1
    for c, v in enumerate((5, 6, 7, 9, 11, 13, 14)): NEED[14 + c] = v
    def dma(q, n):
        slot = slot_of(n)
        if 7 <= n < 14:
            q.I("s_add_u32", M0, sLdsW, slot * PAGE)
            q.I("buffer_load_dwordx4", vD0, SQKV, sO0, mods="offen lds", tag=f"dma{n}")
            if n < 13:
                q.I("s_add_u32", sO0, sO0, 64 * 2688); q.I("s_cmp_eq_u32", sO0, 448 * 2688); q.I("s_cselect_b32", sO0, 0, sO0)
        else:
            so = sOX
            if n >= 14:
                q.I("s_add_u32", sOT, sOX, DELTA); so = sOT
            q.I("s_add_u32", M0, sLdsW, slot * PAGE)
            q.I("buffer_load_dwordx4", vDX, SXs, so, mods="offen lds", tag=f"dma{n}")
            q.I("s_add_u32", M0, sLdsW, (slot + 1) * PAGE)
            q.I("buffer_load_dwordx4", vDY, SYs, so, mods="offen lds", tag=f"dma{n}")
            if n < 20:
                q.I("s_add_u32", sOX, sOX, 64 * STR); q.I("s_cmp_eq_u32", sOX, 448 * STR); q.I("s_cselect_b32", sOX, 0, sOX)
    NPRE = cfg["npre"]
    if cfg["xbar"]: p.I("s_barrier")
    for n in range(NPRE): dma(p, n)
    p.I("v_mul_u32_u24", vAw, 528, k8)
    p.I("v_lshl_add_u32", vAw, r8, 4, vAw)
    p.I("s_lshr_b32", sT0, sW, 1); p.I("s_mul_i32", sT0, sT0, 8 * 528)
    p.I("s_and_b32", sT1, sW, 1); p.I("s_lshl_b32", sT1, sT1, 8)
    p.I("s_add_u32", sT0, sT0, sT1); p.I("s_add_u32", sT0, sT0, ASB)
    p.I("v_add_u32", vAw, sT0, vAw)
    srd(p, SWS.n, 24, WS_BYTES)
    p.I("v_lshlrev_b32", vSt, 4, lane)
    n31, hf = t1, t2
    p.I("v_and_b32", n31, 31, lane)
    p.I("v_lshrrev_b32", hf, 5, lane)
    p.I("v_mov_b32", t7, BIG)
    p.I("s_and_b32", a0, sW, 3)
    if grp == 1:
        srd(p, SD.n, 22, 256)
        p.I("s_lshl_b32", sWord, sJ, 2); p.I("s_add_u32", sWord, sWord, a0); p.I("s_lshl_b32", sWord, sWord, 2)
    p.I("s_lshl_b32", sT1, sR, 2); p.I("s_add_u32", sT1, sT1, a0)
    if typ == "F":
        p.I("s_mul_i32", sOut, sT1, NKS * 1024)
        p.I("s_lshl_b32", sT2, sJ, 13); p.I("s_add_u32", sOut, sOut, sT2)
        if grp: p.I("s_add_u32", sOut, sOut, 2048)
        p.I("v_mov_b32", vC2, f2u(GC2))
    else:
        p.I("s_lshl_b32", sOut, sT1, 15)
        p.I("s_sub_u32", sT2, sJ, 14); p.I("s_lshl_b32", sT2, sT2, 14); p.I("s_add_u32", sOut, sOut, sT2)
        p.I("s_add_u32", sOut, sOut, QF_OFF + (4096 if grp else 0))
    p.I("v_mul_u32_u24", vAr, 528, hf)
    p.I("v_lshl_add_u32", vAr, n31, 4, vAr)
    p.I("s_mul_i32", sT1, a0, 8 * 528); p.I("s_add_u32", sT1, sT1, ASB)
    p.I("v_add_u32", vAr, sT1, vAr)
    ch, r4, cq = t3, t4, t5
    p.I("v_bfe_u32", ch, lane, 4, 1); p.I("v_bfe_u32", r4, lane, 2, 2); p.I("v_and_b32", cq, 3, lane)
    p.I("v_lshl_add_u32", t6, hf, 3, r4); p.I("v_lshlrev_b32", t6, 7, t6)
    p.I("v_bfe_u32", t7, lane, 3, 1); p.I("v_lshlrev_b32", t7, 6, t7)
    p.I("v_lshlrev_b32", cq, 3, cq)
    p.I("v_lshl_add_u32", w1, ch, 5, cq)
    p.I("v_add_u32", w2, 64 * grp, w1); p.I("v_xor_b32", w2, w2, t7); p.I("v_add_u32", vB0, w2, t6)
    for t in range(2):
        i = 2 * grp + t
        if typ == "F":
            p.I("v_xor_b32", w2, 32 * i, w1); p.I("v_xor_b32", w2, w2, t7)
            p.I("v_lshl_add_u32", w2, ch, 13, w2)
        else:
            p.I("v_add_u32", w2, 56 * (i & 1), w1); p.I("v_xor_b32", w2, w2, t7)
            if i >> 1: p.I("v_add_u32", w2, PAGE, w2)
        p.I("v_add_u32", vBt[t][0], w2, t6)
        p.I("v_add_u32", vBt[t][1], 7 * PAGE, vBt[t][0])

    if grp == 1:
        p.I("v_mov_b32", w1, BIG)
        p.I("v_cmp_eq_u32", VCC, 0, lane)
        p.I("v_cndmask_b32", vL0, w1, 0, VCC)
    st.stamp(p)
    sm = [LT[0], LT[1]]; sq = [LT[2], LT[3]]; ones = LT[4]
    p.I("v_mov_b32", ones, 0x3F803F80)
    for r in sm + sq: p.I("v_mov_b32", r, 0)
    for b in range(7):
        for g in range(2):
            for i in range(4):
                p.I("v_dot2c_f32_bf16", sm[g], xr(b, g)[i], ones)
                p.I("v_dot2c_f32_bf16", sq[g], xr(b, g)[i], xr(b, g)[i])
    for mod in ("quad_perm:[1,0,3,2]", "quad_perm:[2,3,0,1]", "row_half_mirror"):
        for r in sm + sq:
            p.I("v_add_f32_dpp", r, r, r, mods=mod + " row_mask:0xf bank_mask:0xf")
    for g in range(2):
        p.I("v_mul_f32", sm[g], f2u(1.0 / 448), sm[g])
        p.I("v_mul_f32", sq[g], f2u(1.0 / 448), sq[g])
    for g in range(2): p.I("v_fma_f32", sq[g], Neg(sm[g]), sm[g], sq[g])
    for g in range(2): p.I("v_max_f32", sq[g], 0, sq[g])
    for g in range(2): p.I("v_add_f32", sq[g], f2u(1e-5), sq[g])
    for g in range(2): p.I("v_rsq_f32", vR[g], sq[g])
    for g in range(2): p.I("v_mul_f32_e64", vNM[g], Neg(sm[g]), vR[g])
    def ln_block(q, b):
        for g in range(2):
            x = xr(b, g); T = LT.sub(8 * g, 8)
            for i in range(4):
                q.I("v_lshlrev_b32", T[2 * i], 16, x[i])
                q.I("v_and_b32", T[2 * i + 1], 0xFFFF0000, x[i])
            for i in range(8): q.I("v_fma_f32", T[i], T[i], vR[g], vNM[g])
            for i in range(4): q.I("v_cvt_pk_bf16_f32", x[i], T[2 * i], T[2 * i + 1])
            q.I("ds_write_b128", vAw, x, mods=f"offset:{(b % 2) * ABLK + g * 128}", tag=f"aw{b}")
    st.stamp(p)
    ln_block(p, 0)
    st.stamp(p)

    def a_reads(b):
        return [Inst("ds_read_b128", (AK[4 * b + ks], vAr), f"offset:{(b % 2) * ABLK + ks * 2 * 528}", tag="ar") for ks in range(4)]
    QOF = {}
    qc = 0
    for gi in range(84):
        nq = 1 if 28 <= gi < 56 else 2
        if nq == 2 and qc % 2: qc += 1
        QOF[gi] = qc % 6; qc += nq
    def bf(n, ks, t):
        return BFR.sub(4 * (QOF[4 * n + ks] + t), 4)
    def b_reads(n, ks):
        L = []
        slot = slot_of(n)
        if 7 <= n < 14:
            for pp in range(2):
                L.append(Inst("ds_read_b64_tr_b16", (bf(n, ks, 0).sub(2 * pp, 2), vB0), f"offset:{slot * PAGE + (16 * ks + 4 * pp) * 128}"))
        else:
            var = 1 if slot >= 7 else 0
            for t in range(2):
                for pp in range(2):
                    L.append(Inst("ds_read_b64_tr_b16", (bf(n, ks, t).sub(2 * pp, 2), vBt[t][var]),
                                  f"offset:{(slot - 7 * var) * PAGE + (16 * ks + 4 * pp) * 128}"))
        return L
    def mfmas(n, ks):
        kb = n % 7
        a = AK[4 * kb + ks]; first = (kb == 0 and ks == 0)
        if 7 <= n < 14:
            if grp == 0: return [Inst(MF, (Y0, bf(n, ks, 0), a, 0 if first else Y0))]
            return [Inst(MF, (Y0, a, bf(n, ks, 0), 0 if first else Y0))]
        acc = X if n < 7 else Z
        return [Inst(MF, (acc.sub(16 * t, 16), bf(n, ks, t), a, 0 if first else acc.sub(16 * t, 16))) for t in range(2)]

    seg = {n: Prog() for n in range(22)}
    W2T = Z.sub(0, 8)
    q = seg[cfg["w2it"]]
    q.I("v_and_b32", u1, 31, lane); q.I("v_lshrrev_b32", u2, 5, lane); q.I("v_mov_b32", u5, BIG)
    q.I("s_lshl_b32", sT0, S(2), 3); q.I("s_add_u32", sT0, sT0, sW)
    q.I("s_mul_i32", sT1, sT0, 0x1C72); q.I("s_lshr_b32", sT1, sT1, 20)
    q.I("s_mul_i32", sT2, sT1, 144); q.I("s_sub_u32", sT2, sT0, sT2)
    q.I("s_sub_u32", sT3, sT2, 112); q.I("s_lshr_b32", a0, sT3, 1); q.I("s_mul_i32", a0, a0, 28)
    q.I("s_and_b32", a1, sT2, 1); q.I("s_lshl_b32", a2, a1, 4); q.I("s_add_u32", a0, a0, a2)
    q.I("s_lshl_b32", a2, sT2, 4)
    q.I("s_cmp_lt_u32", sT2, 112)
    q.I("s_cselect_b32", a0, a2, a0)
    q.I("s_cselect_b32", SW2[0], S(18), S(10))
    q.I("s_cselect_b32", SW2[1], S(19), S(11))
    q.I("s_mov_b32", a2, 448 * 896)
    q.I("s_cselect_b32", SW2[2], 1792 * 896, a2)
    q.I("s_cselect_b32", a1, 0, a1)
    q.I("s_and_b32", SW2[1], SW2[1], 0xFFFF)
    q.I("s_mov_b32", SW2[3], 0x20000)
    q.I("s_mul_i32", a0, a0, 896)
    q.I("s_lshl_b32", a2, sT1, 6); q.I("s_add_u32", a0, a0, a2)
    q.I("v_mul_u32_u24", u3, 4 * 896, u2)
    q.I("v_lshl_add_u32", u3, u1, 1, u3)
    q.I("v_add_u32", u3, a0, u3)
    q.I("v_and_b32", u4, a1, u2)
    q.I("v_cmp_eq_u32", VCC, 1, u4)
    q.I("v_add_u32", u4, 8 * 896, u3)
    q.I("v_cndmask_b32", u4, u4, u5, VCC)
    for j in range(8):
        q.I("buffer_load_ushort", W2T[j], u3 if j < 4 else u4, SW2, 0, mods=f"offen offset:{(j&3)*896}")
    q.I("s_lshl_b32", sW2d, sT0, 10); q.I("s_add_u32", sW2d, sW2d, W2F_OFF)
    q.I("s_cmp_lt_u32", sT0, 14 * NKS)
    q.I("s_cselect_b32", sW2d, sW2d, BIG)
    q = seg[13]
    for i in range(4): q.I("v_lshl_or_b32", W2T[i], W2T[2 * i + 1], 16, W2T[2 * i])
    q.I("buffer_store_dwordx4", W2T.sub(0, 4), vSt, SWS, sW2d, mods="offen" + stp)

    def tile_epi(q, acc, t, ps, tmp, out):
        if typ == "F":
            gelu_tile(q, acc, tmp, out.sub(0, 4), vC2)
            q.I("buffer_store_dwordx4", out.sub(0, 4), vSt, SWS, sOut if ps == 1 else sT3, mods=f"offen offset:{t*1024}" + stp)
        else:
            for i in range(8): q.I("v_cvt_pk_bf16_f32", tmp[i], acc[2 * i], acc[2 * i + 1])
            for s in range(2):
                q.I("buffer_store_dwordx4", tmp.sub(4 * s, 4), vSt, SWS, sOut if ps == 1 else sT3, mods=f"offen offset:{t*2048 + s*1024}" + stp)
    P1 = Prog()
    for t in range(2): tile_epi(P1, X.sub(16 * t, 16), t, 1, LT.sub(0, 8) if typ == "F" else LT.sub(8 * t, 8), LT.sub(8 + 4 * t, 4))
    parts = split(P1.L, 6)
    for i in range(6): seg[7 + i].extend(parts[i])
    KE = cfg["ke"]
    if grp == 0:
        WT = Z.sub(16, 16); WPHI = X.sub(0, 8); PACC = X.sub(16, 16)
        q = seg[10]
        srd(q, SPHI.n, 8, 16 * 1568)
        q.I("s_mov_b32", sL, f2u(LOG2E))
        wphi_gather(q, WT, SPHI, sJ, sT0, lane, u1, u2, u3, u4, u5)
        q.I("v_cmp_eq_u32", VCC, 0, u2)
        q.I("v_cndmask_b32", vMask, 0, 1.0, VCC)
        q = seg[13]
        for i in range(8): q.I("v_lshl_or_b32", WPHI[i], WT[2 * i + 1], 16, WT[2 * i])
        E = Prog()
        qb = LT.sub(0, 8)
        for i in range(8): E.I("v_cvt_pk_bf16_f32", qb[i], Y0[2 * i], Y0[2 * i + 1])
        E.I(MF, PACC, WPHI.sub(0, 4), qb.sub(0, 4), 0)
        E.I(MF, PACC, WPHI.sub(4, 4), qb.sub(4, 4), PACC)
        IDN = X.sub(0, 8)
        E.I("v_lshlrev_b32", u3, 2, u2); E.I("v_sub_u32", u3, u1, u3)
        E.I("v_and_b32", u4, 1, u3); E.I("v_lshlrev_b32", u4, 4, u4); E.I("v_mov_b32", u5, 0x3F80); E.I("v_lshlrev_b32", u4, u4, u5)
        E.I("v_lshrrev_b32", u3, 1, u3)
        for s in range(2):
            for i in range(4):
                f0 = 16 * s + 8 * ((2 * i) >> 2) + ((2 * i) & 3)
                E.I("v_cmp_eq_u32", VCC, f0 // 2, u3)
                E.I("v_cndmask_b32", IDN[4 * s + i], 0, u4, VCC)
        POS, NEG = LT.sub(0, 8), X.sub(8, 8)
        softmax_core(E, PACC, Y0, LT.sub(8, 8), POS, NEG, vMask, sL)
        VB = LT.sub(8, 8)
        E.I("s_lshl_b32", sT0, sW, 11); E.I("s_add_u32", sT0, sT0, VBB)
        E.I("v_add_u32", u3, sT0, vSt)
        Tt = [Y0, PACC]
        for ft, src in enumerate((POS, NEG)):
            E.I(MF, Tt[ft], src.sub(0, 4), IDN.sub(0, 4), 0)
            E.I(MF, Tt[ft], src.sub(4, 4), IDN.sub(4, 4), Tt[ft])
        for s in range(2): E.I("ds_read_b128", VB.sub(4 * s, 4), u3, mods=f"offset:{s*1024}")
        PT = [LT.sub(0, 8), X.sub(8, 8)]
        for ft in range(2):
            for r in range(8): E.I("v_cvt_pk_bf16_f32", PT[ft][r], Tt[ft][2 * r], Tt[ft][2 * r + 1])
        for ft in range(2):
            E.I(MF, Tt[ft], PT[ft].sub(0, 4), VB.sub(0, 4), 0)
            E.I(MF, Tt[ft], PT[ft].sub(4, 4), VB.sub(4, 4), Tt[ft])
        E.I("s_lshl_b32", sT0, sW, 13); E.I("s_add_u32", sT0, sT0, ASB)
        E.I("v_add_u32", u3, sT0, vSt)
        W = Prog()
        for qd in range(8):
            W.I("ds_write_b128", u3, Tt[qd >> 2].sub(4 * (qd & 3), 4), mods=f"offset:{qd*1024}", tag="kvw")
        parts = split(E.L, KE)
        for i in range(KE): seg[14 + i].extend(parts[i])
        seg[14 + KE].extend(W)
    else:
        q = seg[0]
        q.I("s_lshl_b32", sZ, sWord, 9); q.I("s_add_u32", sZ, sZ, KVA_OFF)
        q.I("s_lshl_b32", sT2, sWord, 4); q.I("s_add_u32", sT2, sT2, FLG_OFF)
        q.I("s_cmp_eq_u32", sR, sJ)
        q.I("s_cselect_b32", sT2, sT2, BIG)
        q.I("s_cselect_b32", sT1, sZ, BIG)
        q.I("s_cselect_b32", sFl, sWord, BIG)
        ZR = V(112, 4)
        for i in range(4): q.I("v_mov_b32", ZR[i], 0)
        for s in range(2): q.I("buffer_store_dwordx4", ZR, vSt, SWS, sT1, mods=f"offen offset:{s*1024} sc1", tag="zs")
        q.I("v_cmp_gt_u32", VCC, 4, lane)
        q.I("v_mov_b32", u1, BIG)
        q.I("v_cndmask_b32", u1, u1, vSt, VCC)
        q.I("buffer_store_dwordx4", ZR, u1, SWS, sT2, mods="offen")
        q = seg[4]
        q.I("v_mov_b32", vTk, 0x10000)
        q.waittag("zs")
        q.I("buffer_store_dword", vTk, vL0, SD, sFl, mods="offen sc1")
        q = seg[14]
        VB = LT.sub(0, 8)
        q.I("v_and_b32", u1, 31, lane)
        q.I("v_cmp_eq_u32", sM28, 28, u1)
        q.I("v_mov_b32", u2, 0x3F803F80)
        q.I("s_and_b32", sT0, sW, 3); q.I("s_lshl_b32", sT0, sT0, 11); q.I("s_add_u32", sT0, sT0, VBB)
        q.I("v_add_u32", u3, sT0, vSt)
        for r in range(8): q.I("v_cvt_pk_bf16_f32", VB[r], Y0[2 * r], Y0[2 * r + 1])
        for r in range(8): q.I("v_cndmask_b32", VB[r], VB[r], u2, sM28)
        for s in range(2): q.I("ds_write_b128", u3, VB.sub(4 * s, 4), mods=f"offset:{s*1024}", tag="vbw")
        q = seg[16]
        q.I("buffer_load_dword", vTk, vL0, SD, sWord, mods="offen sc1")
        q = seg[15 + KE]
        q.I("s_and_b32", sT0, sW, 3); q.I("s_lshl_b32", sT0, sT0, 11); q.I("s_add_u32", sT0, sT0, ASB)
        q.I("v_lshlrev_b32", u4, 2, lane)
        q.I("v_add_u32", u3, sT0, u4)
        for e in range(8):
            q.I("ds_read2st64_b32", X.sub(4 * e, 2), u3, mods=f"offset0:{e} offset1:{e+32}")
            q.I("ds_read2st64_b32", X.sub(4 * e + 2, 2), u3, mods=f"offset0:{e+64} offset1:{e+96}")
        lbl = f"K1_{typ}_FL"
        q.I("v_readfirstlane_b32", sT0, vTk)
        q.I("s_cmp_ge_u32", sT0, 0x10000)
        q.raw(f"    s_cbranch_scc1 {lbl}OK\n    s_mov_b32 s61, 0\n{lbl}SPIN:\n    s_sleep 2\n    buffer_load_dword v6, v7, s[52:55], s75 offen sc1\n    s_add_u32 s61, s61, 1\n    s_waitcnt vmcnt(0)\n    v_readfirstlane_b32 s60, v6\n    s_nop 3\n    s_or_b32 s60, s60, s61\n    s_cmp_lt_u32 s60, 0x10000\n    s_cbranch_scc1 {lbl}SPIN\n{lbl}OK:")
        for e in range(8):
            q.I("v_add_f32", X[4 * e], X[4 * e], X[4 * e + 1]); q.I("v_add_f32", X[4 * e + 2], X[4 * e + 2], X[4 * e + 3])
            q.I("v_add_f32", Y0[e], X[4 * e], X[4 * e + 2])
            q.I("buffer_atomic_add_f32", Y0[e], u4, SWS, sZ, mods=f"offen offset:{e*256}")

    LA = cfg["la"]
    nxt = NPRE
    p.waittag("aw0")
    p.I("s_barrier")
    p.L.extend(a_reads(0))
    ln_block(p, 1)
    p.waittag("dma0", "dma1", "aw1", "ar")
    p.I("s_barrier")
    st.stamp(p)
    steps = [(n, ks) for n in range(21) for ks in range(4)]
    def quads(gi): return set(range(QOF[gi], QOF[gi] + (1 if 28 <= gi < 56 else 2)))
    issued = 0
    def more_reads(done, n):
        nonlocal issued
        rd = []
        while issued < min((n + 2) * 4, 84) and issued < done + cfg["bahead"] + (2 if 28 <= issued < 56 else 0):
            busy = set()
            for g2 in range(done, issued): busy |= quads(g2)
            if quads(issued) & busy: break
            rd += b_reads(*steps[issued]); issued += 1
        return rd
    p.L.extend(more_reads(0, 0))
    for n in range(21):
        fill = Prog()
        cnt = 0
        while nxt <= 20 and nxt <= n + LA and n >= NEED.get(nxt, 0) and cnt < cfg["dmaper"]:
            if not cfg.get("no_dma"): dma(fill, nxt)
            cnt += 1 if 7 <= nxt < 14 else 2; nxt += 1
        if n + 2 < 7 and not cfg.get("no_ln"):
            q2 = Prog(); ln_block(q2, n + 2); fill.L = q2.L + fill.L
        if not cfg.get("no_seg") or n in (0, 4): fill.extend(seg[n])
        F = fill.L
        nm = 4 if 7 <= n < 14 else 8
        per = len(F) / max(1.0, nm * cfg["front"] / 100.0)
        acc = 0.0; fi = 0
        ar = a_reads(n + 1) if n + 1 < 7 else []
        for ks in range(4):
            idx = 4 * n + ks
            ms = mfmas(n, ks)
            for mi, m in enumerate(ms):
                p.L.append(m)
                if mi == len(ms) - 1:
                    p.L.extend(more_reads(idx + 1, n))
                elif ar:
                    p.L.append(ar.pop(0))
                acc += per
                while acc >= 1 and fi < len(F):
                    p.L.append(F[fi]); fi += 1; acc -= 1
        p.L.extend(F[fi:])
        if n in (6, 13): st.stamp(p)
        if n + 1 < 21:
            p.waittag(f"dma{n+2}", f"aw{n+2}", "vbw", "kvw", "ar")
            p.I("s_barrier")
    st.stamp(p)
    p.extend(seg[21])
    p.I("s_add_u32", sT3, sOut, 4096 if typ == "F" else 8192)
    for t in range(2): tile_epi(p, Z.sub(16 * t, 16), t, 2, V(8 + 16 * t, 8), V(16 + 16 * t, 4))
    st.stamp(p, True)
    st.flush(p, SWS, sW, 8, t1, t3)
    p.I("s_endpgm")

K2_ROW = 272
K2_LDS = 4 * 64 * K2_ROW
def gen_k2(cfg):
    name = "k2_kernel"
    txt = kernel_header(name)
    p = Prog()
    p.I("s_cmp_ge_u32", S(2), 256)
    p.raw("    s_cbranch_scc1 K2_END")
    p.I("s_load_dwordx2", S(4, 2), S(0, 2), 0)
    p.I("s_load_dwordx4", S(8, 4), S(0, 2), 64)
    p.I("s_load_dwordx2", S(6, 2), S(0, 2), 80)
    p.I("s_load_dwordx2", S(50, 2), S(0, 2), 16)
    p.I("v_mov_b32", V(1), V(0))
    p.I("v_lshrrev_b32", V(2), 6, V(0))
    p.I("v_readfirstlane_b32", S(3), V(2))
    p.I("v_and_b32", V(0), 63, V(0))
    p.I("s_cmp_ge_u32", S(3), 4)
    p.raw("    s_cbranch_scc1 K2_ATT")
    p.I("s_cmp_lt_u32", S(2), 32)
    p.raw("    s_cbranch_scc1 K2_END")
    txt += render(finalize(p))
    p = Prog(); k2_gemm(p, cfg); txt += render(finalize(p))
    p = Prog(); p.label("K2_ATT"); k2_att(p, cfg); txt += render(finalize(p))
    txt += "K2_END:\n    s_endpgm\n"
    return txt, kernel_desc(name, 96 + 16 * cfg["k2depth"] - 16 if cfg["k2depth"] == 3 else 256)

def k2_att(p, cfg):
    lane = V(0); sW = S(3); SWS = S(12, 4); SD = S(16, 4); SPHI = S(20, 4)
    st = Stamps(cfg["stamps"], 0x40000)
    if cfg["attprio"]: p.I("s_setprio", 3)
    st.stamp(p, True); st.stamp(p)
    vSt = V(2)
    u1, u2, u3, u4, u5 = V(3), V(4), V(5), V(6), V(7)
    p.I("v_lshlrev_b32", vSt, 4, lane)
    sH, sRT, sT0, sT1, sT2, sL = S(24), S(25), S(26), S(27), S(28), S(29)
    p.I("s_and_b32", sH, S(2), 15); p.I("s_lshr_b32", sRT, S(2), 4); p.I("s_lshl_b32", sRT, sRT, 2)
    p.I("s_add_u32", sRT, sRT, sW); p.I("s_sub_u32", sRT, sRT, 4)
    p.raw("    s_waitcnt lgkmcnt(0)")
    srd(p, SWS.n, 6, WS_BYTES); srd(p, SPHI.n, 50, 16 * 1568); srd(p, SD.n, 10, 256)
    QB = V(8, 8); WT = V(16, 16); KA = V(32, 32); WPHI = V(64, 8); P = V(72, 16); E = V(88, 16); TM = V(104, 8)
    POS, NEG = V(112, 8), V(120, 8)
    p.I("s_lshl_b32", sT0, sRT, 15); p.I("s_lshl_b32", sT1, sH, 11); p.I("s_add_u32", sT0, sT0, sT1); p.I("s_add_u32", sT0, sT0, QF_OFF)
    for s in range(2): p.I("buffer_load_dwordx4", QB.sub(4 * s, 4), vSt, SWS, sT0, mods=f"offen offset:{s*1024}")
    wphi_gather(p, WT, SPHI, sH, sT0, lane, u1, u2, u3, u4, u5)
    p.I("s_lshl_b32", sT0, sH, 13); p.I("s_add_u32", sT0, sT0, KVA_OFF); p.I("s_add_u32", sT1, sT0, 4096)
    for qd in range(8): p.I("buffer_load_dwordx4", KA.sub(4 * qd, 4), vSt, SWS, sT0 if qd < 4 else sT1, mods=f"offen offset:{(qd&3)*1024}")
    if cfg["k2bar"]: p.I("s_barrier")
    vMask = V(1)
    p.I("v_cmp_eq_u32", VCC, 0, u2)
    p.I("v_cndmask_b32", vMask, 0, 1.0, VCC)
    p.I("s_mov_b32", sL, f2u(LOG2E))
    st.stamp(p)
    for i in range(8): p.I("v_lshl_or_b32", WPHI[i], WT[2 * i + 1], 16, WT[2 * i])
    p.I(MF, P, WPHI.sub(0, 4), QB.sub(0, 4), 0)
    p.I(MF, P, WPHI.sub(4, 4), QB.sub(4, 4), P)
    st.stamp(p)
    softmax_core(p, P, E, TM, POS, NEG, vMask, sL)
    KF = WT
    for ft in range(2):
        for i in range(12, 16): p.I("v_mul_f32", KA[16 * ft + i], KA[16 * ft + i], vMask)
    for i in range(16): p.I("v_cvt_pk_bf16_f32", KF[i], KA[2 * i], KA[2 * i + 1])
    N = P
    for s in range(4):
        p.I(MF, N, KF.sub(4 * s, 4), (POS if s < 2 else NEG).sub(4 * (s & 1), 4), 0 if s == 0 else N)
    d0, d1 = TM[0], TM[1]
    p.I("s_mul_i32", sT0, sRT, NKS * 1024); p.I("s_lshl_b32", sT2, sH, 11); p.I("s_add_u32", sT0, sT0, sT2); p.I("s_add_u32", sT0, sT0, 112 * 1024)
    p.I("v_mov_b32", u3, 1)
    p.I("v_cmp_eq_u32", VCC, 0, lane)
    p.I("v_cndmask_b32", u4, u5, 0, VCC)
    p.I("s_lshl_b32", sT1, sRT, 6); p.I("s_lshl_b32", sT2, sH, 2); p.I("s_add_u32", sT1, sT1, sT2); p.I("s_add_u32", sT1, sT1, FLG_OFF)
    p.I("v_mov_b32", d0, N[12]); p.I("v_mov_b32", d1, N[12])
    p.I("v_permlane32_swap_b32", d0, d1)
    p.I("v_add_f32", d1, f2u(1e-6), d1)
    p.I("v_rcp_f32", d1, d1)
    for i in range(16): p.I("v_mul_f32", N[i], N[i], d1)
    T = QB
    for i in range(8): p.I("v_cvt_pk_bf16_f32", T[i], N[2 * i], N[2 * i + 1])
    for s in range(2): p.I("buffer_store_dwordx4", T.sub(4 * s, 4), vSt, SWS, sT0, mods=f"offen offset:{s*1024} sc1", tag="ost")
    st.stamp(p)
    p.waittag("ost")
    p.I("buffer_store_dword", u3, u4, SWS, sT1, mods="offen sc1")
    st.stamp(p); st.stamp(p); st.stamp(p, True)
    st.flush(p, SWS, sW, 8, V(4), V(5))
    p.I("s_endpgm")

def k2_gemm(p, cfg):
    lane = V(0); tid = V(1); sW = S(3); SWS = S(12, 4); SX = S(16, 4); SO = S(20, 4); SD = S(36, 4)
    D = cfg["k2depth"]
    st = Stamps(cfg["stamps"], 0x40000)
    st.stamp(p, True); st.stamp(p)
    sRB, sCB, sT0, sT1, sT2 = S(24), S(25), S(26), S(27), S(28)
    sA = [S(30), S(31)]; sB = [S(32), S(33)]
    sAo = [S(40), S(41)]; sBo = [S(42), S(43)]
    sFlag = S(44)
    p.I("s_sub_u32", sT2, S(2), 32)
    p.I("s_and_b32", sT0, sT2, 7); p.I("s_lshr_b32", sT1, sT2, 3)
    p.I("s_mul_i32", sT2, sT1, 37); p.I("s_lshr_b32", sT2, sT2, 8)
    p.I("s_lshl_b32", sRB, sT0, 2); p.I("s_add_u32", sRB, sRB, sT2)
    p.I("s_mul_i32", S(45), sT2, 7); p.I("s_sub_u32", sCB, sT1, S(45))
    p.I("s_mul_i32", sT0, sW, 28 * 1024)
    p.I("s_mul_i32", sT1, sRB, 2 * NKS * 1024); p.I("s_add_u32", sA[0], sT1, sT0)
    p.I("s_add_u32", sA[1], sA[0], NKS * 1024)
    p.I("s_mul_i32", sT2, sCB, 2 * NKS * 1024); p.I("s_add_u32", sT2, sT2, W2F_OFF); p.I("s_add_u32", sB[0], sT2, sT0)
    p.I("s_add_u32", sB[1], sB[0], NKS * 1024)
    p.I("s_lshl_b32", sT0, sW, 13); p.I("s_add_u32", sT0, sT0, 112 * 1024)
    p.I("s_add_u32", sAo[0], sT1, sT0); p.I("s_add_u32", sAo[1], sAo[0], NKS * 1024)
    p.I("s_add_u32", sBo[0], sT2, sT0); p.I("s_add_u32", sBo[1], sBo[0], NKS * 1024)
    VO = V(4, 7)
    p.I("v_lshlrev_b32", VO[0], 4, lane)
    for m in range(1, 7): p.I("v_add_u32", VO[m], 4096 * m, VO[0])
    p.raw("    s_waitcnt lgkmcnt(0)")
    srd(p, SWS.n, 6, WS_BYTES)
    ACC = [[V(16 + 32 * r + 16 * c, 16) for c in range(2)] for r in range(2)]
    vP = V(11); vZ = V(12)
    BUF = [V(80 + 16 * d, 16) for d in range(D)]
    def loads(k):
        b = BUF[k % D]; kk = k if k < 28 else k - 28
        m, o = kk // 4, (kk % 4) * 1024
        L = []
        srcs = (sA[0], sB[0], sA[1], sB[1]) if k < 28 else (sAo[0], sBo[0], sAo[1], sBo[1])
        for x, so in enumerate(srcs):
            sc = " sc1" if (k >= 28 and x in (0, 2)) else ""
            L.append(Inst("buffer_load_dwordx4", (b.sub(4 * x, 4), VO[m], SWS, so), f"offen offset:{o}{sc}"))
        return L
    if cfg["k2bar"]: p.I("s_barrier")
    for k in range(D): p.L.extend(loads(k))
    srd(p, SX.n, 4, 2048 * 896); srd(p, SO.n, 8, 2048 * 896); srd(p, SD.n, 10, 256)
    vG = V(13)
    p.I("v_lshrrev_b32", V(2), 3, tid); p.I("v_and_b32", V(3), 7, tid)
    p.I("s_lshl_b32", sT0, sRB, 6)
    p.I("v_add_u32", vG, sT0, V(2)); p.I("v_mul_u32_u24", vG, 896, vG)
    p.I("v_lshl_add_u32", vG, V(3), 4, vG)
    p.I("s_lshl_b32", sT0, sCB, 7); p.I("v_add_u32", vG, sT0, vG)
    p.I("s_mov_b32", sT1, 32 * 896)
    vLr = V(14)
    p.I("v_mul_u32_u24", vLr, K2_ROW, V(2)); p.I("v_lshl_add_u32", vLr, V(3), 5, vLr)
    vLw = V(15)
    p.I("v_and_b32", V(2), 31, lane); p.I("v_lshrrev_b32", V(3), 5, lane)
    p.I("v_mul_u32_u24", vLw, K2_ROW, V(2)); p.I("v_lshl_add_u32", vLw, V(3), 4, vLw)
    p.I("s_mul_i32", sT0, sW, 64 * K2_ROW); p.I("v_add_u32", vLw, sT0, vLw)
    p.I("s_lshl_b32", sFlag, sRB, 7); p.I("s_add_u32", sFlag, sFlag, FLG_OFF)
    p.I("v_lshlrev_b32", vZ, 2, V(2))
    st.stamp(p)
    kpoll = 28 - D - cfg["pollahead"]
    XV = V(4, 8)
    for k in range(36):
        b = BUF[k % D]
        if k == 1: st.stamp(p)
        for r in range(2):
            for c in range(2):
                p.I(MF, ACC[r][c], b.sub(4 + 8 * c, 4), b.sub(8 * r, 4), 0 if k == 0 else ACC[r][c])
        if k == kpoll:
            p.I("buffer_load_dword", vP, vZ, SWS, sFlag, mods="offen sc1")
        if k + D == 28:
            st.stamp(p)
            p.I("v_cmp_ne_u32", VCC, 1, vP)
            p.raw("    s_nop 4\n    s_cbranch_vccz K2_OK\n    s_mov_b32 s47, 0\nK2_SPIN:\n    s_sleep 8\n    buffer_load_dword v11, v12, s[12:15], s44 offen sc1\n    s_add_u32 s47, s47, 1\n    s_cmp_gt_u32 s47, 0x20000\n    s_cbranch_scc1 K2_OK\n    s_waitcnt vmcnt(0)\n    v_cmp_ne_u32 vcc, 1, v11\n    s_nop 4\n    s_cbranch_vccnz K2_SPIN\nK2_OK:")
            st.stamp(p)
        if k + D < 36: p.L.extend(loads(k + D))
        if k + D == 36:
            p.I("buffer_load_dwordx4", XV.sub(0, 4), vG, SX, 0, mods="offen")
            p.I("buffer_load_dwordx4", XV.sub(4, 4), vG, SX, sT1, mods="offen")
    for r in range(2):
        for c in range(2):
            for g in range(4):
                p.I("ds_write_b128", vLw, ACC[r][c].sub(4 * g, 4), mods=f"offset:{r*32*K2_ROW + (c*32+8*g)*4}", tag="pw")
    p.waittag("pw")
    p.I("s_barrier")
    RD = V(16, 64)
    for pp in range(2):
        for w in range(4):
            for hh in range(2):
                p.I("ds_read_b128", RD.sub(32 * pp + 8 * w + 4 * hh, 4), vLr, mods=f"offset:{w*64*K2_ROW + pp*32*K2_ROW + hh*16}")
    for pp in range(2):
        R = RD.sub(32 * pp, 32)
        for i in range(8): p.I("v_add_f32", R[i], R[i], R[8 + i])
        for i in range(8): p.I("v_add_f32", R[16 + i], R[16 + i], R[24 + i])
        Xr = XV.sub(4 * pp, 4); T = V(80, 8)
        for i in range(4):
            p.I("v_lshlrev_b32", T[2 * i], 16, Xr[i]); p.I("v_and_b32", T[2 * i + 1], 0xFFFF0000, Xr[i])
        for i in range(8): p.I("v_add_f32", R[i], R[i], R[16 + i])
        for i in range(8): p.I("v_add_f32", R[i], R[i], T[i])
        O = V(88 + 4 * pp, 4)
        for i in range(4): p.I("v_cvt_pk_bf16_f32", O[i], R[2 * i], R[2 * i + 1])
        p.I("buffer_store_dwordx4", O, vG, SO, 0 if pp == 0 else sT1, mods="offen")
    st.stamp(p); st.stamp(p, True)
    st.flush(p, SWS, sW, 8, V(2), V(3))
    p.I("s_endpgm")

def build(cfg):
    hdr = open("cdna_kernels/" + NAME + ".s.ref").read().split("\n")
    head = [l for l in hdr if l.startswith(";") and "@launch" not in l]
    head.append(f"; @launch kernel=k1_kernel grid=(256,1,1) block=(512,1,1) lds={K1_LDS}")
    head.append(f"; @launch kernel=k2_kernel grid=(256,1,1) block=(512,1,1) lds={K2_LDS}")
    out = "\n".join(head) + '\n.amdgcn_target "amdgcn-amd-amdhsa--gfx950"\n.text\n'
    descs = ""
    for g in (gen_k1, gen_k2):
        t, d = g(cfg); out += t; descs += ".p2align 6\n" + d
    out += '.section .rodata,"a"\n' + descs
    return out

if __name__ == "__main__":
    cfg = dict(k2bar=1, k1map=0, k2depth=5, stamps=0, rot=1, pollahead=2, sc1=1, npre=3, la=5, xbar=1, w2it=8, ke=4, dmaper=4, bahead=3, front=85, attprio=1)
    for a in sys.argv[2:]:
        k, v = a.split("="); cfg[k] = int(v)
    open(sys.argv[1], "w").write(build(cfg))
```

```python
import sys, struct
from asmgen import *
from gen2 import Stamps, srd, f2u, LOG2E, GC1, GC2, gelu_tile, NAME, MF, BIG, NKS, AF_OFF, W2F_OFF, WS_BYTES, DBG_OFF
QF_OFF = 0x0C00000
FLG_OFF = 0x1100000
KVA_OFF = 0x1000000

def code_prefetch(p, start, end, vd, va, sb, sa, sc):
    lbl = f"CP_{start}"
    p.raw(f"    s_getpc_b64 {sb}\n{lbl}:")
    p.raw(f"    s_sub_u32 {sb[0]}, {sb[0]}, {lbl}-{start}\n    s_subb_u32 {sb[1]}, {sb[1]}, 0")
    p.I("s_lshr_b32", sa, S(2), 3); p.I("s_lshl_b32", sc, S(3), 5); p.I("s_add_u32", sa, sa, sc); p.I("s_lshl_b32", sa, sa, 10)
    p.raw(f"    s_cmp_lt_u32 {sa}, {end}-{start}-1024\n    s_cbranch_scc0 {lbl}_SKIP")
    p.I("v_lshl_add_u32", va, V(0), 4, sa)
    p.raw(f"    global_load_dwordx4 {vd}, {va}, {sb}\n{lbl}_SKIP:")

def split(L, n):
    k = (len(L) + n - 1) // n
    return [L[i * k:(i + 1) * k] for i in range(n)]

def softmax_core(p, P, E, tmp, pos, neg, vmask, sL):
    mx, mn, t0, t1, sp, sn, sp2, sn2 = [tmp[i] for i in range(8)]
    p.I("v_max3_f32", mx, P[0], P[1], P[2])
    p.I("v_min3_f32", mn, P[0], P[1], P[2])
    for i in range(6):
        p.I("v_max3_f32", mx, mx, P[3 + 2 * i], P[4 + 2 * i])
        p.I("v_min3_f32", mn, mn, P[3 + 2 * i], P[4 + 2 * i])
    p.I("v_max_f32", mx, mx, P[15])
    p.I("v_min_f32", mn, mn, P[15])
    p.I("v_mov_b32", t0, mx)
    p.I("v_mov_b32", t1, mn)
    p.I("v_permlane32_swap_b32", mx, t0)
    p.I("v_permlane32_swap_b32", mn, t1)
    p.I("v_max_f32", mx, mx, t0)
    p.I("v_min_f32", mn, mn, t1)
    p.I("v_mul_f32", mx, sL, mx)
    p.I("v_mul_f32", mn, sL, mn)
    for i in range(16): p.I("v_fma_f32", E[i], Neg(P[i]), sL, mn)
    for i in range(16): p.I("v_fma_f32", P[i], P[i], sL, Neg(mx))
    for i in range(16): p.I("v_exp_f32", E[i], E[i])
    for i in range(16): p.I("v_exp_f32", P[i], P[i])
    p.I("v_add_f32", sn, E[0], E[1]); p.I("v_add_f32", sn2, E[2], E[3])
    p.I("v_add_f32", sp, P[0], P[1]); p.I("v_add_f32", sp2, P[2], P[3])
    for i in range(4, 12, 2):
        p.I("v_add_f32", sn, sn, E[i]); p.I("v_add_f32", sn2, sn2, E[i + 1])
        p.I("v_add_f32", sp, sp, P[i]); p.I("v_add_f32", sp2, sp2, P[i + 1])
    for i in range(12, 16, 2):
        p.I("v_fmac_f32", sn, E[i], vmask); p.I("v_fmac_f32", sn2, E[i + 1], vmask)
        p.I("v_fmac_f32", sp, P[i], vmask); p.I("v_fmac_f32", sp2, P[i + 1], vmask)
    p.I("v_add_f32", sp, sp, sp2); p.I("v_add_f32", sn, sn, sn2)
    p.I("v_mov_b32", t0, sp); p.I("v_mov_b32", t1, sn)
    p.I("v_permlane32_swap_b32", sp, t0)
    p.I("v_permlane32_swap_b32", sn, t1)
    p.I("v_add_f32", sp, sp, t0); p.I("v_add_f32", sn, sn, t1)
    p.I("v_rcp_f32", sp, sp); p.I("v_rcp_f32", sn, sn)
    for i in range(16): p.I("v_mul_f32", P[i], P[i], sp)
    for i in range(16): p.I("v_mul_f32", E[i], E[i], sn)
    for i in range(8): p.I("v_cvt_pk_bf16_f32", pos[i], P[2 * i], P[2 * i + 1])
    for i in range(8): p.I("v_cvt_pk_bf16_f32", neg[i], E[2 * i], E[2 * i + 1])

def wphi_gather(q, WT, SPHI, sHead, sT, lane, u1, u2, u3, u4, u5):
    q.I("v_and_b32", u1, 31, lane); q.I("v_lshrrev_b32", u2, 5, lane); q.I("v_mov_b32", u5, BIG)
    q.I("v_subrev_u32", u3, 24, u1)
    q.I("v_cmp_lt_u32", VCC, 27, u1)
    q.I("v_cndmask_b32", u3, u1, u3, VCC)
    q.I("v_lshlrev_b32", u3, 1, u3)
    q.I("v_mul_u32_u24", u4, 4 * 56, u2)
    q.I("v_add_u32", u3, u3, u4)
    q.I("s_mul_i32", sT, sHead, 1568)
    q.I("v_add_u32", u3, sT, u3)
    q.I("v_cmp_eq_u32", VCC, 1, u2)
    q.I("v_cndmask_b32", u4, u3, u5, VCC)
    for s in range(2):
        for j in range(8):
            d0 = 16 * s + 8 * (j >> 2) + (j & 3)
            q.I("buffer_load_ushort", WT[8 * s + j], u4 if d0 + 4 >= 28 else u3, SPHI, 0, mods=f"offen offset:{d0*56}")

XYS = 16384; NXY = 6; KVB = XYS * NXY; PAGE = 8192; NKV = 3
ASB = KVB + NKV * PAGE; ABLK = 32 * 528
K1_LDS = ASB + 2 * ABLK
KVL = ASB + ABLK
KVROW = 320
KVP_L = 2 * XYS

lane = V(0)
XR = V(8, 56)
def xr(b, g): return XR.sub(8 * b + 4 * g, 4)
ACC = [V(64 + 16 * i, 16) for i in range(6)]
BF = [[V(160 + 12 * s + 4 * t, 4) for t in range(3)] for s in range(2)]
AFr = [[V(184 + 8 * s + 4 * i, 4) for i in range(2)] for s in range(2)]
LT = V(200, 16)
vBt = [[V(216 + 2 * t), V(217 + 2 * t)] for t in range(3)]
vAw, vAr, vD0, vDX, vDY, vSt = [V(222 + i) for i in range(6)]
vR = [V(228), V(229)]; vNM = [V(230), V(231)]
vMask, vC2, vTk, vL0 = V(232), V(233), V(234), V(235)
u1, u2, u3, u4, u5 = [V(236 + i) for i in range(5)]
WPHI = V(244, 8)
sW = S(3); sR, sJ, sRot = S(26), S(27), S(72)
SX, SQKV, SXs, SYs, SWS, SPHI, SD, SW2 = [S(28 + 4 * i, 4) for i in range(8)]
sT0, sT1, sT2, sT3 = S(60), S(61), S(62), S(63)
sO0, sOX, sLdsW, sL = S(64), S(65), S(66), S(67)
sM28 = S(68, 2)
sOut, sW2d = S(70), S(71)
sZ, sFl, sStr, sEnd = S(73), S(74), S(75), S(76)
a0, a1, a2 = S(77), S(78), S(79)
sG = S(58)

def dma_xy(q, c):
    slot = (c % NXY) * XYS
    q.I("s_add_u32", M0, sLdsW, slot)
    q.I("buffer_load_dwordx4", vDX, SXs, sOX, mods="offen lds", tag=f"dma{c}")
    q.I("s_add_u32", M0, sLdsW, slot + PAGE)
    q.I("buffer_load_dwordx4", vDY, SYs, sOX, mods="offen lds", tag=f"dma{c}")
    if c < 13:
        q.I("s_add_u32", sOX, sOX, sStr)
        if c % 2 == 1:
            q.I("s_cmp_eq_u32", sOX, sEnd); q.I("s_cselect_b32", sOX, 0, sOX)
def dma_kv(q, b):
    q.I("s_add_u32", M0, sLdsW, KVB + (b % NKV) * PAGE)
    q.I("buffer_load_dwordx4", vD0, SQKV, sO0, mods="offen lds", tag=f"kv{b}")
    if b < 6:
        q.I("s_add_u32", sO0, sO0, 64 * 2688); q.I("s_cmp_eq_u32", sO0, 448 * 2688); q.I("s_cselect_b32", sO0, 0, sO0)
def ln_unit(q, b, g):
    x = xr(b, g); T = LT.sub(0, 8)
    for i in range(4):
        q.I("v_lshlrev_b32", T[2 * i], 16, x[i])
        q.I("v_and_b32", T[2 * i + 1], 0xFFFF0000, x[i])
    for i in range(8): q.I("v_fma_f32", T[i], T[i], vR[g], vNM[g])
    for i in range(4): q.I("v_cvt_pk_bf16_f32", x[i], T[2 * i], T[2 * i + 1])
def a_write(q, b, g):
    q.I("ds_write_b128", vAw, xr(b, g), mods=f"offset:{(b % 2) * ABLK + g * 128}", tag=f"aw{b}")

def k1_common(p, cfg, st):
    t1, t2, t3, t4, t5, t6, t7 = [V(i) for i in range(1, 8)]
    p.I("s_cmp_ge_u32", S(2), 256)
    p.raw("    s_cbranch_scc1 K1_END")
    p.I("s_load_dwordx8", S(4, 8), S(0, 2), 0)
    p.I("s_load_dwordx8", S(12, 8), S(0, 2), 32)
    p.I("s_load_dwordx4", S(20, 4), S(0, 2), 64)
    p.I("s_load_dwordx2", S(24, 2), S(0, 2), 80)
    st.stamp(p, True); st.stamp(p)
    p.I("v_lshrrev_b32", V(1), 6, V(0))
    p.I("v_readfirstlane_b32", S(3), V(1))
    p.I("v_and_b32", V(0), 63, V(0))
    p.I("s_and_b32", sT0, S(2), 7); p.I("s_lshr_b32", sT1, S(2), 3)
    lr = {0: 3, 2: 2, 1: 1}[cfg["k1map"]]
    nxr = 16 >> lr
    p.I("s_and_b32", sT2, sT0, nxr - 1); p.I("s_lshl_b32", sT2, sT2, lr)
    p.I("s_and_b32", sT3, sT1, (1 << lr) - 1); p.I("s_add_u32", sR, sT2, sT3)
    p.I("s_lshr_b32", sT2, sT0, 4 - lr)
    p.I("s_lshr_b32", sT1, sT1, lr)
    p.I("s_lshl_b32", sJ, sT1, lr - 1); p.I("s_add_u32", sJ, sJ, sT2)
    p.I("s_lshl_b32", sRot, sT3, 3 - lr)
    p.I("s_and_b32", a0, sT0, nxr - 1); p.I("s_add_u32", sRot, sRot, a0)
    p.I("s_cmp_ge_u32", sRot, 7); p.I("s_cselect_b32", sT2, 7, 0); p.I("s_sub_u32", sRot, sRot, sT2)
    p.I("s_cmp_ge_u32", sRot, 7); p.I("s_cselect_b32", sT2, 7, 0); p.I("s_sub_u32", sRot, sRot, sT2)
    if lr == 3: p.I("s_lshl_b32", sG, sT1, 1)
    else: p.I("s_mov_b32", sG, sT1)
    if not cfg["xrot"]: p.I("s_mov_b32", sG, 0)
    p.I("s_add_u32", sG, sG, sW); p.I("s_and_b32", sG, sG, 7)
    r8, k8 = t1, t2
    p.I("v_lshrrev_b32", r8, 3, lane)
    p.I("v_and_b32", k8, 7, lane)
    p.I("s_lshl_b32", sT0, sR, 7); p.I("s_lshl_b32", sT1, sG, 4); p.I("s_add_u32", sT0, sT0, sT1)
    p.I("v_add_u32", t3, sT0, r8)
    p.I("v_mul_u32_u24", t3, 896, t3)
    p.I("v_lshl_add_u32", t3, k8, 4, t3)
    p.I("v_add_u32", t4, 8 * 896, t3)
    p.I("s_lshl_b32", sT0, sRot, 7)
    srd(p, SX.n, 4, 2048 * 896)
    for b in range(7):
        p.I("buffer_load_dwordx4", xr(b, 0), t3, SX, sT0, mods="offen")
        p.I("buffer_load_dwordx4", xr(b, 1), t4, SX, sT0, mods="offen")
        if b < 6:
            p.I("s_add_u32", sT0, sT0, 128); p.I("s_cmp_eq_u32", sT0, 896); p.I("s_cselect_b32", sT0, 0, sT0)
    if cfg["xbar"] == 2:
        p.I("s_cmp_lt_u32", sW, 4); p.raw("    s_cbranch_scc1 K1_NB0"); p.I("s_barrier"); p.label("K1_NB0")
    if cfg["cpref"]: code_prefetch(p, "k1_kernel", "CODE_END", V(64, 4), t3, S(56, 2), sT0, sT1)
    srd(p, SQKV.n, 6, 448 * 2688)
    p.I("s_lshl_b32", sT1, sJ, 8)
    p.I("s_sub_u32", sT2, sJ, 14); p.I("s_mul_i32", sT2, sT2, 448)
    p.I("s_mov_b32", a0, 2688); p.I("s_mov_b32", a1, 448 * 2688)
    p.I("s_cmp_lt_u32", sJ, 14)
    p.I("s_cselect_b32", SXs[0], S(14), S(6)); p.I("s_cselect_b32", SXs[1], S(15), S(7))
    p.I("s_cselect_b32", SYs[0], S(16), S(6)); p.I("s_cselect_b32", SYs[1], S(17), S(7))
    p.I("s_cselect_b32", a0, 3584, a0)
    p.I("s_cselect_b32", sEnd, 448 * 3584, a1)
    p.I("s_cselect_b32", sT1, sT1, sT2)
    p.I("s_cselect_b32", a1, 2, 0)
    p.I("s_cselect_b32", a2, 0, 224)
    p.I("s_and_b32", SXs[1], SXs[1], 0xFFFF); p.I("s_and_b32", SYs[1], SYs[1], 0xFFFF)
    p.I("s_mov_b32", SXs[2], sEnd); p.I("s_mov_b32", SYs[2], sEnd)
    p.I("s_mov_b32", SXs[3], 0x20000); p.I("s_mov_b32", SYs[3], 0x20000)
    p.I("s_lshl_b32", sStr, a0, 5)
    p.I("s_mul_i32", sOX, sRot, sStr); p.I("s_lshl_b32", sOX, sOX, 1)
    p.I("v_lshrrev_b32", t3, 4, lane)
    p.I("v_and_b32", t4, 15, lane)
    p.I("v_lshlrev_b32", t5, 2, t3); p.I("v_xor_b32", t4, t4, t5)
    p.I("s_lshl_b32", sT0, sW, 2)
    p.I("v_add_u32", t3, sT0, t3)
    p.I("v_mul_u32_u24", t3, a0, t3)
    p.I("v_add_u32", t3, sT1, t3)
    p.I("v_lshl_add_u32", vDX, t4, 4, t3)
    p.I("v_xor_b32", t4, a1, t4)
    p.I("v_lshl_add_u32", vDY, t4, 4, t3)
    p.I("v_add_u32", vDY, a2, vDY)
    p.I("s_lshl_b32", sLdsW, sW, 10)
    p.I("v_bfe_u32", t5, r8, 1, 1)
    p.I("v_lshlrev_b32", t5, 2, t5)
    p.I("v_xor_b32", t5, t5, k8)
    p.I("s_lshl_b32", sT0, sW, 3)
    p.I("v_add_u32", t6, sT0, r8)
    p.I("v_lshrrev_b32", t3, 2, t5); p.I("v_mul_u32_u24", t3, 896, t3)
    p.I("v_and_b32", t4, 3, t5); p.I("v_lshl_add_u32", t3, t4, 4, t3)
    p.I("v_mul_u32_u24", t4, 2688, t6); p.I("v_add_u32", t3, t3, t4)
    p.I("s_mul_i32", sT1, sJ, 56); p.I("s_add_u32", sT1, sT1, 896)
    p.I("v_add_u32", vD0, sT1, t3)
    p.I("s_mul_i32", sO0, sRot, 64 * 2688)
    p.I("v_mul_u32_u24", vAw, 528, k8)
    p.I("v_lshl_add_u32", vAw, r8, 4, vAw)
    p.I("s_lshr_b32", sT0, sG, 1); p.I("s_mul_i32", sT0, sT0, 8 * 528)
    p.I("s_and_b32", sT1, sG, 1); p.I("s_lshl_b32", sT2, sT1, 8)
    p.I("s_add_u32", sT0, sT0, sT2); p.I("s_add_u32", sT0, sT0, ASB)
    p.I("v_add_u32", vAw, sT0, vAw)
    p.I("s_and_b32", sT1, sW, 1)
    srd(p, SWS.n, 24, WS_BYTES)
    p.I("v_lshlrev_b32", vSt, 4, lane)
    p.I("v_and_b32", u1, 31, lane)
    p.I("v_lshrrev_b32", u2, 5, lane)
    p.I("v_mul_u32_u24", vAr, 528, u2)
    p.I("v_lshl_add_u32", vAr, u1, 4, vAr)
    p.I("s_mul_i32", sT2, sT1, 16 * 528); p.I("s_add_u32", sT2, sT2, ASB)
    p.I("v_add_u32", vAr, sT2, vAr)
    p.I("v_mov_b32", vC2, f2u(GC2))
    st.stamp(p)
    sm = [LT[0], LT[1]]; sq = [LT[2], LT[3]]; ones = LT[4]
    p.I("v_mov_b32", ones, 0x3F803F80)
    for r in sm + sq: p.I("v_mov_b32", r, 0)
    for b in range(7):
        for g in range(2):
            for i in range(4):
                p.I("v_dot2c_f32_bf16", sm[g], xr(b, g)[i], ones)
                p.I("v_dot2c_f32_bf16", sq[g], xr(b, g)[i], xr(b, g)[i])
    for mod in ("quad_perm:[1,0,3,2]", "quad_perm:[2,3,0,1]", "row_half_mirror"):
        for r in sm + sq:
            p.I("v_add_f32_dpp", r, r, r, mods=mod + " row_mask:0xf bank_mask:0xf")
    for g in range(2):
        p.I("v_mul_f32", sm[g], f2u(1.0 / 448), sm[g])
        p.I("v_mul_f32", sq[g], f2u(1.0 / 448), sq[g])
    for g in range(2): p.I("v_fma_f32", sq[g], Neg(sm[g]), sm[g], sq[g])
    for g in range(2): p.I("v_max_f32", sq[g], 0, sq[g])
    for g in range(2): p.I("v_add_f32", sq[g], f2u(1e-5), sq[g])
    for g in range(2): p.I("v_rsq_f32", vR[g], sq[g])
    for g in range(2): p.I("v_mul_f32_e64", vNM[g], Neg(sm[g]), vR[g])
    st.stamp(p)
    p.I("s_lshr_b32", a0, sStr, 1)
    if cfg["xbar"] == 2:
        p.I("s_cmp_ge_u32", sW, 4); p.raw("    s_cbranch_scc1 K1_NB1"); p.I("s_barrier"); p.label("K1_NB1")
    p.I("s_cmp_ge_u32", sW, 4)
    p.raw("    s_cbranch_scc1 K1_NODMA")
    p.I("s_mov_b32", a1, sOX)
    for c in range(2):
        for hh in range(2):
            if hh: p.I("s_add_u32", a2, a1, a0)
            so = a2 if hh else a1
            p.I("s_add_u32", M0, sLdsW, c * XYS + hh * 4096)
            p.I("buffer_load_dwordx4", vDX, SXs, so, mods="offen lds", tag=f"dma{c}")
            p.I("s_add_u32", M0, sLdsW, c * XYS + PAGE + hh * 4096)
            p.I("buffer_load_dwordx4", vDY, SYs, so, mods="offen lds", tag=f"dma{c}")
        if c == 0:
            p.I("s_add_u32", a1, a1, sStr)
            p.I("s_add_u32", a2, sO0, 32 * 2688)
            p.I("s_add_u32", M0, sLdsW, KVB)
            p.I("buffer_load_dwordx4", vD0, SQKV, sO0, mods="offen lds", tag="kv0")
            p.I("s_add_u32", M0, sLdsW, KVB + 4096)
            p.I("buffer_load_dwordx4", vD0, SQKV, a2, mods="offen lds", tag="kv0")
    p.label("K1_NODMA")
    p.I("s_add_u32", sOX, sOX, sStr); p.I("s_add_u32", sOX, sOX, sStr)
    p.I("s_cmp_eq_u32", sOX, sEnd); p.I("s_cselect_b32", sOX, 0, sOX)
    p.I("s_add_u32", sO0, sO0, 64 * 2688); p.I("s_cmp_eq_u32", sO0, 448 * 2688); p.I("s_cselect_b32", sO0, 0, sO0)
    ln_unit(p, 0, 0); a_write(p, 0, 0); ln_unit(p, 0, 1); a_write(p, 0, 1)
    for c in range(2, cfg["npre"]): dma_xy(p, c)
    dma_kv(p, 1)
    p.I("s_cmp_ge_u32", sJ, 14)
    p.raw("    s_cbranch_scc1 K1_Q")
    p.I("s_cmp_ge_u32", S(3), 4)
    p.raw("    s_cbranch_scc1 K1_F1")

def gen_k1(cfg):
    name = "k1_kernel"
    txt = kernel_header(name)
    first = True
    for typ in ("F", "Q"):
        for grp in (0, 1):
            p = Prog(); st = Stamps(cfg["stamps"], 0)
            if cfg.get("its") is not None:
                orig = st.stamp
                def stamp2(pp, real=False, force=False, orig=orig):
                    if real or force: orig(pp, real)
                st.stamp = stamp2
            k1_common(p, cfg, st)
            mark = p.raw("; ---- role code ----")
            if typ == "Q" and grp == 0:
                p.label("K1_Q"); p.I("s_cmp_ge_u32", S(3), 4); p.raw("    s_cbranch_scc1 K1_Q1")
            elif grp == 1: p.label(f"K1_{typ}1")
            k1_role(p, typ, grp, cfg, st)
            L = finalize(p)
            k = L.index(mark)
            txt += render(L if first else L[k:])
            first = False
    txt += "K1_END:\n    s_endpgm\n"
    return txt, kernel_desc(name, 256)

def k1_role(p, typ, grp, cfg, st):
    t1, t2, t3, t4, t5, t6, t7 = [V(i) for i in range(1, 8)]
    stp = " sc1" if cfg["sc1"] else ""
    NT = 3
    ch, r4, cq = t3, t4, t5
    p.I("v_bfe_u32", ch, lane, 4, 1); p.I("v_bfe_u32", r4, lane, 2, 2); p.I("v_and_b32", cq, 3, lane)
    p.I("v_lshl_add_u32", t6, u2, 3, r4)
    p.I("v_lshlrev_b32", cq, 3, cq)
    p.I("v_lshl_add_u32", t1, ch, 5, cq)
    p.I("v_lshlrev_b32", t7, 6, r4)
    p.I("s_lshr_b32", sT0, sW, 1); p.I("s_and_b32", sT0, sT0, 1)
    if grp == 0: p.I("s_mul_i32", sT1, sT0, 3)
    else: p.I("s_add_u32", sT1, sT0, 6)
    nxy = 3 if grp == 0 else 1
    for t in range(nxy):
        if t: p.I("s_add_u32", sT1, sT1, 1)
        if typ == "F":
            p.I("s_lshl_b32", sT2, sT1, 5)
            p.I("v_xor_b32", t2, sT2, t1); p.I("v_xor_b32", t2, t2, t7)
            p.I("v_lshl_add_u32", t2, ch, 13, t2)
        else:
            p.I("s_and_b32", sT2, sT1, 3); p.I("s_mul_i32", sT2, sT2, 56)
            p.I("s_lshr_b32", sT3, sT1, 2); p.I("s_lshl_b32", sT3, sT3, 13)
            p.I("v_add_u32", t2, sT2, t1); p.I("v_xor_b32", t2, t2, t7)
            p.I("v_add_u32", t2, sT3, t2)
        p.I("v_lshl_add_u32", vBt[t][0], t6, 8, t2)
        p.I("v_add_u32", vBt[t][1], 3 * XYS, vBt[t][0])
    if grp == 1:
        p.I("v_bfe_u32", t7, lane, 3, 1); p.I("v_lshlrev_b32", t7, 6, t7)
        p.I("v_xor_b32", t2, t1, t7)
        p.I("v_lshl_add_u32", t2, t6, 7, t2)
        p.I("v_add_u32", vBt[1][0], KVB, t2)
        p.I("v_xor_b32", vBt[2][0], 64, vBt[1][0])
    p.I("s_and_b32", sT2, sW, 1); p.I("s_lshl_b32", sT2, sT2, 1); p.I("s_lshl_b32", sT3, sR, 2); p.I("s_add_u32", sT2, sT2, sT3)
    if nxy > 1: p.I("s_sub_u32", sT1, sT1, nxy - 1)
    if typ == "F":
        p.I("s_mul_i32", sOut, sT2, NKS * 1024)
        p.I("s_lshl_b32", sT3, sJ, 3); p.I("s_add_u32", sT3, sT3, sT1); p.I("s_lshl_b32", sT3, sT3, 10)
        p.I("s_add_u32", sOut, sOut, sT3)
        RTS, TS = NKS * 1024, 1024
    else:
        p.I("s_lshl_b32", sOut, sT2, 15)
        p.I("s_sub_u32", sT3, sJ, 14); p.I("s_lshl_b32", sT3, sT3, 3); p.I("s_add_u32", sT3, sT3, sT1); p.I("s_lshl_b32", sT3, sT3, 11)
        p.I("s_add_u32", sOut, sOut, sT3); p.I("s_add_u32", sOut, sOut, QF_OFF)
        RTS, TS = 1 << 15, 2048
    if grp == 1:
        p.I("s_mul_i32", sT3, sT0, 8 * 528)
        p.I("v_add_u32", u3, 8 * 528, vAr); p.I("v_subrev_u32", u3, sT3, u3)
        p.I("v_add_u32", vAr, sT3, vAr)
        p.I("v_mov_b32", V(243), u3)
        p.I("s_mul_i32", sT3, sT0, RTS)
        p.I("s_add_u32", a0, sOut, RTS); p.I("s_sub_u32", a0, a0, sT3)
        p.I("s_add_u32", sOut, sOut, sT3)
        p.I("s_mov_b32", S(59), a0)
    vAr2 = V(243); sOut2 = S(59)
    ln_unit(p, 1, 0)
    st.stamp(p)

    def b_reads(c, ks, t):
        dst = BF[ks][t]
        if grp == 0 or t == 0:
            slot = c % NXY; var = slot // 3
            off = (slot % 3) * XYS + 16 * ks * 256
            return [Inst("ds_read_b64_tr_b16", (dst.sub(2 * pp, 2), vBt[t][var]), f"offset:{off + pp * 1024}") for pp in range(2)]
        off = ((c >> 1) % NKV) * PAGE + (32 * (c & 1) + 16 * ks) * 128
        return [Inst("ds_read_b64_tr_b16", (dst.sub(2 * pp, 2), vBt[t][0]), f"offset:{off + pp * 512}") for pp in range(2)]
    def a_read(c, ks, i):
        b = c >> 1; k4 = 2 * (c & 1) + ks
        if grp == 0: return Inst("ds_read_b128", (AFr[ks][i], vAr), f"offset:{(b % 2) * ABLK + (i * 4 + k4) * 2 * 528}")
        return Inst("ds_read_b128", (AFr[ks][i], vAr if i == 0 else vAr2), f"offset:{(b % 2) * ABLK + k4 * 2 * 528}")
    def reads(c, ks):
        return [a_read(c, ks, 0)] + b_reads(c, ks, 0) + [a_read(c, ks, 1)] + b_reads(c, ks, 1) + b_reads(c, ks, 2)
    def mfmas(c, ks):
        f = (c == 0 and ks == 0)
        M = lambda d, a, b: Inst(MF, (d, a, b, 0 if f else d))
        if grp == 0: return [M(ACC[2 * t + i], BF[ks][t], AFr[ks][i]) for t in range(3) for i in range(2)]
        return [M(ACC[0], BF[ks][0], AFr[ks][0]), M(ACC[1], BF[ks][0], AFr[ks][1]),
                M(ACC[2], BF[ks][1], AFr[ks][0]), M(ACC[3], AFr[ks][0], BF[ks][2])]

    seg = {n: Prog() for n in range(15)}
    W2T = XR.sub(0, 8); WT = XR.sub(8, 16)
    q = seg[cfg["w2it"]]
    q.I("v_mov_b32", u5, BIG)
    q.I("s_lshl_b32", sT0, S(2), 3); q.I("s_add_u32", sT0, sT0, sW)
    q.I("s_mul_i32", sT1, sT0, 0x1C72); q.I("s_lshr_b32", sT1, sT1, 20)
    q.I("s_mul_i32", sT2, sT1, 144); q.I("s_sub_u32", sT2, sT0, sT2)
    q.I("s_sub_u32", sT3, sT2, 112); q.I("s_lshr_b32", a0, sT3, 1); q.I("s_mul_i32", a0, a0, 28)
    q.I("s_and_b32", a1, sT2, 1); q.I("s_lshl_b32", a2, a1, 4); q.I("s_add_u32", a0, a0, a2)
    q.I("s_lshl_b32", a2, sT2, 4)
    q.I("s_cmp_lt_u32", sT2, 112)
    q.I("s_cselect_b32", a0, a2, a0)
    q.I("s_cselect_b32", SX[0], S(18), S(10))
    q.I("s_cselect_b32", SX[1], S(19), S(11))
    q.I("s_mov_b32", a2, 448 * 896)
    q.I("s_cselect_b32", SX[2], 1792 * 896, a2)
    q.I("s_cselect_b32", a1, 0, a1)
    q.I("s_and_b32", SX[1], SX[1], 0xFFFF)
    q.I("s_mul_i32", a0, a0, 896)
    q.I("s_lshl_b32", a2, sT1, 6); q.I("s_add_u32", a0, a0, a2)
    q.I("v_mul_u32_u24", u3, 4 * 896, u2)
    q.I("v_lshl_add_u32", u3, u1, 1, u3)
    q.I("v_add_u32", u3, a0, u3)
    q.I("v_and_b32", u4, a1, u2)
    q.I("v_cmp_eq_u32", VCC, 1, u4)
    q.I("v_add_u32", u4, 8 * 896, u3)
    q.I("v_cndmask_b32", u4, u4, u5, VCC)
    for j in range(8):
        q.I("buffer_load_ushort", W2T[j], u3 if j < 4 else u4, SX, 0, mods=f"offen offset:{(j&3)*896}")
    q.I("s_lshl_b32", sW2d, sT0, 10); q.I("s_add_u32", sW2d, sW2d, W2F_OFF)
    q.I("s_cmp_lt_u32", sT0, 14 * NKS)
    q.I("s_cselect_b32", sW2d, sW2d, BIG)
    IDN = XR.sub(24, 8)
    if grp == 1:
        q = seg[0]
        srd(q, SD.n, 22, 256)
        q.I("v_mov_b32", u5, BIG)
        q.I("v_cmp_eq_u32", VCC, 0, lane)
        q.I("v_cndmask_b32", vL0, u5, 0, VCC)
        q.I("s_lshl_b32", sT0, sJ, 2); q.I("s_add_u32", sT0, sT0, sW); q.I("s_sub_u32", sT0, sT0, 4)
        q.I("s_lshl_b32", sT1, sT0, 11); q.I("s_add_u32", sT1, sT1, KVA_OFF)
        q.I("s_lshl_b32", sT2, sT0, 6); q.I("s_add_u32", sT2, sT2, FLG_OFF)
        q.I("s_lshl_b32", sFl, sT0, 2)
        q.I("s_lshl_b32", sZ, sJ, 13); q.I("s_add_u32", sZ, sZ, KVA_OFF)
        q.I("s_cmp_eq_u32", sR, sJ)
        q.I("s_cselect_b32", sT2, sT2, BIG)
        q.I("s_cselect_b32", sT1, sT1, BIG)
        q.I("s_cselect_b32", sFl, sFl, BIG)
        ZR = V(128, 4)
        for i in range(4): q.I("v_mov_b32", ZR[i], 0)
        for s in range(2): q.I("buffer_store_dwordx4", ZR, vSt, SWS, sT1, mods=f"offen offset:{s*1024} sc1", tag="zs")
        q.I("v_cmp_gt_u32", VCC, 4, lane)
        q.I("v_cndmask_b32", u3, u5, vSt, VCC)
        q.I("buffer_store_dwordx4", ZR, u3, SWS, sT2, mods="offen")
        q = seg[5]
        q.I("v_mov_b32", vTk, 1)
        q.waittag("zs")
        q.I("buffer_store_dword", vTk, vL0, SD, sFl, mods="offen sc1")
        q = seg[cfg["w2it"] + 1]
        srd(q, SPHI.n, 8, 16 * 1568)
        q.I("s_mov_b32", sL, f2u(LOG2E))
        wphi_gather(q, WT, SPHI, sJ, sT0, lane, u1, u2, u3, u4, u5)
        q.I("v_cmp_eq_u32", VCC, 0, u2)
        q.I("v_cndmask_b32", vMask, 0, 1.0, VCC)
        q.I("v_lshlrev_b32", u3, 2, lane)
        q.I("v_and_b32", u3, 12, u3)
        q.I("s_lshl_b32", sFl, sJ, 4)
        q.I("v_mov_b32", vL0, u3)
        q.I("buffer_load_dword", vTk, vL0, SD, sFl, mods="offen sc1")
        q = seg[12]
        q.I("v_cmp_eq_u32", sM28, 28, u1)
        q.I("v_lshlrev_b32", u3, 2, u2); q.I("v_sub_u32", u3, u1, u3)
        q.I("v_and_b32", u4, 1, u3); q.I("v_lshlrev_b32", u4, 4, u4); q.I("v_mov_b32", u5, 0x3F80); q.I("v_lshlrev_b32", u4, u4, u5)
        q.I("v_lshrrev_b32", u3, 1, u3)
        for s in range(2):
            for i in range(4):
                f0 = 16 * s + 8 * ((2 * i) >> 2) + ((2 * i) & 3)
                q.I("v_cmp_eq_u32", VCC, f0 // 2, u3)
                q.I("v_cndmask_b32", IDN[4 * s + i], 0, u4, VCC)
        q = seg[13]
        for i in range(8): q.I("v_lshl_or_b32", WPHI[i], WT[2 * i + 1], 16, WT[2 * i])
    q = seg[12]
    q.I("v_mov_b32", LT[8], 0); q.I("v_mov_b32", LT[9], KVL)
    q.I("ds_write_b32", LT[9], LT[8], tag="zl")

    p.waittag("dma0", "dma1", "kv0", "aw0")
    p.I("s_barrier")
    st.stamp(p)
    p.L.extend(reads(0, 0))
    nxt = cfg["npre"]
    for c in range(14):
        fill = Prog()
        ln = Prog()
        if c % 2 == 0:
            b = c // 2 + 1
            if b < 7: a_write(ln, b, 0); ln_unit(ln, b, 1); a_write(ln, b, 1)
        else:
            b = (c + 3) // 2
            if b < 7: ln_unit(ln, b, 0)
        dm = Prog()
        cnt = 0
        while nxt < 14 and nxt <= c + cfg["la"] and cnt < 2:
            dma_xy(dm, nxt); nxt += 1; cnt += 1
        kvp = cfg["kvodd"]
        if c % 2 == kvp and c // 2 + 2 < 7: dma_kv(dm, c // 2 + 2)
        if cfg["spread"]:
            groups = []; cur = []
            for i in dm.L:
                cur.append(i)
                if i.kind == "dma": groups.append(cur); cur = []
            if groups: groups[-1] += cur
            n = len(groups)
            step = max(1, len(ln.L) // max(1, n))
            k = 0
            for gi in range(n):
                fill.extend(groups[gi]); fill.extend(ln.L[k:k + step]); k += step
            fill.extend(ln.L[k:])
        else:
            fill.extend(ln); fill.extend(dm)
        if cfg.get("no_dma"): fill.L = [i for i in fill.L if i.kind != "dma"]
        if cfg.get("no_lnw"): fill.L = [i for i in fill.L if i.kind != "lwrite"]
        if cfg.get("no_lnv"): fill.L = [i for i in fill.L if i.kind != "valu"]
        fill.extend(seg[c])
        F = fill.L
        nm = 12 if grp == 0 else 8
        per = len(F) / max(1.0, nm * cfg["front"] / 100.0)
        acc = 0.0; fi = 0
        if cfg["pp"]:
            per = cfg["ppin"] / 10.0
            if grp == 1:
                nin = min(len(F), int(per * nm))
                p.L.extend(F[:len(F) - nin]); fi = len(F) - nin
        if cfg["prio"] and cfg["pp"]: p.I("s_setprio", 1)
        for ks in range(2):
            nc, nks = (c, 1) if ks == 0 else (c + 1, 0)
            rd = reads(nc, nks) if nc < 14 else []
            ms = mfmas(c, ks)
            rp = 2 if grp == 0 else 3
            for m in ms:
                p.L.append(m)
                p.L.extend(rd[:rp]); rd = rd[rp:]
                acc += per
                while acc >= 1 and fi < len(F):
                    p.L.append(F[fi]); fi += 1; acc -= 1
        if cfg["prio"] and cfg["pp"]: p.I("s_setprio", 0)
        p.L.extend(F[fi:])
        if c + 1 < 14:
            if cfg.get("its") is not None and cfg["its"] <= c < cfg["its"] + 4: st.stamp(p, force=True)
            p.waittag(f"dma{c+2}", f"kv{(c+2)//2}", f"aw{(c+2)//2}", "zl")
            p.I("s_barrier")
            if cfg.get("its") is not None and cfg["its"] <= c < cfg["its"] + 4: st.stamp(p, force=True)
    st.stamp(p)
    OUT = V(160, 40); TMP = XR.sub(32, 24)
    cnt = [0]
    def tile_epi(acc, so, off):
        k = cnt[0]; cnt[0] += 1
        if typ == "F":
            o = OUT.sub(4 * (k % 6), 4)
            gelu_tile(p, acc, TMP.sub(8 * (k % 2), 8), o, vC2)
            p.I("buffer_store_dwordx4", o, vSt, SWS, so, mods=f"offen offset:{off}" + stp)
        else:
            o = OUT.sub(8 * (k % 4), 8)
            for i in range(8): p.I("v_cvt_pk_bf16_f32", o[i], acc[2 * i], acc[2 * i + 1])
            for s in range(2): p.I("buffer_store_dwordx4", o.sub(4 * s, 4), vSt, SWS, so, mods=f"offen offset:{off + s*1024}" + stp)
    def w2_store():
        for i in range(4): p.I("v_lshl_or_b32", W2T[i], W2T[2 * i + 1], 16, W2T[2 * i])
        p.I("buffer_store_dwordx4", W2T.sub(0, 4), vSt, SWS, sW2d, mods="offen" + stp)
    if grp == 0:
        p.I("s_add_u32", sT3, sOut, RTS)
        p.I("s_add_u32", sT1, sOut, 2 * TS); p.I("s_add_u32", sT2, sT3, 2 * TS)
        for t in range(3):
            for i in range(2):
                if t < 2: tile_epi(ACC[2 * t + i], sOut if i == 0 else sT3, t * TS)
                else: tile_epi(ACC[2 * t + i], sT1 if i == 0 else sT2, 0)
        w2_store()
    else:
        K, Vv, PACC = ACC[2], ACC[3], ACC[4]
        qb = LT.sub(0, 8); VB = ACC[5].sub(0, 8); NEG = ACC[5].sub(8, 8); POS = LT.sub(0, 8)
        for i in range(8): p.I("v_cvt_pk_bf16_f32", qb[i], K[2 * i], K[2 * i + 1])
        p.I(MF, PACC, WPHI.sub(0, 4), qb.sub(0, 4), 0)
        p.I(MF, PACC, WPHI.sub(4, 4), qb.sub(4, 4), PACC)
        p.I("v_mov_b32", u5, 0x3F803F80)
        for r in range(8): p.I("v_cvt_pk_bf16_f32", VB[r], Vv[2 * r], Vv[2 * r + 1])
        for r in range(8): p.I("v_cndmask_b32", VB[r], VB[r], u5, sM28)
        softmax_core(p, PACC, K, LT.sub(8, 8), POS, NEG, vMask, sL)
        Tt = [K, PACC]
        for ft, src in enumerate((POS, NEG)):
            p.I(MF, Tt[ft], src.sub(0, 4), IDN.sub(0, 4), 0)
            p.I(MF, Tt[ft], src.sub(4, 4), IDN.sub(4, 4), Tt[ft])
        w2_store()
        p.I("v_lshlrev_b32", u4, 2, lane)
        PT = [LT.sub(0, 8), LT.sub(8, 8)]
        for ft in range(2):
            for r in range(8): p.I("v_cvt_pk_bf16_f32", PT[ft][r], Tt[ft][2 * r], Tt[ft][2 * r + 1])
        for ft in range(2):
            p.I(MF, Tt[ft], PT[ft].sub(0, 4), VB.sub(0, 4), 0)
            p.I(MF, Tt[ft], PT[ft].sub(4, 4), VB.sub(4, 4), Tt[ft])
        p.I("s_lshl_b32", sT0, sW, 13); p.I("s_sub_u32", sT0, sT0, 4 * 8192 - KVP_L)
        p.I("v_add_u32", u3, sT0, vSt)
        p.I("v_mov_b32", t1, KVL); p.I("v_mov_b32", t2, 1)
        for qd in range(8):
            p.I("ds_write_b128", u3, Tt[qd >> 2].sub(4 * (qd & 3), 4), mods=f"offset:{qd*1024}", tag="kva")
        tile_epi(ACC[0], sOut, 0)
        p.waittag("kva")
        lbl = f"K1_{typ}_"
        p.raw("    s_mov_b64 exec, 1\n    ds_add_u32 v1, v2\n    s_mov_b64 exec, -1")
        tile_epi(ACC[1], sOut2, 0)
        p.raw(f"    s_mov_b32 s61, 0\n{lbl}LSPIN:\n    ds_read_b32 v3, v1\n    s_add_u32 s61, s61, 1\n    s_lshr_b32 s62, s61, 18\n    s_waitcnt lgkmcnt(0)\n    s_nop 1\n    v_readfirstlane_b32 s60, v3\n    s_nop 3\n    s_or_b32 s60, s60, s62\n    s_cmp_lt_u32 s60, 4\n    s_cbranch_scc1 {lbl}LSPIN")
        p.I("s_lshl_b32", sT0, sW, 11); p.I("s_sub_u32", sT0, sT0, 4 * 2048)
        p.I("s_add_u32", sZ, sZ, sT0)
        p.I("s_add_u32", sT0, sT0, KVP_L)
        p.I("v_add_u32", t1, sT0, u4)
        R2 = V(128, 32)
        for e in range(8):
            p.I("ds_read2st64_b32", R2.sub(4 * e, 2), t1, mods=f"offset0:{e} offset1:{e+32}")
            p.I("ds_read2st64_b32", R2.sub(4 * e + 2, 2), t1, mods=f"offset0:{e+64} offset1:{e+96}")
        p.I("v_cmp_ne_u32", VCC, 1, vTk)
        p.raw(f"    s_nop 4\n    s_cbranch_vccz {lbl}OK\n    s_mov_b32 s61, 0\n{lbl}SPIN:\n    s_sleep 2\n    buffer_load_dword v234, v235, s[52:55], s74 offen sc1\n    s_add_u32 s61, s61, 1\n    s_cmp_gt_u32 s61, 0x20000\n    s_cbranch_scc1 {lbl}OK\n    s_waitcnt vmcnt(0)\n    v_cmp_ne_u32 vcc, 1, v234\n    s_nop 4\n    s_cbranch_vccnz {lbl}SPIN\n{lbl}OK:")
        for e in range(8):
            p.I("v_add_f32", R2[4 * e], R2[4 * e], R2[4 * e + 1]); p.I("v_add_f32", R2[4 * e + 2], R2[4 * e + 2], R2[4 * e + 3])
            p.I("v_add_f32", R2[4 * e], R2[4 * e], R2[4 * e + 2])
            p.I("buffer_atomic_add_f32", R2[4 * e], u4, SWS, sZ, mods=f"offen offset:{e * 256}")
    st.stamp(p); st.stamp(p, True)
    st.flush(p, SWS, sW, 8, t1, t3)
    p.I("s_endpgm")

K2_ROW = 272
K2_LDS = 4 * 64 * K2_ROW
def gen_k2(cfg):
    name = "k2_kernel"
    txt = kernel_header(name)
    p = Prog()
    p.I("s_cmp_ge_u32", S(2), 256)
    p.raw("    s_cbranch_scc1 K2_END")
    p.I("s_load_dwordx2", S(4, 2), S(0, 2), 0)
    p.I("s_load_dwordx4", S(8, 4), S(0, 2), 64)
    p.I("s_load_dwordx2", S(6, 2), S(0, 2), 80)
    p.I("s_load_dwordx2", S(50, 2), S(0, 2), 16)
    p.I("v_mov_b32", V(1), V(0))
    p.I("v_lshrrev_b32", V(2), 6, V(0))
    p.I("v_readfirstlane_b32", S(3), V(2))
    p.I("v_and_b32", V(0), 63, V(0))
    if cfg["cpref"]: code_prefetch(p, "k2_kernel", "CODE_END", V(124, 4), V(3), S(52, 2), S(54), S(55))
    p.I("s_cmp_ge_u32", S(3), 4)
    p.raw("    s_cbranch_scc1 K2_ATT")
    p.I("s_cmp_lt_u32", S(2), 32)
    p.raw("    s_cbranch_scc1 K2_END")
    txt += render(finalize(p))
    p = Prog(); k2_gemm(p, cfg); txt += render(finalize(p))
    p = Prog(); p.label("K2_ATT"); k2_att(p, cfg); txt += render(finalize(p))
    txt += "K2_END:\n    s_endpgm\n"
    return txt, kernel_desc(name, 96 + 16 * cfg["k2depth"] - 16 if cfg["k2depth"] == 3 else 256)

def k2_att(p, cfg):
    lane = V(0); sW = S(3); SWS = S(12, 4); SD = S(16, 4); SPHI = S(20, 4)
    st = Stamps(cfg["stamps"], 0x40000)
    if cfg["attprio"]: p.I("s_setprio", 3)
    st.stamp(p, True); st.stamp(p)
    vSt = V(2)
    u1, u2, u3, u4, u5 = V(3), V(4), V(5), V(6), V(7)
    p.I("v_lshlrev_b32", vSt, 4, lane)
    sH, sRT, sT0, sT1, sT2, sL = S(24), S(25), S(26), S(27), S(28), S(29)
    p.I("s_and_b32", sH, S(2), 15); p.I("s_lshr_b32", sRT, S(2), 4); p.I("s_lshl_b32", sRT, sRT, 2)
    p.I("s_add_u32", sRT, sRT, sW); p.I("s_sub_u32", sRT, sRT, 4)
    p.raw("    s_waitcnt lgkmcnt(0)")
    srd(p, SWS.n, 6, WS_BYTES); srd(p, SPHI.n, 50, 16 * 1568); srd(p, SD.n, 10, 256)
    QB = V(8, 8); WT = V(16, 16); KA = V(32, 32); WPHI = V(64, 8); P = V(72, 16); E = V(88, 16); TM = V(104, 8)
    POS, NEG = V(112, 8), V(120, 8)
    p.I("s_lshl_b32", sT0, sRT, 15); p.I("s_lshl_b32", sT1, sH, 11); p.I("s_add_u32", sT0, sT0, sT1); p.I("s_add_u32", sT0, sT0, QF_OFF)
    for s in range(2): p.I("buffer_load_dwordx4", QB.sub(4 * s, 4), vSt, SWS, sT0, mods=f"offen offset:{s*1024}")
    wphi_gather(p, WT, SPHI, sH, sT0, lane, u1, u2, u3, u4, u5)
    p.I("s_lshl_b32", sT0, sH, 13); p.I("s_add_u32", sT0, sT0, KVA_OFF); p.I("s_add_u32", sT1, sT0, 4096)
    for qd in range(8): p.I("buffer_load_dwordx4", KA.sub(4 * qd, 4), vSt, SWS, sT0 if qd < 4 else sT1, mods=f"offen offset:{(qd&3)*1024}")
    if cfg["k2bar"]: p.I("s_barrier")
    vMask = V(1)
    p.I("v_cmp_eq_u32", VCC, 0, u2)
    p.I("v_cndmask_b32", vMask, 0, 1.0, VCC)
    p.I("s_mov_b32", sL, f2u(LOG2E))
    st.stamp(p)
    for i in range(8): p.I("v_lshl_or_b32", WPHI[i], WT[2 * i + 1], 16, WT[2 * i])
    p.I(MF, P, WPHI.sub(0, 4), QB.sub(0, 4), 0)
    p.I(MF, P, WPHI.sub(4, 4), QB.sub(4, 4), P)
    st.stamp(p)
    softmax_core(p, P, E, TM, POS, NEG, vMask, sL)
    KF = WT
    for ft in range(2):
        for i in range(12, 16): p.I("v_mul_f32", KA[16 * ft + i], KA[16 * ft + i], vMask)
    for i in range(16): p.I("v_cvt_pk_bf16_f32", KF[i], KA[2 * i], KA[2 * i + 1])
    N = P
    for s in range(4):
        p.I(MF, N, KF.sub(4 * s, 4), (POS if s < 2 else NEG).sub(4 * (s & 1), 4), 0 if s == 0 else N)
    d0, d1 = TM[0], TM[1]
    p.I("s_mul_i32", sT0, sRT, NKS * 1024); p.I("s_lshl_b32", sT2, sH, 11); p.I("s_add_u32", sT0, sT0, sT2); p.I("s_add_u32", sT0, sT0, 112 * 1024)
    p.I("v_mov_b32", u3, 1)
    p.I("v_cmp_eq_u32", VCC, 0, lane)
    p.I("v_cndmask_b32", u4, u5, 0, VCC)
    p.I("s_lshl_b32", sT1, sRT, 6); p.I("s_lshl_b32", sT2, sH, 2); p.I("s_add_u32", sT1, sT1, sT2); p.I("s_add_u32", sT1, sT1, FLG_OFF)
    p.I("v_mov_b32", d0, N[12]); p.I("v_mov_b32", d1, N[12])
    p.I("v_permlane32_swap_b32", d0, d1)
    p.I("v_add_f32", d1, f2u(1e-6), d1)
    p.I("v_rcp_f32", d1, d1)
    for i in range(16): p.I("v_mul_f32", N[i], N[i], d1)
    T = QB
    for i in range(8): p.I("v_cvt_pk_bf16_f32", T[i], N[2 * i], N[2 * i + 1])
    for s in range(2): p.I("buffer_store_dwordx4", T.sub(4 * s, 4), vSt, SWS, sT0, mods=f"offen offset:{s*1024} sc1", tag="ost")
    st.stamp(p)
    p.waittag("ost")
    p.I("buffer_store_dword", u3, u4, SWS, sT1, mods="offen sc1")
    st.stamp(p); st.stamp(p); st.stamp(p, True)
    st.flush(p, SWS, sW, 8, V(4), V(5))
    p.I("s_endpgm")

def k2_gemm(p, cfg):
    lane = V(0); tid = V(1); sW = S(3); SWS = S(12, 4); SX = S(16, 4); SO = S(20, 4); SD = S(36, 4)
    D = cfg["k2depth"]
    st = Stamps(cfg["stamps"], 0x40000)
    st.stamp(p, True); st.stamp(p)
    sRB, sCB, sT0, sT1, sT2 = S(24), S(25), S(26), S(27), S(28)
    sA = [S(30), S(31)]; sB = [S(32), S(33)]
    sAo = [S(40), S(41)]; sBo = [S(42), S(43)]
    sFlag = S(44)
    p.I("s_sub_u32", sT2, S(2), 32)
    p.I("s_and_b32", sT0, sT2, 7); p.I("s_lshr_b32", sT1, sT2, 3)
    p.I("s_mul_i32", sT2, sT1, 37); p.I("s_lshr_b32", sT2, sT2, 8)
    p.I("s_lshl_b32", sRB, sT0, 2); p.I("s_add_u32", sRB, sRB, sT2)
    p.I("s_mul_i32", S(45), sT2, 7); p.I("s_sub_u32", sCB, sT1, S(45))
    p.I("s_mul_i32", sT0, sW, 28 * 1024)
    p.I("s_mul_i32", sT1, sRB, 2 * NKS * 1024); p.I("s_add_u32", sA[0], sT1, sT0)
    p.I("s_add_u32", sA[1], sA[0], NKS * 1024)
    p.I("s_mul_i32", sT2, sCB, 2 * NKS * 1024); p.I("s_add_u32", sT2, sT2, W2F_OFF); p.I("s_add_u32", sB[0], sT2, sT0)
    p.I("s_add_u32", sB[1], sB[0], NKS * 1024)
    p.I("s_lshl_b32", sT0, sW, 13); p.I("s_add_u32", sT0, sT0, 112 * 1024)
    p.I("s_add_u32", sAo[0], sT1, sT0); p.I("s_add_u32", sAo[1], sAo[0], NKS * 1024)
    p.I("s_add_u32", sBo[0], sT2, sT0); p.I("s_add_u32", sBo[1], sBo[0], NKS * 1024)
    VO = V(4, 7)
    p.I("v_lshlrev_b32", VO[0], 4, lane)
    for m in range(1, 7): p.I("v_add_u32", VO[m], 4096 * m, VO[0])
    p.raw("    s_waitcnt lgkmcnt(0)")
    srd(p, SWS.n, 6, WS_BYTES)
    ACC = [[V(16 + 32 * r + 16 * c, 16) for c in range(2)] for r in range(2)]
    vP = V(11); vZ = V(12)
    BUF = [V(80 + 16 * d, 16) for d in range(D)]
    def loads(k):
        b = BUF[k % D]; kk = k if k < 28 else k - 28
        m, o = kk // 4, (kk % 4) * 1024
        L = []
        srcs = (sA[0], sB[0], sA[1], sB[1]) if k < 28 else (sAo[0], sBo[0], sAo[1], sBo[1])
        for x, so in enumerate(srcs):
            sc = " sc1" if (k >= 28 and x in (0, 2)) else ""
            L.append(Inst("buffer_load_dwordx4", (b.sub(4 * x, 4), VO[m], SWS, so), f"offen offset:{o}{sc}"))
        return L
    if cfg["k2bar"]: p.I("s_barrier")
    for k in range(D): p.L.extend(loads(k))
    srd(p, SX.n, 4, 2048 * 896); srd(p, SO.n, 8, 2048 * 896); srd(p, SD.n, 10, 256)
    vG = V(13)
    p.I("v_lshrrev_b32", V(2), 3, tid); p.I("v_and_b32", V(3), 7, tid)
    p.I("s_lshl_b32", sT0, sRB, 6)
    p.I("v_add_u32", vG, sT0, V(2)); p.I("v_mul_u32_u24", vG, 896, vG)
    p.I("v_lshl_add_u32", vG, V(3), 4, vG)
    p.I("s_lshl_b32", sT0, sCB, 7); p.I("v_add_u32", vG, sT0, vG)
    p.I("s_mov_b32", sT1, 32 * 896)
    vLr = V(14)
    p.I("v_mul_u32_u24", vLr, K2_ROW, V(2)); p.I("v_lshl_add_u32", vLr, V(3), 5, vLr)
    vLw = V(15)
    p.I("v_and_b32", V(2), 31, lane); p.I("v_lshrrev_b32", V(3), 5, lane)
    p.I("v_mul_u32_u24", vLw, K2_ROW, V(2)); p.I("v_lshl_add_u32", vLw, V(3), 4, vLw)
    p.I("s_mul_i32", sT0, sW, 64 * K2_ROW); p.I("v_add_u32", vLw, sT0, vLw)
    p.I("s_lshl_b32", sFlag, sRB, 7); p.I("s_add_u32", sFlag, sFlag, FLG_OFF)
    p.I("v_lshlrev_b32", vZ, 2, V(2))
    st.stamp(p)
    kpoll = 28 - D - cfg["pollahead"]
    XV = V(4, 8)
    for k in range(36):
        b = BUF[k % D]
        if k == 1: st.stamp(p)
        for r in range(2):
            for c in range(2):
                p.I(MF, ACC[r][c], b.sub(4 + 8 * c, 4), b.sub(8 * r, 4), 0 if k == 0 else ACC[r][c])
        if k == kpoll:
            p.I("buffer_load_dword", vP, vZ, SWS, sFlag, mods="offen sc1")
        if k + D == 28:
            st.stamp(p)
            p.I("v_cmp_ne_u32", VCC, 1, vP)
            p.raw("    s_nop 4\n    s_cbranch_vccz K2_OK\n    s_mov_b32 s47, 0\nK2_SPIN:\n    s_sleep 8\n    buffer_load_dword v11, v12, s[12:15], s44 offen sc1\n    s_add_u32 s47, s47, 1\n    s_cmp_gt_u32 s47, 0x20000\n    s_cbranch_scc1 K2_OK\n    s_waitcnt vmcnt(0)\n    v_cmp_ne_u32 vcc, 1, v11\n    s_nop 4\n    s_cbranch_vccnz K2_SPIN\nK2_OK:")
            st.stamp(p)
        if k + D < 36: p.L.extend(loads(k + D))
        if k + D == 36:
            p.I("buffer_load_dwordx4", XV.sub(0, 4), vG, SX, 0, mods="offen")
            p.I("buffer_load_dwordx4", XV.sub(4, 4), vG, SX, sT1, mods="offen")
    for r in range(2):
        for c in range(2):
            for g in range(4):
                p.I("ds_write_b128", vLw, ACC[r][c].sub(4 * g, 4), mods=f"offset:{r*32*K2_ROW + (c*32+8*g)*4}", tag="pw")
    p.waittag("pw")
    p.I("s_barrier")
    RD = V(16, 64)
    for pp in range(2):
        for w in range(4):
            for hh in range(2):
                p.I("ds_read_b128", RD.sub(32 * pp + 8 * w + 4 * hh, 4), vLr, mods=f"offset:{w*64*K2_ROW + pp*32*K2_ROW + hh*16}")
    for pp in range(2):
        R = RD.sub(32 * pp, 32)
        for i in range(8): p.I("v_add_f32", R[i], R[i], R[8 + i])
        for i in range(8): p.I("v_add_f32", R[16 + i], R[16 + i], R[24 + i])
        Xr = XV.sub(4 * pp, 4); T = V(80, 8)
        for i in range(4):
            p.I("v_lshlrev_b32", T[2 * i], 16, Xr[i]); p.I("v_and_b32", T[2 * i + 1], 0xFFFF0000, Xr[i])
        for i in range(8): p.I("v_add_f32", R[i], R[i], R[16 + i])
        for i in range(8): p.I("v_add_f32", R[i], R[i], T[i])
        O = V(88 + 4 * pp, 4)
        for i in range(4): p.I("v_cvt_pk_bf16_f32", O[i], R[2 * i], R[2 * i + 1])
        p.I("buffer_store_dwordx4", O, vG, SO, 0 if pp == 0 else sT1, mods="offen")
    st.stamp(p); st.stamp(p, True)
    st.flush(p, SWS, sW, 8, V(2), V(3))
    p.I("s_endpgm")

def build(cfg):
    hdr = open("cdna_kernels/" + NAME + ".s.ref").read().split("\n")
    head = [l for l in hdr if l.startswith(";") and "@launch" not in l]
    head.append(f"; @launch kernel=k1_kernel grid=(256,1,1) block=(512,1,1) lds={K1_LDS}")
    head.append(f"; @launch kernel=k2_kernel grid=(256,1,1) block=(512,1,1) lds={K2_LDS}")
    out = "\n".join(head) + '\n.amdgcn_target "amdgcn-amd-amdhsa--gfx950"\n.text\n'
    descs = ""
    for g in (gen_k1, gen_k2):
        t, d = g(cfg); out += t; descs += ".p2align 6\n" + d
    out += "CODE_END:\n    s_endpgm\n" + '.section .rodata,"a"\n' + descs
    if cfg["align"]:
        import align
        out, a, b = align.align(out, cfg["minrun"])
        print("align: promoted", a, "nops", b)
    return out

if __name__ == "__main__":
    cfg = dict(k2bar=1, k1map=0, k2depth=5, stamps=0, rot=1, pollahead=2, sc1=1, npre=4, la=5, xbar=1, w2it=10, ke=4, dmaper=4, bahead=3, front=85, cpref=1, xrot=1, kvodd=1, spread=1, pp=1, ppin=0, prio=0, align=1, minrun=3, attprio=1)
    for a in sys.argv[2:]:
        k, v = a.split("="); cfg[k] = int(v)
    open(sys.argv[1], "w").write(build(cfg))
```

```python
import sys, struct
from asmgen import *
from gen2 import Stamps, srd, f2u, LOG2E, GC1, GC2, gelu_tile, NAME, MF, BIG, NKS, AF_OFF, W2F_OFF, WS_BYTES, DBG_OFF
QF_OFF = 0x0C00000
FLG_OFF = 0x1100000
KVA_OFF = 0x1000000

def code_prefetch(p, start, end, vd, va, sb, sa, sc):
    lbl = "CP_L"
    p.raw(f"    s_getpc_b64 {sb}\n{lbl}:")
    p.raw(f"    s_sub_u32 {sb[0]}, {sb[0]}, {lbl}-{start}\n    s_subb_u32 {sb[1]}, {sb[1]}, 0")
    p.I("s_lshr_b32", sa, S(2), 3); p.I("s_lshl_b32", sc, S(3), 5); p.I("s_add_u32", sa, sa, sc); p.I("s_lshl_b32", sa, sa, 10)
    p.raw(f"    s_cmp_lt_u32 {sa}, {end}-{start}-1024\n    s_cbranch_scc0 {lbl}_SKIP")
    p.I("v_lshl_add_u32", va, V(0), 4, sa)
    p.raw(f"    global_load_dwordx4 {vd}, {va}, {sb}\n{lbl}_SKIP:")

def split(L, n):
    k = (len(L) + n - 1) // n
    return [L[i * k:(i + 1) * k] for i in range(n)]

def softmax_core(p, P, E, tmp, pos, neg, vmask, sL):
    mx, mn, t0, t1, sp, sn, sp2, sn2 = [tmp[i] for i in range(8)]
    p.I("v_max3_f32", mx, P[0], P[1], P[2])
    p.I("v_min3_f32", mn, P[0], P[1], P[2])
    for i in range(6):
        p.I("v_max3_f32", mx, mx, P[3 + 2 * i], P[4 + 2 * i])
        p.I("v_min3_f32", mn, mn, P[3 + 2 * i], P[4 + 2 * i])
    p.I("v_max_f32", mx, mx, P[15])
    p.I("v_min_f32", mn, mn, P[15])
    p.I("v_mov_b32", t0, mx)
    p.I("v_mov_b32", t1, mn)
    p.I("v_permlane32_swap_b32", mx, t0)
    p.I("v_permlane32_swap_b32", mn, t1)
    p.I("v_max_f32", mx, mx, t0)
    p.I("v_min_f32", mn, mn, t1)
    p.I("v_mul_f32", mx, sL, mx)
    p.I("v_mul_f32", mn, sL, mn)
    for i in range(16): p.I("v_fma_f32", E[i], Neg(P[i]), sL, mn)
    for i in range(16): p.I("v_fma_f32", P[i], P[i], sL, Neg(mx))
    for i in range(16): p.I("v_exp_f32", E[i], E[i])
    for i in range(16): p.I("v_exp_f32", P[i], P[i])
    p.I("v_add_f32", sn, E[0], E[1]); p.I("v_add_f32", sn2, E[2], E[3])
    p.I("v_add_f32", sp, P[0], P[1]); p.I("v_add_f32", sp2, P[2], P[3])
    for i in range(4, 12, 2):
        p.I("v_add_f32", sn, sn, E[i]); p.I("v_add_f32", sn2, sn2, E[i + 1])
        p.I("v_add_f32", sp, sp, P[i]); p.I("v_add_f32", sp2, sp2, P[i + 1])
    for i in range(12, 16, 2):
        p.I("v_fmac_f32", sn, E[i], vmask); p.I("v_fmac_f32", sn2, E[i + 1], vmask)
        p.I("v_fmac_f32", sp, P[i], vmask); p.I("v_fmac_f32", sp2, P[i + 1], vmask)
    p.I("v_add_f32", sp, sp, sp2); p.I("v_add_f32", sn, sn, sn2)
    p.I("v_mov_b32", t0, sp); p.I("v_mov_b32", t1, sn)
    p.I("v_permlane32_swap_b32", sp, t0)
    p.I("v_permlane32_swap_b32", sn, t1)
    p.I("v_add_f32", sp, sp, t0); p.I("v_add_f32", sn, sn, t1)
    p.I("v_rcp_f32", sp, sp); p.I("v_rcp_f32", sn, sn)
    for i in range(16): p.I("v_mul_f32", P[i], P[i], sp)
    for i in range(16): p.I("v_mul_f32", E[i], E[i], sn)
    for i in range(8): p.I("v_cvt_pk_bf16_f32", pos[i], P[2 * i], P[2 * i + 1])
    for i in range(8): p.I("v_cvt_pk_bf16_f32", neg[i], E[2 * i], E[2 * i + 1])

def wphi_gather(q, WT, SPHI, sHead, sT, lane, u1, u2, u3, u4, u5):
    q.I("v_and_b32", u1, 31, lane); q.I("v_lshrrev_b32", u2, 5, lane); q.I("v_mov_b32", u5, BIG)
    q.I("v_subrev_u32", u3, 24, u1)
    q.I("v_cmp_lt_u32", VCC, 27, u1)
    q.I("v_cndmask_b32", u3, u1, u3, VCC)
    q.I("v_lshlrev_b32", u3, 1, u3)
    q.I("v_mul_u32_u24", u4, 4 * 56, u2)
    q.I("v_add_u32", u3, u3, u4)
    q.I("s_mul_i32", sT, sHead, 1568)
    q.I("v_add_u32", u3, sT, u3)
    q.I("v_cmp_eq_u32", VCC, 1, u2)
    q.I("v_cndmask_b32", u4, u3, u5, VCC)
    for s in range(2):
        for j in range(8):
            d0 = 16 * s + 8 * (j >> 2) + (j & 3)
            q.I("buffer_load_ushort", WT[8 * s + j], u4 if d0 + 4 >= 28 else u3, SPHI, 0, mods=f"offen offset:{d0*56}")

XYS = 16384; NXY = 6; KVB = XYS * NXY; PAGE = 8192; NKV = 3
ASB = KVB + NKV * PAGE; ABLK = 32 * 528
K1_LDS = ASB + 2 * ABLK
KVL = ASB + 32768
KVROW = 320
KVP_L = ASB
NB = 15; BRING = NB * 2048
HF_OFF = FLG_OFF; KF_OFF = FLG_OFF + 8192; OF_OFF = FLG_OFF + 12288

lane = V(0)
XR = V(8, 56)
def xr(b, g): return XR.sub(8 * b + 4 * g, 4)
ACC = [V(64 + 16 * i, 16) for i in range(6)]
BF = [[V(160 + 12 * s + 4 * t, 4) for t in range(3)] for s in range(2)]
AFr = [[V(184 + 8 * s + 4 * i, 4) for i in range(2)] for s in range(2)]
LT = V(200, 16)
vBt = [[V(216 + 2 * t), V(217 + 2 * t)] for t in range(3)]
vAw, vAr, vD0, vDX, vDY, vSt = [V(222 + i) for i in range(6)]
vR = [V(228), V(229)]; vNM = [V(230), V(231)]
vMask, vC2, vTk, vL0 = V(232), V(233), V(234), V(235)
u1, u2, u3, u4, u5 = [V(236 + i) for i in range(5)]
WPHI = V(244, 8)
sW = S(3); sR, sJ, sRot = S(26), S(27), S(72)
SX, SQKV, SXs, SYs, SWS, SPHI, SD, SW2 = [S(28 + 4 * i, 4) for i in range(8)]
sT0, sT1, sT2, sT3 = S(60), S(61), S(62), S(63)
sO0, sOX, sLdsW, sL = S(64), S(65), S(66), S(67)
sM28 = S(68, 2)
sOut, sW2d = S(70), S(71)
sZ, sFl, sStr, sEnd = S(73), S(74), S(75), S(76)
a0, a1, a2 = S(77), S(78), S(79)
sG = S(58)

def dma_xy(q, c):
    slot = (c % NXY) * XYS
    q.I("s_add_u32", M0, sLdsW, slot)
    q.I("buffer_load_dwordx4", vDX, SXs, sOX, mods="offen lds", tag=f"dma{c}")
    q.I("s_add_u32", M0, sLdsW, slot + PAGE)
    q.I("buffer_load_dwordx4", vDY, SYs, sOX, mods="offen lds", tag=f"dma{c}")
    if c < 13:
        q.I("s_add_u32", sOX, sOX, sStr)
        if c % 2 == 1:
            q.I("s_cmp_eq_u32", sOX, sEnd); q.I("s_cselect_b32", sOX, 0, sOX)
def dma_kv(q, b):
    q.I("s_add_u32", M0, sLdsW, KVB + (b % NKV) * PAGE)
    q.I("buffer_load_dwordx4", vD0, SQKV, sO0, mods="offen lds", tag=f"kv{b}")
    if b < 6:
        q.I("s_add_u32", sO0, sO0, 64 * 2688); q.I("s_cmp_eq_u32", sO0, 448 * 2688); q.I("s_cselect_b32", sO0, 0, sO0)
def ln_unit(q, b, g):
    x = xr(b, g); T = LT.sub(0, 8)
    for i in range(4):
        q.I("v_lshlrev_b32", T[2 * i], 16, x[i])
        q.I("v_and_b32", T[2 * i + 1], 0xFFFF0000, x[i])
    for i in range(8): q.I("v_fma_f32", T[i], T[i], vR[g], vNM[g])
    for i in range(4): q.I("v_cvt_pk_bf16_f32", x[i], T[2 * i], T[2 * i + 1])
def a_write(q, b, g):
    q.I("ds_write_b128", vAw, xr(b, g), mods=f"offset:{(b % 2) * ABLK + g * 128}", tag=f"aw{b}")

def k1_common(p, cfg, st):
    t1, t2, t3, t4, t5, t6, t7 = [V(i) for i in range(1, 8)]
    p.I("s_cmp_ge_u32", S(2), 256)
    p.raw("    s_cbranch_scc1 K1_END")
    p.I("s_load_dwordx8", S(4, 8), S(0, 2), 0)
    p.I("s_load_dwordx8", S(12, 8), S(0, 2), 32)
    p.I("s_load_dwordx4", S(20, 4), S(0, 2), 64)
    p.I("s_load_dwordx2", S(24, 2), S(0, 2), 80)
    st.stamp(p, True)
    if cfg["stamps"] != 2: st.stamp(p)
    p.I("v_lshrrev_b32", V(1), 6, V(0))
    p.I("v_readfirstlane_b32", S(3), V(1))
    p.I("v_and_b32", V(0), 63, V(0))
    p.I("s_and_b32", sT0, S(2), 7); p.I("s_lshr_b32", sT1, S(2), 3)
    lr = {0: 3, 2: 2, 1: 1}[cfg["k1map"]]
    nxr = 16 >> lr
    p.I("s_and_b32", sT2, sT0, nxr - 1); p.I("s_lshl_b32", sT2, sT2, lr)
    p.I("s_and_b32", sT3, sT1, (1 << lr) - 1); p.I("s_add_u32", sR, sT2, sT3)
    p.I("s_lshr_b32", sT2, sT0, 4 - lr)
    p.I("s_lshr_b32", sT1, sT1, lr)
    if cfg["jcont"]: p.I("s_lshl_b32", sJ, sT2, 5 - lr); p.I("s_add_u32", sJ, sJ, sT1)
    else: p.I("s_lshl_b32", sJ, sT1, lr - 1); p.I("s_add_u32", sJ, sJ, sT2)
    p.I("s_lshl_b32", sRot, sT3, 3 - lr)
    p.I("s_and_b32", a0, sT0, nxr - 1); p.I("s_add_u32", sRot, sRot, a0)
    p.I("s_cmp_ge_u32", sRot, 7); p.I("s_cselect_b32", sT2, 7, 0); p.I("s_sub_u32", sRot, sRot, sT2)
    p.I("s_cmp_ge_u32", sRot, 7); p.I("s_cselect_b32", sT2, 7, 0); p.I("s_sub_u32", sRot, sRot, sT2)
    if cfg["rot"] == 0: p.I("s_mov_b32", sRot, 0)
    elif cfg["rot"] == 2: p.I("s_and_b32", sRot, sT3, 1); p.I("s_mul_i32", sRot, sRot, 3)
    elif cfg["rot"] == 3: p.I("s_and_b32", sRot, sT3, 3); p.I("s_lshl_b32", sRot, sRot, 1)
    elif cfg["rot"] == 4: p.I("s_and_b32", sRot, sT3, 1)
    if lr == 3: p.I("s_lshl_b32", sG, sT1, 1)
    else: p.I("s_mov_b32", sG, sT1)
    if not cfg["xrot"]: p.I("s_mov_b32", sG, 0)
    p.I("s_add_u32", sG, sG, sW); p.I("s_and_b32", sG, sG, 7)
    r8, k8 = t1, t2
    p.I("v_lshrrev_b32", r8, 3, lane)
    p.I("v_and_b32", k8, 7, lane)
    p.I("s_lshl_b32", sT0, sR, 7); p.I("s_lshl_b32", sT1, sG, 4); p.I("s_add_u32", sT0, sT0, sT1)
    p.I("v_add_u32", t3, sT0, r8)
    p.I("v_mul_u32_u24", t3, 896, t3)
    p.I("v_lshl_add_u32", t3, k8, 4, t3)
    p.I("v_add_u32", t4, 8 * 896, t3)
    p.I("s_lshl_b32", sT0, sRot, 7)
    srd(p, SX.n, 4, 2048 * 896)
    for b in range(7):
        p.I("buffer_load_dwordx4", xr(b, 0), t3, SX, sT0, mods="offen")
        p.I("buffer_load_dwordx4", xr(b, 1), t4, SX, sT0, mods="offen")
        if b < 6:
            p.I("s_add_u32", sT0, sT0, 128); p.I("s_cmp_eq_u32", sT0, 896); p.I("s_cselect_b32", sT0, 0, sT0)
    if cfg["xbar"] == 2:
        p.I("s_cmp_lt_u32", sW, 4); p.raw("    s_cbranch_scc1 K1_NB0"); p.I("s_barrier"); p.label("K1_NB0")
    if cfg["cpref"]: code_prefetch(p, NAME + "_kernel", "CODE_END", V(64, 4), t3, S(56, 2), sT0, sT1)
    srd(p, SQKV.n, 6, 448 * 2688)
    p.I("s_lshl_b32", sT1, sJ, 8)
    p.I("s_sub_u32", sT2, sJ, 14); p.I("s_mul_i32", sT2, sT2, 448)
    p.I("s_mov_b32", a0, 2688); p.I("s_mov_b32", a1, 448 * 2688)
    p.I("s_cmp_lt_u32", sJ, 14)
    p.I("s_cselect_b32", SXs[0], S(14), S(6)); p.I("s_cselect_b32", SXs[1], S(15), S(7))
    p.I("s_cselect_b32", SYs[0], S(16), S(6)); p.I("s_cselect_b32", SYs[1], S(17), S(7))
    p.I("s_cselect_b32", a0, 3584, a0)
    p.I("s_cselect_b32", sEnd, 448 * 3584, a1)
    p.I("s_cselect_b32", sT1, sT1, sT2)
    p.I("s_cselect_b32", a1, 2, 0)
    p.I("s_cselect_b32", a2, 0, 224)
    p.I("s_and_b32", SXs[1], SXs[1], 0xFFFF); p.I("s_and_b32", SYs[1], SYs[1], 0xFFFF)
    p.I("s_mov_b32", SXs[2], sEnd); p.I("s_mov_b32", SYs[2], sEnd)
    p.I("s_mov_b32", SXs[3], 0x20000); p.I("s_mov_b32", SYs[3], 0x20000)
    p.I("s_lshl_b32", sStr, a0, 5)
    p.I("s_mul_i32", sOX, sRot, sStr); p.I("s_lshl_b32", sOX, sOX, 1)
    p.I("v_lshrrev_b32", t3, 4, lane)
    p.I("v_and_b32", t4, 15, lane)
    p.I("v_lshlrev_b32", t5, 2, t3); p.I("v_xor_b32", t4, t4, t5)
    p.I("s_lshl_b32", sT0, sW, 2)
    p.I("v_add_u32", t3, sT0, t3)
    p.I("v_mul_u32_u24", t3, a0, t3)
    p.I("v_add_u32", t3, sT1, t3)
    p.I("v_lshl_add_u32", vDX, t4, 4, t3)
    p.I("v_xor_b32", t4, a1, t4)
    p.I("v_lshl_add_u32", vDY, t4, 4, t3)
    p.I("v_add_u32", vDY, a2, vDY)
    p.I("s_lshl_b32", sLdsW, sW, 10)
    p.I("v_bfe_u32", t5, r8, 1, 1)
    p.I("v_lshlrev_b32", t5, 2, t5)
    p.I("v_xor_b32", t5, t5, k8)
    p.I("s_lshl_b32", sT0, sW, 3)
    p.I("v_add_u32", t6, sT0, r8)
    p.I("v_lshrrev_b32", t3, 2, t5); p.I("v_mul_u32_u24", t3, 896, t3)
    p.I("v_and_b32", t4, 3, t5); p.I("v_lshl_add_u32", t3, t4, 4, t3)
    p.I("v_mul_u32_u24", t4, 2688, t6); p.I("v_add_u32", t3, t3, t4)
    p.I("s_mul_i32", sT1, sJ, 56); p.I("s_add_u32", sT1, sT1, 896)
    p.I("v_add_u32", vD0, sT1, t3)
    p.I("s_mul_i32", sO0, sRot, 64 * 2688)
    p.I("v_mul_u32_u24", vAw, 528, k8)
    p.I("v_lshl_add_u32", vAw, r8, 4, vAw)
    p.I("s_lshr_b32", sT0, sG, 1); p.I("s_mul_i32", sT0, sT0, 8 * 528)
    p.I("s_and_b32", sT1, sG, 1); p.I("s_lshl_b32", sT2, sT1, 8)
    p.I("s_add_u32", sT0, sT0, sT2); p.I("s_add_u32", sT0, sT0, ASB)
    p.I("v_add_u32", vAw, sT0, vAw)
    p.I("s_and_b32", sT1, sW, 1)
    srd(p, SWS.n, 24, WS_BYTES)
    p.I("v_lshlrev_b32", vSt, 4, lane)
    p.I("v_and_b32", u1, 31, lane)
    p.I("v_lshrrev_b32", u2, 5, lane)
    p.I("v_mul_u32_u24", vAr, 528, u2)
    p.I("v_lshl_add_u32", vAr, u1, 4, vAr)
    p.I("s_mul_i32", sT2, sT1, 16 * 528); p.I("s_add_u32", sT2, sT2, ASB)
    p.I("v_add_u32", vAr, sT2, vAr)
    p.I("v_mov_b32", vC2, f2u(GC2))
    sm = [LT[0], LT[1]]; sq = [LT[2], LT[3]]; ones = LT[4]
    p.I("v_mov_b32", ones, 0x3F803F80)
    for r in sm + sq: p.I("v_mov_b32", r, 0)
    for b in range(7):
        for g in range(2):
            for i in range(4):
                p.I("v_dot2c_f32_bf16", sm[g], xr(b, g)[i], ones)
                p.I("v_dot2c_f32_bf16", sq[g], xr(b, g)[i], xr(b, g)[i])
    for mod in ("quad_perm:[1,0,3,2]", "quad_perm:[2,3,0,1]", "row_half_mirror"):
        for r in sm + sq:
            p.I("v_add_f32_dpp", r, r, r, mods=mod + " row_mask:0xf bank_mask:0xf")
    for g in range(2):
        p.I("v_mul_f32", sm[g], f2u(1.0 / 448), sm[g])
        p.I("v_mul_f32", sq[g], f2u(1.0 / 448), sq[g])
    for g in range(2): p.I("v_fma_f32", sq[g], Neg(sm[g]), sm[g], sq[g])
    for g in range(2): p.I("v_max_f32", sq[g], 0, sq[g])
    for g in range(2): p.I("v_add_f32", sq[g], f2u(1e-5), sq[g])
    for g in range(2): p.I("v_rsq_f32", vR[g], sq[g])
    for g in range(2): p.I("v_mul_f32_e64", vNM[g], Neg(sm[g]), vR[g])
    st.stamp(p)
    p.I("s_lshr_b32", a0, sStr, 1)
    if cfg["xbar"] == 2:
        p.I("s_cmp_ge_u32", sW, 4); p.raw("    s_cbranch_scc1 K1_NB1"); p.I("s_barrier"); p.label("K1_NB1")
    p.I("s_cmp_ge_u32", sW, 4)
    p.raw("    s_cbranch_scc1 K1_NODMA")
    p.I("s_mov_b32", a1, sOX)
    for c in range(2):
        for hh in range(2):
            if hh: p.I("s_add_u32", a2, a1, a0)
            so = a2 if hh else a1
            p.I("s_add_u32", M0, sLdsW, c * XYS + hh * 4096)
            p.I("buffer_load_dwordx4", vDX, SXs, so, mods="offen lds", tag=f"dma{c}")
            p.I("s_add_u32", M0, sLdsW, c * XYS + PAGE + hh * 4096)
            p.I("buffer_load_dwordx4", vDY, SYs, so, mods="offen lds", tag=f"dma{c}")
        if c == 0:
            p.I("s_add_u32", a1, a1, sStr)
            p.I("s_add_u32", a2, sO0, 32 * 2688)
            p.I("s_add_u32", M0, sLdsW, KVB)
            p.I("buffer_load_dwordx4", vD0, SQKV, sO0, mods="offen lds", tag="kv0")
            p.I("s_add_u32", M0, sLdsW, KVB + 4096)
            p.I("buffer_load_dwordx4", vD0, SQKV, a2, mods="offen lds", tag="kv0")
    p.label("K1_NODMA")
    p.I("s_add_u32", sOX, sOX, sStr); p.I("s_add_u32", sOX, sOX, sStr)
    p.I("s_cmp_eq_u32", sOX, sEnd); p.I("s_cselect_b32", sOX, 0, sOX)
    p.I("s_add_u32", sO0, sO0, 64 * 2688); p.I("s_cmp_eq_u32", sO0, 448 * 2688); p.I("s_cselect_b32", sO0, 0, sO0)
    ln_unit(p, 0, 0); a_write(p, 0, 0); ln_unit(p, 0, 1); a_write(p, 0, 1)
    for c in range(2, cfg["npre"]): dma_xy(p, c)
    dma_kv(p, 1)
    p.I("s_cmp_ge_u32", sJ, 14)
    p.raw("    s_cbranch_scc1 K1_Q")
    p.I("s_cmp_ge_u32", S(3), 4)
    p.raw("    s_cbranch_scc1 K1_F1")

def gen_k1(cfg):
    name = NAME + "_kernel"
    txt = kernel_header(name)
    first = True
    for typ in ("F", "Q"):
        for grp in (0, 1):
            p = Prog(); st = Stamps(cfg["stamps"], 0)
            if cfg["stamps"] == 2:
                o2 = st.stamp
                st.stamp = lambda pp, real=False, o2=o2: o2(pp, True)
            if cfg.get("its") is not None:
                orig = st.stamp
                def stamp2(pp, real=False, force=False, orig=orig):
                    if real or force: orig(pp, real)
                st.stamp = stamp2
            k1_common(p, cfg, st)
            mark = p.raw("; ---- role code ----")
            if typ == "Q" and grp == 0:
                p.label("K1_Q"); p.I("s_cmp_ge_u32", S(3), 4); p.raw("    s_cbranch_scc1 K1_Q1")
            elif grp == 1: p.label(f"K1_{typ}1")
            k1_role(p, typ, grp, cfg, st)
            L = finalize(p)
            k = L.index(mark)
            txt += render(L if first else L[k:])
            first = False
    txt += "K1_END:\n    s_endpgm\n"
    return txt, kernel_desc(name, 256)

def k1_role(p, typ, grp, cfg, st):
    t1, t2, t3, t4, t5, t6, t7 = [V(i) for i in range(1, 8)]
    stp = " sc1" if cfg["sc1"] else ""
    NT = 3
    ch, r4, cq = t3, t4, t5
    p.I("v_bfe_u32", ch, lane, 4, 1); p.I("v_bfe_u32", r4, lane, 2, 2); p.I("v_and_b32", cq, 3, lane)
    p.I("v_lshl_add_u32", t6, u2, 3, r4)
    p.I("v_lshlrev_b32", cq, 3, cq)
    p.I("v_lshl_add_u32", t1, ch, 5, cq)
    p.I("v_lshlrev_b32", t7, 6, r4)
    p.I("s_lshr_b32", sT0, sW, 1); p.I("s_and_b32", sT0, sT0, 1)
    if grp == 0: p.I("s_mul_i32", sT1, sT0, 3)
    else: p.I("s_add_u32", sT1, sT0, 6)
    nxy = 3 if grp == 0 else 1
    for t in range(nxy):
        if t: p.I("s_add_u32", sT1, sT1, 1)
        if typ == "F":
            p.I("s_lshl_b32", sT2, sT1, 5)
            p.I("v_xor_b32", t2, sT2, t1); p.I("v_xor_b32", t2, t2, t7)
            p.I("v_lshl_add_u32", t2, ch, 13, t2)
        else:
            p.I("s_and_b32", sT2, sT1, 3); p.I("s_mul_i32", sT2, sT2, 56)
            p.I("s_lshr_b32", sT3, sT1, 2); p.I("s_lshl_b32", sT3, sT3, 13)
            p.I("v_add_u32", t2, sT2, t1); p.I("v_xor_b32", t2, t2, t7)
            p.I("v_add_u32", t2, sT3, t2)
        p.I("v_lshl_add_u32", vBt[t][0], t6, 8, t2)
        p.I("v_add_u32", vBt[t][1], 3 * XYS, vBt[t][0])
    if grp == 1:
        p.I("v_bfe_u32", t7, lane, 3, 1); p.I("v_lshlrev_b32", t7, 6, t7)
        p.I("v_xor_b32", t2, t1, t7)
        p.I("v_lshl_add_u32", t2, t6, 7, t2)
        p.I("v_add_u32", vBt[1][0], KVB, t2)
        p.I("v_xor_b32", vBt[2][0], 64, vBt[1][0])
    p.I("s_and_b32", sT2, sW, 1); p.I("s_lshl_b32", sT2, sT2, 1); p.I("s_lshl_b32", sT3, sR, 2); p.I("s_add_u32", sT2, sT2, sT3)
    if nxy > 1: p.I("s_sub_u32", sT1, sT1, nxy - 1)
    if typ == "F":
        p.I("s_mul_i32", sOut, sT2, NKS * 1024)
        p.I("s_lshl_b32", sT3, sJ, 3); p.I("s_add_u32", sT3, sT3, sT1); p.I("s_lshl_b32", sT3, sT3, 10)
        p.I("s_add_u32", sOut, sOut, sT3)
        RTS, TS = NKS * 1024, 1024
    else:
        p.I("s_lshl_b32", sOut, sT2, 15)
        p.I("s_sub_u32", sT3, sJ, 14); p.I("s_lshl_b32", sT3, sT3, 3); p.I("s_add_u32", sT3, sT3, sT1); p.I("s_lshl_b32", sT3, sT3, 11)
        p.I("s_add_u32", sOut, sOut, sT3); p.I("s_add_u32", sOut, sOut, QF_OFF)
        RTS, TS = 1 << 15, 2048
    if grp == 1:
        p.I("s_mul_i32", sT3, sT0, 8 * 528)
        p.I("v_add_u32", u3, 8 * 528, vAr); p.I("v_subrev_u32", u3, sT3, u3)
        p.I("v_add_u32", vAr, sT3, vAr)
        p.I("v_mov_b32", V(243), u3)
        p.I("s_mul_i32", sT3, sT0, RTS)
        p.I("s_add_u32", a0, sOut, RTS); p.I("s_sub_u32", a0, a0, sT3)
        p.I("s_add_u32", sOut, sOut, sT3)
        p.I("s_mov_b32", S(59), a0)
    vAr2 = V(243); sOut2 = S(59)
    ln_unit(p, 1, 0)

    def b_reads(c, ks, t):
        dst = BF[ks][t]
        if grp == 0 or t == 0:
            slot = c % NXY; var = slot // 3
            off = (slot % 3) * XYS + 16 * ks * 256
            return [Inst("ds_read_b64_tr_b16", (dst.sub(2 * pp, 2), vBt[t][var]), f"offset:{off + pp * 1024}") for pp in range(2)]
        off = ((c >> 1) % NKV) * PAGE + (32 * (c & 1) + 16 * ks) * 128
        return [Inst("ds_read_b64_tr_b16", (dst.sub(2 * pp, 2), vBt[t][0]), f"offset:{off + pp * 512}") for pp in range(2)]
    def a_read(c, ks, i):
        b = c >> 1; k4 = 2 * (c & 1) + ks
        if grp == 0: return Inst("ds_read_b128", (AFr[ks][i], vAr), f"offset:{(b % 2) * ABLK + (i * 4 + k4) * 2 * 528}")
        return Inst("ds_read_b128", (AFr[ks][i], vAr if i == 0 else vAr2), f"offset:{(b % 2) * ABLK + k4 * 2 * 528}")
    def reads(c, ks):
        return [a_read(c, ks, 0)] + b_reads(c, ks, 0) + [a_read(c, ks, 1)] + b_reads(c, ks, 1) + b_reads(c, ks, 2)
    def mfmas(c, ks):
        f = (c == 0 and ks == 0)
        M = lambda d, a, b: Inst(MF, (d, a, b, 0 if f else d))
        if grp == 0: return [M(ACC[2 * t + i], BF[ks][t], AFr[ks][i]) for t in range(3) for i in range(2)]
        return [M(ACC[0], BF[ks][0], AFr[ks][0]), M(ACC[1], BF[ks][0], AFr[ks][1]),
                M(ACC[2], BF[ks][1], AFr[ks][0]), M(ACC[3], AFr[ks][0], BF[ks][2])]

    seg = {n: Prog() for n in range(15)}
    W2T = XR.sub(0, 8); WT = XR.sub(8, 16)
    q = seg[11]
    srd(q, SD.n, 22, 256)
    q.I("v_lshlrev_b32", vL0, 2, lane)
    q.I("buffer_load_dword", vTk, vL0, SD, 0, mods="offen sc1")
    if cfg["wdpf"]:
        q = seg[cfg["wdpf"]]
        if cfg["wdmode"] == 0:
            q.I("s_lshr_b32", sT0, S(2), 3); q.I("s_lshl_b32", sT0, sT0, 3); q.I("s_add_u32", sT0, sT0, sW); q.I("s_lshl_b32", sT0, sT0, 13)
        else:
            q.I("s_lshl_b32", sT0, S(2), 3); q.I("s_add_u32", sT0, sT0, sW); q.I("s_lshl_b32", sT0, sT0, 10)
        q.I("s_sub_u32", sT1, sT0, 1792 * 896)
        q.I("s_mov_b32", sT2, 448 * 896)
        q.I("s_cmp_lt_u32", sT0, 1792 * 896)
        q.I("s_cselect_b32", SX[0], S(18), S(10)); q.I("s_cselect_b32", SX[1], S(19), S(11))
        q.I("s_cselect_b32", SX[2], 1792 * 896, sT2)
        q.I("s_cselect_b32", sT0, sT0, sT1)
        q.I("s_and_b32", SX[1], SX[1], 0xFFFF)
        if cfg["wdmode"] == 0:
            q.I("v_lshlrev_b32", u3, 7, lane)
            q.I("buffer_load_dword", XR[0], u3, SX, sT0, mods="offen")
        else:
            q.I("buffer_load_dwordx4", XR.sub(0, 4), vSt, SX, sT0, mods="offen")
    IDN = XR.sub(24, 8)
    if grp == 1:
        q = seg[0]
        srd(q, SD.n, 22, 256)
        q.I("v_mov_b32", u5, BIG)
        q.I("v_cmp_eq_u32", VCC, 0, lane)
        q.I("v_cndmask_b32", vL0, u5, 0, VCC)
        q.I("s_lshl_b32", sT0, sJ, 2); q.I("s_add_u32", sT0, sT0, sW); q.I("s_sub_u32", sT0, sT0, 4)
        q.I("s_lshl_b32", sT1, sT0, 11); q.I("s_add_u32", sT1, sT1, KVA_OFF)
        q.I("s_lshl_b32", sT2, sT0, 8); q.I("s_add_u32", sT2, sT2, FLG_OFF)
        q.I("s_lshl_b32", sFl, sT0, 2)
        q.I("s_lshl_b32", sZ, sJ, 13); q.I("s_add_u32", sZ, sZ, KVA_OFF)
        q.I("s_cmp_eq_u32", sR, sJ)
        q.I("s_cselect_b32", sT2, sT2, BIG)
        q.I("s_cselect_b32", sT1, sT1, BIG)
        q.I("s_cselect_b32", sFl, sFl, BIG)
        ZR = V(128, 4)
        for i in range(4): q.I("v_mov_b32", ZR[i], 0)
        for s in range(2): q.I("buffer_store_dwordx4", ZR, vSt, SWS, sT1, mods=f"offen offset:{s*1024} sc1", tag="zs")
        q.I("v_cmp_gt_u32", VCC, 16, lane)
        q.I("v_cndmask_b32", u3, u5, vSt, VCC)
        q.I("buffer_store_dwordx4", ZR, u3, SWS, sT2, mods="offen sc1", tag="zs")
        q = seg[5]
        q.I("v_mov_b32", vTk, 1)
        q.waittag("zs")
        q.I("buffer_store_dword", vTk, vL0, SD, sFl, mods="offen sc1")
        q = seg[10]
        srd(q, SPHI.n, 8, 16 * 1568)
        q.I("s_mov_b32", sL, f2u(LOG2E))
        wphi_gather(q, WT, SPHI, sJ, sT0, lane, u1, u2, u3, u4, u5)
        q.I("v_cmp_eq_u32", VCC, 0, u2)
        q.I("v_cndmask_b32", vMask, 0, 1.0, VCC)
        q = seg[12]
        q.I("v_cmp_eq_u32", sM28, 28, u1)
        q.I("v_lshlrev_b32", u3, 2, u2); q.I("v_sub_u32", u3, u1, u3)
        q.I("v_and_b32", u4, 1, u3); q.I("v_lshlrev_b32", u4, 4, u4); q.I("v_mov_b32", u5, 0x3F80); q.I("v_lshlrev_b32", u4, u4, u5)
        q.I("v_lshrrev_b32", u3, 1, u3)
        for s in range(2):
            for i in range(4):
                f0 = 16 * s + 8 * ((2 * i) >> 2) + ((2 * i) & 3)
                q.I("v_cmp_eq_u32", VCC, f0 // 2, u3)
                q.I("v_cndmask_b32", IDN[4 * s + i], 0, u4, VCC)
        q = seg[13]
        for i in range(8): q.I("v_lshl_or_b32", WPHI[i], WT[2 * i + 1], 16, WT[2 * i])
    q = seg[12]
    q.I("v_mov_b32", LT[8], 0); q.I("v_mov_b32", LT[9], KVL)
    q.I("ds_write_b32", LT[9], LT[8], tag="zl")

    p.waittag("dma0", "dma1", "kv0", "aw0")
    p.I("s_barrier")
    st.stamp(p)
    p.L.extend(reads(0, 0))
    nxt = cfg["npre"]
    for c in range(14):
        fill = Prog()
        ln = Prog()
        if c % 2 == 0:
            b = c // 2 + 1
            if b < 7: a_write(ln, b, 0); ln_unit(ln, b, 1); a_write(ln, b, 1)
        else:
            b = (c + 3) // 2
            if b < 7: ln_unit(ln, b, 0)
        dm = Prog()
        cnt = 0
        while nxt < 14 and nxt <= c + cfg["la"] and cnt < 2:
            dma_xy(dm, nxt); nxt += 1; cnt += 1
        kvp = cfg["kvodd"]
        if c % 2 == kvp and c // 2 + 2 < 7: dma_kv(dm, c // 2 + 2)
        if cfg["spread"]:
            groups = []; cur = []
            for i in dm.L:
                cur.append(i)
                if i.kind == "dma": groups.append(cur); cur = []
            if groups: groups[-1] += cur
            n = len(groups)
            step = max(1, len(ln.L) // max(1, n))
            k = 0
            for gi in range(n):
                fill.extend(groups[gi]); fill.extend(ln.L[k:k + step]); k += step
            fill.extend(ln.L[k:])
        else:
            fill.extend(ln); fill.extend(dm)
        if cfg.get("no_dma"): fill.L = [i for i in fill.L if i.kind != "dma"]
        if cfg.get("no_lnw"): fill.L = [i for i in fill.L if i.kind != "lwrite"]
        if cfg.get("no_lnv"): fill.L = [i for i in fill.L if i.kind != "valu"]
        fill.extend(seg[c])
        F = fill.L
        nm = 12 if grp == 0 else 8
        per = len(F) / max(1.0, nm * cfg["front"] / 100.0)
        acc = 0.0; fi = 0
        if cfg["pp"]:
            per = cfg["ppin"] / 10.0
            if grp == 1:
                nin = min(len(F), int(per * nm))
                p.L.extend(F[:len(F) - nin]); fi = len(F) - nin
        if cfg["prio"] and cfg["pp"]: p.I("s_setprio", 1)
        for ks in range(2):
            nc, nks = (c, 1) if ks == 0 else (c + 1, 0)
            rd = reads(nc, nks) if nc < 14 else []
            ms = mfmas(c, ks)
            rp = 2 if grp == 0 else 3
            for m in ms:
                p.L.append(m)
                p.L.extend(rd[:rp]); rd = rd[rp:]
                acc += per
                while acc >= 1 and fi < len(F):
                    p.L.append(F[fi]); fi += 1; acc -= 1
        if cfg["prio"] and cfg["pp"]: p.I("s_setprio", 0)
        p.L.extend(F[fi:])
        if c + 1 < 14:
            if cfg.get("its") is not None and cfg["its"] <= c < cfg["its"] + 4: st.stamp(p, force=True)
            p.waittag(f"dma{c+2}", f"kv{(c+2)//2}", f"aw{(c+2)//2}", "zl")
            p.I("s_barrier")
            if cfg.get("its") is not None and cfg["its"] <= c < cfg["its"] + 4: st.stamp(p, force=True)
    st.stamp(p)
    uid = f"{typ}{grp}"
    def spin(name, vd, va, srdreg, soff, mask=None, sleep=4, first_loaded=False):
        cmp = f"    v_cmp_ne_u32 vcc, 1, {vd}\n" + (f"    s_nop 4\n    s_and_b64 vcc, vcc, {mask}\n" if mask is not None else "    s_nop 4\n")
        L = f"SP_{name}_{uid}"
        t = ""
        if first_loaded:
            p.I("v_mov_b32", vd, vd)
            t += cmp + f"    s_cbranch_vccz {L}_OK\n"
        t += (f"    s_mov_b32 s61, 0\n{L}:\n    buffer_load_dword {vd}, {va}, {srdreg}, {soff} offen sc1\n    s_add_u32 s61, s61, 1\n    s_cmp_gt_u32 s61, 0x20000\n"
              f"    s_cbranch_scc1 {L}_OK\n    s_waitcnt vmcnt(0)\n" + cmp + f"    s_cbranch_vccz {L}_OK\n    s_sleep {sleep}\n    s_branch {L}\n{L}_OK:")
        p.raw(t)
    p.I("s_barrier")
    spin("Z", vTk, vL0, SD, 0, first_loaded=True)
    OUT = V(160, 40); TMP = XR.sub(32, 24)
    cnt = [0]
    def tile_epi(q, acc, so, off):
        k = cnt[0]; cnt[0] += 1
        if typ == "F":
            o = OUT.sub(4 * (k % 6), 4)
            gelu_tile(q, acc, TMP.sub(8 * (k % 2), 8), o, vC2)
            q.I("buffer_store_dwordx4", o, vSt, SWS, so, mods=f"offen offset:{off} sc1", tag="hst")
        else:
            o = OUT.sub(8 * (k % 4), 8)
            for i in range(8): q.I("v_cvt_pk_bf16_f32", o[i], acc[2 * i], acc[2 * i + 1])
            for s in range(2): q.I("buffer_store_dwordx4", o.sub(4 * s, 4), vSt, SWS, so, mods=f"offen offset:{off + s*1024} sc1", tag="hst")
    vOne, vLn0 = V(241), V(242)
    p.I("v_mov_b32", vOne, 1); p.I("v_mov_b32", u5, BIG)
    p.I("v_cmp_eq_u32", VCC, 0, lane)
    p.I("v_cndmask_b32", vLn0, u5, 0, VCC)
    def set_hflag():
        p.I("s_lshl_b32", sT0, sR, 1); p.I("s_and_b32", sT1, sW, 1); p.I("s_add_u32", sT0, sT0, sT1); p.I("s_lshl_b32", sT0, sT0, 8)
        p.I("s_lshl_b32", sT1, sJ, 2); p.I("s_lshr_b32", sT2, sW, 1); p.I("s_add_u32", sT1, sT1, sT2); p.I("s_lshl_b32", sT1, sT1, 2)
        p.I("s_add_u32", sT0, sT0, sT1); p.I("s_add_u32", sT0, sT0, HF_OFF)
        p.waittag("hst")
        p.I("buffer_store_dword", vOne, vLn0, SWS, sT0, mods="offen sc1")
    if grp == 0:
        SWD, SWO, SO = SQKV, SXs, SYs
        sRB, sCB, sBd, sBo, sRing, sTm = S(64), S(65), S(66), S(67), S(68), S(69)
        vE0, vE1, vT0, vT1 = V(216), V(217), V(218), V(219)
        srd(p, SWD.n, 18, 1792 * 896); srd(p, SWO.n, 10, 448 * 896); srd(p, SO.n, 20, 2048 * 896)
        p.I("s_sub_u32", sT2, S(2), 32)
        p.I("s_and_b32", sT0, sT2, 7); p.I("s_lshr_b32", sT1, sT2, 3)
        p.I("s_mul_i32", sT2, sT1, 37); p.I("s_lshr_b32", sT2, sT2, 8)
        p.I("s_lshl_b32", sRB, sT0, 2); p.I("s_add_u32", sRB, sRB, sT2)
        p.I("s_mul_i32", sT2, sT2, 7); p.I("s_sub_u32", sCB, sT1, sT2)
        p.I("s_lshl_b32", sT0, sCB, 7)
        p.I("s_mul_i32", sBd, sW, 28 * 16 * 896); p.I("s_add_u32", sBd, sBd, sT0)
        p.I("s_mul_i32", sBo, sW, 4 * 28 * 896); p.I("s_add_u32", sBo, sBo, sT0)
        p.I("s_cmp_lt_u32", S(2), 32); p.I("s_cselect_b32", sBd, BIG, sBd)
        p.I("s_mul_i32", sRing, sW, BRING)
        p.I("v_lshrrev_b32", t1, 3, lane); p.I("v_and_b32", t2, 7, lane)
        p.I("v_bfe_u32", t3, lane, 4, 1); p.I("v_lshlrev_b32", t3, 2, t3); p.I("v_xor_b32", t2, t2, t3)
        p.I("v_mul_u32_u24", vE0, 896, t1); p.I("v_lshl_add_u32", vE0, t2, 4, vE0)
        p.I("v_cmp_gt_u32", VCC, 32, lane)
        p.I("v_cndmask_b32", vE1, u5, vE0, VCC)
        p.I("v_bfe_u32", t1, lane, 2, 2); p.I("v_lshl_add_u32", t1, u2, 2, t1)
        p.I("v_bfe_u32", t2, lane, 4, 1); p.I("v_and_b32", t3, 3, lane); p.I("v_lshlrev_b32", t3, 3, t3); p.I("v_lshl_add_u32", t2, t2, 5, t3)
        p.I("v_bfe_u32", t3, lane, 3, 1); p.I("v_lshlrev_b32", t3, 6, t3); p.I("v_xor_b32", t2, t2, t3)
        p.I("v_lshl_add_u32", vT0, t1, 7, t2); p.I("v_add_u32", vT0, sRing, vT0)
        p.I("v_xor_b32", vT1, 64, vT0)
        def bdma(q, k):
            for i in range(2):
                if k < 28:
                    q.I("s_add_u32", sTm, sBd, (16 * k + 8 * i) * 896); sr, va = SWD, vE0
                else:
                    kk = k - 28
                    q.I("s_add_u32", sTm, sBo, ((kk >> 1) * 28 + 16 * (kk & 1) + 8 * i) * 896); sr = SWO
                    va = vE1 if (kk & 1 and i == 1) else vE0
                q.I("s_add_u32", M0, sRing, (k % NB) * 2048 + i * 1024)
                q.I("buffer_load_dwordx4", va, sr, sTm, mods="offen lds", tag=f"b{k}")
        E = Prog(); Dm = Prog()
        p.I("s_add_u32", sT3, sOut, RTS)
        p.I("s_add_u32", a1, sOut, 2 * TS); p.I("s_add_u32", a2, sT3, 2 * TS)
        for t in range(3):
            for i in range(2):
                if t < 2: tile_epi(E, ACC[2 * t + i], sOut if i == 0 else sT3, t * TS)
                else: tile_epi(E, ACC[2 * t + i], a1 if i == 0 else a2, 0)
        NE = cfg["bearly"]
        for k in range(NE): bdma(Dm, k)
        grp3 = [Dm.L[i:i + 3] for i in range(0, len(Dm.L), 3)]
        step = max(1, int(len(E.L) * 0.5) // max(1, len(grp3)))
        k = 0
        for g3 in grp3:
            p.L.extend(g3); p.L.extend(E.L[k:k + step]); k += step
        p.L.extend(E.L[k:])
        set_hflag()
        st.stamp(p)
        p.I("s_cmp_lt_u32", S(2), 32)
        p.raw(f"    s_cbranch_scc1 P2_END_{uid}")
        BP = cfg["bpre"]
        for k in range(NE, BP): bdma(p, k)
        nb = [BP]
        DA = cfg["da"]
        AC2 = [[V(64 + 32 * r + 16 * c, 16) for c in range(2)] for r in range(2)]
        BB = [V(8 + 8 * i, 8) for i in range(2)]
        AB = [V(128 + 8 * d, 8) for d in range(DA)]
        VO = V(24, 7); XV = V(32, 8); vP, vZ, vG, vLr, vLw = V(40), V(41), V(42), V(43), V(44)
        sA = [S(70), S(71)]; sAo = [S(73), S(74)]; sFlag = S(75); sM56 = S(76, 2) if False else S(56, 2)
        p.I("s_mul_i32", sT0, sW, 28 * 1024)
        p.I("s_mul_i32", sT1, sRB, 2 * NKS * 1024); p.I("s_add_u32", sA[0], sT1, sT0); p.I("s_add_u32", sA[1], sA[0], NKS * 1024)
        p.I("s_lshl_b32", sT0, sW, 13); p.I("s_add_u32", sT0, sT0, 112 * 1024)
        p.I("s_add_u32", sAo[0], sT1, sT0); p.I("s_add_u32", sAo[1], sAo[0], NKS * 1024)
        for m in range(7): p.I("v_add_u32", VO[m], 4096 * m, vSt)
        srd(p, SX.n, 4, 2048 * 896)
        p.I("s_lshl_b32", sT0, sW, 6); p.I("v_add_u32", t1, sT0, lane)
        p.I("v_lshrrev_b32", t2, 3, t1); p.I("v_and_b32", t3, 7, t1)
        p.I("s_lshl_b32", sT0, sRB, 6)
        p.I("v_add_u32", vG, sT0, t2); p.I("v_mul_u32_u24", vG, 896, vG); p.I("v_lshl_add_u32", vG, t3, 4, vG)
        p.I("s_lshl_b32", sT0, sCB, 7); p.I("v_add_u32", vG, sT0, vG)
        p.I("v_mul_u32_u24", vLr, K2_ROW, t2); p.I("v_lshl_add_u32", vLr, t3, 5, vLr)
        p.I("v_mul_u32_u24", vLw, K2_ROW, u1); p.I("v_lshl_add_u32", vLw, u2, 4, vLw); p.I("v_add_u32", vLw, sRing, vLw)
        p.I("v_lshlrev_b32", vZ, 2, lane)
        if cfg["hmask"]:
            p.I("s_mul_i32", sT0, sW, 7); p.I("s_lshr_b32", sT0, sT0, 1); p.I("s_lshl_b32", sT0, sT0, 2)
            p.I("s_mov_b32", sM56[0], 0xFFFF); p.I("s_mov_b32", sM56[1], 0)
            p.I("s_lshl_b64", sM56, sM56, sT0)
        else:
            p.I("s_mov_b32", sM56[0], -1); p.I("s_mov_b32", sM56[1], 0x00FFFFFF)
        p.I("s_lshl_b32", sFlag, sRB, 8); p.I("s_add_u32", sFlag, sFlag, HF_OFF)
        p.I("s_mov_b32", a0, 32 * 896)
        p.I("buffer_load_dwordx4", XV.sub(0, 4), vG, SX, 0, mods="offen")
        p.I("buffer_load_dwordx4", XV.sub(4, 4), vG, SX, a0, mods="offen")
        spin("H", vP, vZ, SWS, sFlag, mask=sM56, sleep=cfg["slh"])
        if cfg["inv"]: p.I("buffer_inv", mods="sc1")
        st.stamp(p)
        p.I("s_lshl_b32", sFlag, sRB, 7); p.I("s_add_u32", sFlag, sFlag, OF_OFF)
        p.I("v_lshlrev_b32", vZ, 2, u1)
        def aload(k):
            kk = k if k < 28 else k - 28
            for r in range(2):
                p.I("buffer_load_dwordx4", AB[k % DA].sub(4 * r, 4), VO[kk // 4], SWS, (sA if k < 28 else sAo)[r], mods=f"offen offset:{(kk % 4) * 1024}" + ("" if (cfg["inv"] and k < 28) else " sc1"))
        def bread(k):
            p.waittag(f"b{k}")
            for c in range(2):
                for pp in range(2):
                    p.I("ds_read_b64_tr_b16", BB[k & 1].sub(4 * c + 2 * pp, 2), vT1 if c else vT0, mods=f"offset:{(k % NB) * 2048 + pp * 1024}")
        for k in range(DA): aload(k)
        bread(0)
        kpoll = 28 - DA - cfg["pollahead"]
        for k in range(36):
            if k + 1 < 36: bread(k + 1)
            for r in range(2):
                for c in range(2):
                    p.I(MF, AC2[r][c], BB[k & 1].sub(4 * c, 4), AB[k % DA].sub(4 * r, 4), 0 if k == 0 else AC2[r][c])
            if k == kpoll: p.I("buffer_load_dword", vP, vZ, SWS, sFlag, mods="offen sc1")
            if k + DA == 28:
                if cfg["stamps"] == 2: st.stamp(p)
                spin("O", vP, vZ, SWS, sFlag, first_loaded=True, sleep=8)
                if cfg["stamps"] == 2: st.stamp(p)
            if k + DA < 36: aload(k + DA)
            c2 = 0
            while nb[0] < 36 and nb[0] <= k + cfg["bla"] and c2 < 2:
                bdma(p, nb[0]); nb[0] += 1; c2 += 1
        for r in range(2):
            for c in range(2):
                for g in range(4):
                    p.I("ds_write_b128", vLw, AC2[r][c].sub(4 * g, 4), mods=f"offset:{r*32*K2_ROW + (c*32+8*g)*4}", tag="pw")
        p.waittag("pw")
        p.I("s_barrier")
        RD = V(64, 64)
        p.I("v_add_u32", t1, 2 * BRING, vLr)
        for pp in range(2):
            for w in range(4):
                for hh in range(2):
                    p.I("ds_read_b128", RD.sub(32 * pp + 8 * w + 4 * hh, 4), vLr if w < 2 else t1, mods=f"offset:{(w & 1) * BRING + pp*32*K2_ROW + hh*16}")
        for pp in range(2):
            R = RD.sub(32 * pp, 32)
            for i in range(8): p.I("v_add_f32", R[i], R[i], R[8 + i])
            for i in range(8): p.I("v_add_f32", R[16 + i], R[16 + i], R[24 + i])
            Xr = XV.sub(4 * pp, 4); T = V(8, 8)
            for i in range(4):
                p.I("v_lshlrev_b32", T[2 * i], 16, Xr[i]); p.I("v_and_b32", T[2 * i + 1], 0xFFFF0000, Xr[i])
            for i in range(8): p.I("v_add_f32", R[i], R[i], R[16 + i])
            for i in range(8): p.I("v_add_f32", R[i], R[i], T[i])
            O = V(16 + 4 * pp, 4)
            for i in range(4): p.I("v_cvt_pk_bf16_f32", O[i], R[2 * i], R[2 * i + 1])
            p.I("buffer_store_dwordx4", O, vG, SO, 0 if pp == 0 else a0, mods="offen")
        p.label(f"P2_END_{uid}")
    else:
        if cfg["sprio"]: p.I("s_setprio", cfg["sprio"])
        tile_epi(p, ACC[0], sOut, 0)
        tile_epi(p, ACC[1], sOut2, 0)
        if cfg["sprio"] and cfg["sdrop"]: p.I("s_setprio", 0)
        K, Vv, PACC = ACC[2], ACC[3], ACC[4]
        qb = LT.sub(0, 8); VB = ACC[5].sub(0, 8); NEG = ACC[5].sub(8, 8); POS = LT.sub(0, 8)
        for i in range(8): p.I("v_cvt_pk_bf16_f32", qb[i], K[2 * i], K[2 * i + 1])
        p.I(MF, PACC, WPHI.sub(0, 4), qb.sub(0, 4), 0)
        p.I(MF, PACC, WPHI.sub(4, 4), qb.sub(4, 4), PACC)
        p.I("v_mov_b32", u3, 0x3F803F80)
        for r in range(8): p.I("v_cvt_pk_bf16_f32", VB[r], Vv[2 * r], Vv[2 * r + 1])
        for r in range(8): p.I("v_cndmask_b32", VB[r], VB[r], u3, sM28)
        set_hflag()
        if cfg["stamps"] == 2: st.stamp(p)
        softmax_core(p, PACC, K, LT.sub(8, 8), POS, NEG, vMask, sL)
        Tt = [K, PACC]
        for ft, src in enumerate((POS, NEG)):
            p.I(MF, Tt[ft], src.sub(0, 4), IDN.sub(0, 4), 0)
            p.I(MF, Tt[ft], src.sub(4, 4), IDN.sub(4, 4), Tt[ft])
        if cfg["sprio"] and cfg["sdrop"]: p.I("s_setprio", 3)
        p.I("v_lshlrev_b32", u4, 2, lane)
        PT = [LT.sub(0, 8), LT.sub(8, 8)]
        for ft in range(2):
            for r in range(8): p.I("v_cvt_pk_bf16_f32", PT[ft][r], Tt[ft][2 * r], Tt[ft][2 * r + 1])
        for ft in range(2):
            p.I(MF, Tt[ft], PT[ft].sub(0, 4), VB.sub(0, 4), 0)
            p.I(MF, Tt[ft], PT[ft].sub(4, 4), VB.sub(4, 4), Tt[ft])
        p.I("s_lshl_b32", sT0, sW, 13); p.I("s_add_u32", sT0, sT0, KVP_L - 4 * 8192)
        p.I("v_add_u32", u3, sT0, vSt)
        p.I("v_mov_b32", t1, KVL); p.I("v_mov_b32", t2, 1)
        for qd in range(8):
            p.I("ds_write_b128", u3, Tt[qd >> 2].sub(4 * (qd & 3), 4), mods=f"offset:{qd*1024}", tag="kva")
        p.waittag("kva")
        lbl = f"K1_{typ}_"
        p.raw("    s_mov_b64 exec, 1\n    ds_add_u32 v1, v2\n    s_mov_b64 exec, -1")
        p.raw(f"    s_mov_b32 s61, 0\n{lbl}LSPIN:\n    ds_read_b32 v3, v1\n    s_add_u32 s61, s61, 1\n    s_lshr_b32 s62, s61, 18\n    s_waitcnt lgkmcnt(0)\n    s_nop 1\n    v_readfirstlane_b32 s60, v3\n    s_nop 3\n    s_or_b32 s60, s60, s62\n    s_cmp_lt_u32 s60, 4\n    s_cbranch_scc1 {lbl}LSPIN")
        p.I("s_lshl_b32", sT0, sW, 11); p.I("s_sub_u32", sT0, sT0, 4 * 2048)
        p.I("s_add_u32", a0, sZ, sT0)
        p.I("s_add_u32", sT0, sT0, KVP_L)
        p.I("v_add_u32", t1, sT0, u4)
        R2 = V(128, 32)
        for e in range(8):
            p.I("ds_read2st64_b32", R2.sub(4 * e, 2), t1, mods=f"offset0:{e} offset1:{e+32}")
            p.I("ds_read2st64_b32", R2.sub(4 * e + 2, 2), t1, mods=f"offset0:{e+64} offset1:{e+96}")
        for e in range(8):
            p.I("v_add_f32", R2[4 * e], R2[4 * e], R2[4 * e + 1]); p.I("v_add_f32", R2[4 * e + 2], R2[4 * e + 2], R2[4 * e + 3])
            p.I("v_add_f32", R2[4 * e], R2[4 * e], R2[4 * e + 2])
            p.I("buffer_atomic_add_f32", R2[4 * e], u4, SWS, a0, mods=f"offen offset:{e * 256}", tag="kat")
        sKF, sRT, sQF = S(64), S(65), S(66)
        p.I("s_lshl_b32", sRT, sR, 2); p.I("s_add_u32", sRT, sRT, sW); p.I("s_sub_u32", sRT, sRT, 4)
        p.I("s_lshl_b32", sKF, sJ, 8); p.I("s_add_u32", sKF, sKF, KF_OFF)
        p.I("s_lshl_b32", sT0, sRT, 2); p.I("s_add_u32", sT0, sT0, sKF)
        if cfg["stamps"] == 2: st.stamp(p)
        p.waittag("kat")
        p.I("buffer_store_dword", vOne, vLn0, SWS, sT0, mods="offen sc1")
        st.stamp(p)
        p.I("s_lshr_b32", sQF, sRT, 1); p.I("s_lshl_b32", sQF, sQF, 8)
        p.I("s_lshr_b32", sT0, sJ, 3); p.I("s_lshl_b32", sT0, sT0, 4); p.I("s_add_u32", sQF, sQF, sT0); p.I("s_add_u32", sQF, sQF, HF_OFF + 224)
        p.I("v_and_b32", t1, 12, u4)
        spin("Q", t2, t1, SWS, sQF, sleep=cfg["slk"])
        QB = V(8, 8); KA = V(64, 32); P = V(96, 16); E2 = V(112, 16); TM = V(16, 8); POS, NEG = V(24, 8), V(32, 8); KFr = V(40, 16)
        p.I("s_lshl_b32", sT0, sRT, 15); p.I("s_lshl_b32", sT1, sJ, 11); p.I("s_add_u32", sT0, sT0, sT1); p.I("s_add_u32", sT0, sT0, QF_OFF)
        for s in range(2): p.I("buffer_load_dwordx4", QB.sub(4 * s, 4), vSt, SWS, sT0, mods=f"offen offset:{s*1024} sc1")
        p.I(MF, P, WPHI.sub(0, 4), QB.sub(0, 4), 0)
        p.I(MF, P, WPHI.sub(4, 4), QB.sub(4, 4), P)
        softmax_core(p, P, E2, TM, POS, NEG, vMask, sL)
        spin("K", t2, u4, SWS, sKF, sleep=cfg["slk"])
        st.stamp(p)
        p.I("s_add_u32", sT1, sZ, 4096)
        for qd in range(8): p.I("buffer_load_dwordx4", KA.sub(4 * qd, 4), vSt, SWS, sZ if qd < 4 else sT1, mods=f"offen offset:{(qd&3)*1024} sc1")
        for ft in range(2):
            for i in range(12, 16): p.I("v_mul_f32", KA[16 * ft + i], KA[16 * ft + i], vMask)
        for i in range(16): p.I("v_cvt_pk_bf16_f32", KFr[i], KA[2 * i], KA[2 * i + 1])
        N = P
        for s in range(4):
            p.I(MF, N, KFr.sub(4 * s, 4), (POS if s < 2 else NEG).sub(4 * (s & 1), 4), 0 if s == 0 else N)
        d0, d1 = TM[0], TM[1]
        p.I("s_mul_i32", sT0, sRT, NKS * 1024); p.I("s_lshl_b32", sT2, sJ, 11); p.I("s_add_u32", sT0, sT0, sT2); p.I("s_add_u32", sT0, sT0, 112 * 1024)
        p.I("s_lshl_b32", sT1, sRT, 6); p.I("s_lshl_b32", sT2, sJ, 2); p.I("s_add_u32", sT1, sT1, sT2); p.I("s_add_u32", sT1, sT1, OF_OFF)
        p.I("v_mov_b32", d0, N[12]); p.I("v_mov_b32", d1, N[12])
        p.I("v_permlane32_swap_b32", d0, d1)
        p.I("v_add_f32", d1, f2u(1e-6), d1)
        p.I("v_rcp_f32", d1, d1)
        for i in range(16): p.I("v_mul_f32", N[i], N[i], d1)
        T = QB
        for i in range(8): p.I("v_cvt_pk_bf16_f32", T[i], N[2 * i], N[2 * i + 1])
        for s in range(2): p.I("buffer_store_dwordx4", T.sub(4 * s, 4), vSt, SWS, sT0, mods=f"offen offset:{s*1024} sc1", tag="ost")
        p.waittag("ost")
        p.I("buffer_store_dword", vOne, vLn0, SWS, sT1, mods="offen sc1")
    if cfg["stamps"] != 2: st.stamp(p)
    st.stamp(p, True)
    st.flush(p, SWS, sW, 8, t1, t3)
    p.I("s_endpgm")

K2_ROW = 272
def build(cfg):
    hdr = open("cdna_kernels/" + NAME + ".s.ref").read().split("\n")
    head = [l for l in hdr if l.startswith(";") and "@launch" not in l]
    head.append(f"; @launch grid=(256,1,1) block=(512,1,1) lds={K1_LDS}")
    out = "\n".join(head) + '\n.amdgcn_target "amdgcn-amd-amdhsa--gfx950"\n.text\n'
    descs = ""
    for g in (gen_k1,):
        t, d = g(cfg); out += t; descs += ".p2align 6\n" + d
    out += "CODE_END:\n    s_endpgm\n" + '.section .rodata,"a"\n' + descs
    if cfg["align"]:
        import align
        out, a, b = align.align(out, cfg["minrun"])
        print("align: promoted", a, "nops", b)
    return out

if __name__ == "__main__":
    cfg = dict(k2bar=1, k1map=0, k2depth=5, stamps=0, rot=1, pollahead=2, sc1=1, npre=3, la=5, xbar=2, w2it=10, ke=4, dmaper=4, bahead=3, front=85, cpref=1, wdpf=6, wdmode=1, sdrop=1, hmask=1, bearly=0, bpre=10, bla=12, slh=4, slk=16, inv=0, da=6, sprio=1, jcont=1, xrot=1, kvodd=1, spread=1, pp=1, ppin=0, prio=0, align=1, minrun=3, attprio=1)
    for a in sys.argv[2:]:
        k, v = a.split("="); cfg[k] = int(v)
    open(sys.argv[1], "w").write(build(cfg))
```

```python
import sys, struct
from asmgen import *
from gen2 import Stamps, srd, f2u, LOG2E, GC1, GC2, gelu_tile, NAME, MF, BIG, NKS, AF_OFF, W2F_OFF, WS_BYTES, DBG_OFF
QF_OFF = 0x0C00000
FLG_OFF = 0x1100000
KVA_OFF = 0x1000000

def code_prefetch(p, start, end, vd, va, sb, sa, sc):
    lbl = "CP_L"
    p.raw(f"    s_getpc_b64 {sb}\n{lbl}:")
    p.raw(f"    s_sub_u32 {sb[0]}, {sb[0]}, {lbl}-{start}\n    s_subb_u32 {sb[1]}, {sb[1]}, 0")
    p.I("s_lshr_b32", sa, S(2), 3); p.I("s_lshl_b32", sc, S(3), 5); p.I("s_add_u32", sa, sa, sc); p.I("s_lshl_b32", sa, sa, 10)
    p.raw(f"    s_cmp_lt_u32 {sa}, {end}-{start}-1024\n    s_cbranch_scc0 {lbl}_SKIP")
    p.I("v_lshl_add_u32", va, V(0), 4, sa)
    p.raw(f"    global_load_dwordx4 {vd}, {va}, {sb}\n{lbl}_SKIP:")

def split(L, n):
    k = (len(L) + n - 1) // n
    return [L[i * k:(i + 1) * k] for i in range(n)]

def softmax_core(p, P, E, tmp, pos, neg, vmask, sL):
    mx, mn, t0, t1, sp, sn, sp2, sn2 = [tmp[i] for i in range(8)]
    p.I("v_max3_f32", mx, P[0], P[1], P[2])
    p.I("v_min3_f32", mn, P[0], P[1], P[2])
    for i in range(6):
        p.I("v_max3_f32", mx, mx, P[3 + 2 * i], P[4 + 2 * i])
        p.I("v_min3_f32", mn, mn, P[3 + 2 * i], P[4 + 2 * i])
    p.I("v_max_f32", mx, mx, P[15])
    p.I("v_min_f32", mn, mn, P[15])
    p.I("v_mov_b32", t0, mx)
    p.I("v_mov_b32", t1, mn)
    p.I("v_permlane32_swap_b32", mx, t0)
    p.I("v_permlane32_swap_b32", mn, t1)
    p.I("v_max_f32", mx, mx, t0)
    p.I("v_min_f32", mn, mn, t1)
    p.I("v_mul_f32", mx, sL, mx)
    p.I("v_mul_f32", mn, sL, mn)
    for i in range(16): p.I("v_fma_f32", E[i], Neg(P[i]), sL, mn)
    for i in range(16): p.I("v_fma_f32", P[i], P[i], sL, Neg(mx))
    for i in range(16): p.I("v_exp_f32", E[i], E[i])
    for i in range(16): p.I("v_exp_f32", P[i], P[i])
    p.I("v_add_f32", sn, E[0], E[1]); p.I("v_add_f32", sn2, E[2], E[3])
    p.I("v_add_f32", sp, P[0], P[1]); p.I("v_add_f32", sp2, P[2], P[3])
    for i in range(4, 12, 2):
        p.I("v_add_f32", sn, sn, E[i]); p.I("v_add_f32", sn2, sn2, E[i + 1])
        p.I("v_add_f32", sp, sp, P[i]); p.I("v_add_f32", sp2, sp2, P[i + 1])
    for i in range(12, 16, 2):
        p.I("v_fmac_f32", sn, E[i], vmask); p.I("v_fmac_f32", sn2, E[i + 1], vmask)
        p.I("v_fmac_f32", sp, P[i], vmask); p.I("v_fmac_f32", sp2, P[i + 1], vmask)
    p.I("v_add_f32", sp, sp, sp2); p.I("v_add_f32", sn, sn, sn2)
    p.I("v_mov_b32", t0, sp); p.I("v_mov_b32", t1, sn)
    p.I("v_permlane32_swap_b32", sp, t0)
    p.I("v_permlane32_swap_b32", sn, t1)
    p.I("v_add_f32", sp, sp, t0); p.I("v_add_f32", sn, sn, t1)
    p.I("v_rcp_f32", sp, sp); p.I("v_rcp_f32", sn, sn)
    for i in range(16): p.I("v_mul_f32", P[i], P[i], sp)
    for i in range(16): p.I("v_mul_f32", E[i], E[i], sn)
    for i in range(8): p.I("v_cvt_pk_bf16_f32", pos[i], P[2 * i], P[2 * i + 1])
    for i in range(8): p.I("v_cvt_pk_bf16_f32", neg[i], E[2 * i], E[2 * i + 1])

def wphi_gather(q, WT, SPHI, sHead, sT, lane, u1, u2, u3, u4, u5):
    q.I("v_and_b32", u1, 31, lane); q.I("v_lshrrev_b32", u2, 5, lane); q.I("v_mov_b32", u5, BIG)
    q.I("v_subrev_u32", u3, 24, u1)
    q.I("v_cmp_lt_u32", VCC, 27, u1)
    q.I("v_cndmask_b32", u3, u1, u3, VCC)
    q.I("v_lshlrev_b32", u3, 1, u3)
    q.I("v_mul_u32_u24", u4, 4 * 56, u2)
    q.I("v_add_u32", u3, u3, u4)
    q.I("s_mul_i32", sT, sHead, 1568)
    q.I("v_add_u32", u3, sT, u3)
    q.I("v_cmp_eq_u32", VCC, 1, u2)
    q.I("v_cndmask_b32", u4, u3, u5, VCC)
    for s in range(2):
        for j in range(8):
            d0 = 16 * s + 8 * (j >> 2) + (j & 3)
            q.I("buffer_load_ushort", WT[8 * s + j], u4 if d0 + 4 >= 28 else u3, SPHI, 0, mods=f"offen offset:{d0*56}")

XYS = 16384; NXY = 6; KVB = XYS * NXY; PAGE = 8192; NKV = 3
ASB = KVB + NKV * PAGE; ABLK = 32 * 528
K1_LDS = ASB + 2 * ABLK
KVL = ASB + 32768
KVROW = 320
KVP_L = ASB
NB = 15; BRING = NB * 2048
HF_OFF = FLG_OFF; KF_OFF = FLG_OFF + 8192; OF_OFF = FLG_OFF + 12288

lane = V(0)
XR = V(8, 56)
def xr(b, g): return XR.sub(8 * b + 4 * g, 4)
ACC = [V(64 + 16 * i, 16) for i in range(6)]
BF = [[V(160 + 12 * s + 4 * t, 4) for t in range(3)] for s in range(2)]
AFr = [[V(184 + 8 * s + 4 * i, 4) for i in range(2)] for s in range(2)]
LT = V(200, 16)
vBt = [[V(216 + 2 * t), V(217 + 2 * t)] for t in range(3)]
vAw, vAr, vD0, vDX, vDY, vSt = [V(222 + i) for i in range(6)]
vR = [V(228), V(229)]; vNM = [V(230), V(231)]
vMask, vC2, vTk, vL0 = V(232), V(233), V(234), V(235)
u1, u2, u3, u4, u5 = [V(236 + i) for i in range(5)]
WPHI = V(244, 8)
sW = S(3); sR, sJ, sRot = S(26), S(27), S(72)
SX, SQKV, SXs, SYs, SWS, SPHI, SD, SW2 = [S(28 + 4 * i, 4) for i in range(8)]
sT0, sT1, sT2, sT3 = S(60), S(61), S(62), S(63)
sO0, sOX, sLdsW, sL = S(64), S(65), S(66), S(67)
sM28 = S(68, 2)
sOut, sW2d = S(70), S(71)
sZ, sFl, sStr, sEnd = S(73), S(74), S(75), S(76)
a0, a1, a2 = S(77), S(78), S(79)
sG = S(58)

def dma_xy(q, c):
    slot = (c % NXY) * XYS
    q.I("s_add_u32", M0, sLdsW, slot)
    q.I("buffer_load_dwordx4", vDX, SXs, sOX, mods="offen lds", tag=f"dma{c}")
    q.I("s_add_u32", M0, sLdsW, slot + PAGE)
    q.I("buffer_load_dwordx4", vDY, SYs, sOX, mods="offen lds", tag=f"dma{c}")
    if c < 13:
        q.I("s_add_u32", sOX, sOX, sStr)
        if c % 2 == 1:
            q.I("s_cmp_eq_u32", sOX, sEnd); q.I("s_cselect_b32", sOX, 0, sOX)
def dma_kv(q, b):
    q.I("s_add_u32", M0, sLdsW, KVB + (b % NKV) * PAGE)
    q.I("buffer_load_dwordx4", vD0, SQKV, sO0, mods="offen lds", tag=f"kv{b}")
    if b < 6:
        q.I("s_add_u32", sO0, sO0, 64 * 2688); q.I("s_cmp_eq_u32", sO0, 448 * 2688); q.I("s_cselect_b32", sO0, 0, sO0)
def ln_unit(q, b, g):
    x = xr(b, g); T = LT.sub(0, 8)
    for i in range(4):
        q.I("v_lshlrev_b32", T[2 * i], 16, x[i])
        q.I("v_and_b32", T[2 * i + 1], 0xFFFF0000, x[i])
    for i in range(8): q.I("v_fma_f32", T[i], T[i], vR[g], vNM[g])
    for i in range(4): q.I("v_cvt_pk_bf16_f32", x[i], T[2 * i], T[2 * i + 1])
def a_write(q, b, g):
    q.I("ds_write_b128", vAw, xr(b, g), mods=f"offset:{(b % 2) * ABLK + g * 128}", tag=f"aw{b}")

def k1_common(p, cfg, st):
    t1, t2, t3, t4, t5, t6, t7 = [V(i) for i in range(1, 8)]
    p.I("s_cmp_ge_u32", S(2), 256)
    p.raw("    s_cbranch_scc1 K1_END")
    p.I("s_load_dwordx8", S(4, 8), S(0, 2), 0)
    p.I("s_load_dwordx8", S(12, 8), S(0, 2), 32)
    p.I("s_load_dwordx4", S(20, 4), S(0, 2), 64)
    p.I("s_load_dwordx2", S(24, 2), S(0, 2), 80)
    st.stamp(p, True)
    if cfg["stamps"] != 2: st.stamp(p)
    p.I("v_lshrrev_b32", V(1), 6, V(0))
    p.I("v_readfirstlane_b32", S(3), V(1))
    p.I("v_and_b32", V(0), 63, V(0))
    p.I("s_and_b32", sT0, S(2), 7); p.I("s_lshr_b32", sT1, S(2), 3)
    lr = {0: 3, 2: 2, 1: 1}[cfg["k1map"]]
    nxr = 16 >> lr
    p.I("s_and_b32", sT2, sT0, nxr - 1); p.I("s_lshl_b32", sT2, sT2, lr)
    p.I("s_and_b32", sT3, sT1, (1 << lr) - 1); p.I("s_add_u32", sR, sT2, sT3)
    p.I("s_lshr_b32", sT2, sT0, 4 - lr)
    p.I("s_lshr_b32", sT1, sT1, lr)
    if cfg["jcont"]: p.I("s_lshl_b32", sJ, sT2, 5 - lr); p.I("s_add_u32", sJ, sJ, sT1)
    else: p.I("s_lshl_b32", sJ, sT1, lr - 1); p.I("s_add_u32", sJ, sJ, sT2)
    p.I("s_lshl_b32", sRot, sT3, 3 - lr)
    p.I("s_and_b32", a0, sT0, nxr - 1); p.I("s_add_u32", sRot, sRot, a0)
    p.I("s_cmp_ge_u32", sRot, 7); p.I("s_cselect_b32", sT2, 7, 0); p.I("s_sub_u32", sRot, sRot, sT2)
    p.I("s_cmp_ge_u32", sRot, 7); p.I("s_cselect_b32", sT2, 7, 0); p.I("s_sub_u32", sRot, sRot, sT2)
    if cfg["rot"] == 0: p.I("s_mov_b32", sRot, 0)
    elif cfg["rot"] == 2: p.I("s_and_b32", sRot, sT3, 1); p.I("s_mul_i32", sRot, sRot, 3)
    elif cfg["rot"] == 3: p.I("s_and_b32", sRot, sT3, 3); p.I("s_lshl_b32", sRot, sRot, 1)
    elif cfg["rot"] == 4: p.I("s_and_b32", sRot, sT3, 1)
    if lr == 3: p.I("s_lshl_b32", sG, sT1, 1)
    else: p.I("s_mov_b32", sG, sT1)
    if not cfg["xrot"]: p.I("s_mov_b32", sG, 0)
    p.I("s_add_u32", sG, sG, sW); p.I("s_and_b32", sG, sG, 7)
    r8, k8 = t1, t2
    p.I("v_lshrrev_b32", r8, 3, lane)
    p.I("v_and_b32", k8, 7, lane)
    p.I("s_lshl_b32", sT0, sR, 7); p.I("s_lshl_b32", sT1, sG, 4); p.I("s_add_u32", sT0, sT0, sT1)
    p.I("v_add_u32", t3, sT0, r8)
    p.I("v_mul_u32_u24", t3, 896, t3)
    p.I("v_lshl_add_u32", t3, k8, 4, t3)
    p.I("v_add_u32", t4, 8 * 896, t3)
    p.I("s_lshl_b32", sT0, sRot, 7)
    srd(p, SX.n, 4, 2048 * 896)
    for b in range(7):
        p.I("buffer_load_dwordx4", xr(b, 0), t3, SX, sT0, mods="offen")
        p.I("buffer_load_dwordx4", xr(b, 1), t4, SX, sT0, mods="offen")
        if b < 6:
            p.I("s_add_u32", sT0, sT0, 128); p.I("s_cmp_eq_u32", sT0, 896); p.I("s_cselect_b32", sT0, 0, sT0)
    if cfg["xbar"] == 2:
        p.I("s_cmp_lt_u32", sW, 4); p.raw("    s_cbranch_scc1 K1_NB0"); p.I("s_barrier"); p.label("K1_NB0")
    if cfg["cpref"]: code_prefetch(p, NAME + "_kernel", "CODE_END", V(64, 4), t3, S(56, 2), sT0, sT1)
    srd(p, SQKV.n, 6, 448 * 2688)
    p.I("s_lshl_b32", sT1, sJ, 8)
    p.I("s_sub_u32", sT2, sJ, 14); p.I("s_mul_i32", sT2, sT2, 448)
    p.I("s_mov_b32", a0, 2688); p.I("s_mov_b32", a1, 448 * 2688)
    p.I("s_cmp_lt_u32", sJ, 14)
    p.I("s_cselect_b32", SXs[0], S(14), S(6)); p.I("s_cselect_b32", SXs[1], S(15), S(7))
    p.I("s_cselect_b32", SYs[0], S(16), S(6)); p.I("s_cselect_b32", SYs[1], S(17), S(7))
    p.I("s_cselect_b32", a0, 3584, a0)
    p.I("s_cselect_b32", sEnd, 448 * 3584, a1)
    p.I("s_cselect_b32", sT1, sT1, sT2)
    p.I("s_cselect_b32", a1, 2, 0)
    p.I("s_cselect_b32", a2, 0, 224)
    p.I("s_and_b32", SXs[1], SXs[1], 0xFFFF); p.I("s_and_b32", SYs[1], SYs[1], 0xFFFF)
    p.I("s_mov_b32", SXs[2], sEnd); p.I("s_mov_b32", SYs[2], sEnd)
    p.I("s_mov_b32", SXs[3], 0x20000); p.I("s_mov_b32", SYs[3], 0x20000)
    p.I("s_lshl_b32", sStr, a0, 5)
    p.I("s_mul_i32", sOX, sRot, sStr); p.I("s_lshl_b32", sOX, sOX, 1)
    p.I("v_lshrrev_b32", t3, 4, lane)
    p.I("v_and_b32", t4, 15, lane)
    p.I("v_lshlrev_b32", t5, 2, t3); p.I("v_xor_b32", t4, t4, t5)
    p.I("s_lshl_b32", sT0, sW, 2)
    p.I("v_add_u32", t3, sT0, t3)
    p.I("v_mul_u32_u24", t3, a0, t3)
    p.I("v_add_u32", t3, sT1, t3)
    p.I("v_lshl_add_u32", vDX, t4, 4, t3)
    p.I("v_xor_b32", t4, a1, t4)
    p.I("v_lshl_add_u32", vDY, t4, 4, t3)
    p.I("v_add_u32", vDY, a2, vDY)
    p.I("s_lshl_b32", sLdsW, sW, 10)
    p.I("v_bfe_u32", t5, r8, 1, 1)
    p.I("v_lshlrev_b32", t5, 2, t5)
    p.I("v_xor_b32", t5, t5, k8)
    p.I("s_lshl_b32", sT0, sW, 3)
    p.I("v_add_u32", t6, sT0, r8)
    p.I("v_lshrrev_b32", t3, 2, t5); p.I("v_mul_u32_u24", t3, 896, t3)
    p.I("v_and_b32", t4, 3, t5); p.I("v_lshl_add_u32", t3, t4, 4, t3)
    p.I("v_mul_u32_u24", t4, 2688, t6); p.I("v_add_u32", t3, t3, t4)
    p.I("s_mul_i32", sT1, sJ, 56); p.I("s_add_u32", sT1, sT1, 896)
    p.I("v_add_u32", vD0, sT1, t3)
    p.I("s_mul_i32", sO0, sRot, 64 * 2688)
    p.I("v_mul_u32_u24", vAw, 528, k8)
    p.I("v_lshl_add_u32", vAw, r8, 4, vAw)
    p.I("s_lshr_b32", sT0, sG, 1); p.I("s_mul_i32", sT0, sT0, 8 * 528)
    p.I("s_and_b32", sT1, sG, 1); p.I("s_lshl_b32", sT2, sT1, 8)
    p.I("s_add_u32", sT0, sT0, sT2); p.I("s_add_u32", sT0, sT0, ASB)
    p.I("v_add_u32", vAw, sT0, vAw)
    p.I("s_and_b32", sT1, sW, 1)
    srd(p, SWS.n, 24, WS_BYTES)
    p.I("v_lshlrev_b32", vSt, 4, lane)
    p.I("v_and_b32", u1, 31, lane)
    p.I("v_lshrrev_b32", u2, 5, lane)
    p.I("v_mul_u32_u24", vAr, 528, u2)
    p.I("v_lshl_add_u32", vAr, u1, 4, vAr)
    p.I("s_mul_i32", sT2, sT1, 16 * 528); p.I("s_add_u32", sT2, sT2, ASB)
    p.I("v_add_u32", vAr, sT2, vAr)
    p.I("v_mov_b32", vC2, f2u(GC2))
    sm = [LT[0], LT[1]]; sq = [LT[2], LT[3]]; ones = LT[4]
    p.I("v_mov_b32", ones, 0x3F803F80)
    for r in sm + sq: p.I("v_mov_b32", r, 0)
    for b in range(7):
        for g in range(2):
            for i in range(4):
                p.I("v_dot2c_f32_bf16", sm[g], xr(b, g)[i], ones)
                p.I("v_dot2c_f32_bf16", sq[g], xr(b, g)[i], xr(b, g)[i])
    for mod in ("quad_perm:[1,0,3,2]", "quad_perm:[2,3,0,1]", "row_half_mirror"):
        for r in sm + sq:
            p.I("v_add_f32_dpp", r, r, r, mods=mod + " row_mask:0xf bank_mask:0xf")
    for g in range(2):
        p.I("v_mul_f32", sm[g], f2u(1.0 / 448), sm[g])
        p.I("v_mul_f32", sq[g], f2u(1.0 / 448), sq[g])
    for g in range(2): p.I("v_fma_f32", sq[g], Neg(sm[g]), sm[g], sq[g])
    for g in range(2): p.I("v_max_f32", sq[g], 0, sq[g])
    for g in range(2): p.I("v_add_f32", sq[g], f2u(1e-5), sq[g])
    for g in range(2): p.I("v_rsq_f32", vR[g], sq[g])
    for g in range(2): p.I("v_mul_f32_e64", vNM[g], Neg(sm[g]), vR[g])
    st.stamp(p)
    p.I("s_lshr_b32", a0, sStr, 1)
    if cfg["xbar"] == 2:
        p.I("s_cmp_ge_u32", sW, 4); p.raw("    s_cbranch_scc1 K1_NB1"); p.I("s_barrier"); p.label("K1_NB1")
    p.I("s_cmp_ge_u32", sW, 4)
    p.raw("    s_cbranch_scc1 K1_NODMA")
    p.I("s_mov_b32", a1, sOX)
    for c in range(2):
        for hh in range(2):
            if hh: p.I("s_add_u32", a2, a1, a0)
            so = a2 if hh else a1
            p.I("s_add_u32", M0, sLdsW, c * XYS + hh * 4096)
            p.I("buffer_load_dwordx4", vDX, SXs, so, mods="offen lds", tag=f"dma{c}")
            p.I("s_add_u32", M0, sLdsW, c * XYS + PAGE + hh * 4096)
            p.I("buffer_load_dwordx4", vDY, SYs, so, mods="offen lds", tag=f"dma{c}")
        if c == 0:
            p.I("s_add_u32", a1, a1, sStr)
            p.I("s_add_u32", a2, sO0, 32 * 2688)
            p.I("s_add_u32", M0, sLdsW, KVB)
            p.I("buffer_load_dwordx4", vD0, SQKV, sO0, mods="offen lds", tag="kv0")
            p.I("s_add_u32", M0, sLdsW, KVB + 4096)
            p.I("buffer_load_dwordx4", vD0, SQKV, a2, mods="offen lds", tag="kv0")
    p.label("K1_NODMA")
    p.I("s_add_u32", sOX, sOX, sStr); p.I("s_add_u32", sOX, sOX, sStr)
    p.I("s_cmp_eq_u32", sOX, sEnd); p.I("s_cselect_b32", sOX, 0, sOX)
    p.I("s_add_u32", sO0, sO0, 64 * 2688); p.I("s_cmp_eq_u32", sO0, 448 * 2688); p.I("s_cselect_b32", sO0, 0, sO0)
    ln_unit(p, 0, 0); a_write(p, 0, 0); ln_unit(p, 0, 1); a_write(p, 0, 1)
    for c in range(2, cfg["npre"]): dma_xy(p, c)
    dma_kv(p, 1)
    p.I("s_cmp_ge_u32", sJ, 14)
    p.raw("    s_cbranch_scc1 K1_Q")
    p.I("s_cmp_ge_u32", S(3), 4)
    p.raw("    s_cbranch_scc1 K1_F1")

def gen_k1(cfg):
    name = NAME + "_kernel"
    txt = kernel_header(name)
    first = True
    for typ in ("F", "Q"):
        for grp in (0, 1):
            p = Prog(); st = Stamps(cfg["stamps"], 0)
            if cfg["stamps"] == 2:
                o2 = st.stamp
                st.stamp = lambda pp, real=False, o2=o2: o2(pp, True)
            if cfg.get("its") is not None:
                orig = st.stamp
                def stamp2(pp, real=False, force=False, orig=orig):
                    if real or force: orig(pp, real)
                st.stamp = stamp2
            k1_common(p, cfg, st)
            mark = p.raw("; ---- role code ----")
            if typ == "Q" and grp == 0:
                p.label("K1_Q"); p.I("s_cmp_ge_u32", S(3), 4); p.raw("    s_cbranch_scc1 K1_Q1")
            elif grp == 1: p.label(f"K1_{typ}1")
            k1_role(p, typ, grp, cfg, st)
            L = finalize(p)
            k = L.index(mark)
            txt += render(L if first else L[k:])
            first = False
    txt += "K1_END:\n    s_endpgm\n"
    return txt, kernel_desc(name, 256)

def k1_role(p, typ, grp, cfg, st):
    t1, t2, t3, t4, t5, t6, t7 = [V(i) for i in range(1, 8)]
    stp = " sc1" if cfg["sc1"] else ""
    NT = 3
    ch, r4, cq = t3, t4, t5
    p.I("v_bfe_u32", ch, lane, 4, 1); p.I("v_bfe_u32", r4, lane, 2, 2); p.I("v_and_b32", cq, 3, lane)
    p.I("v_lshl_add_u32", t6, u2, 3, r4)
    p.I("v_lshlrev_b32", cq, 3, cq)
    p.I("v_lshl_add_u32", t1, ch, 5, cq)
    p.I("v_lshlrev_b32", t7, 6, r4)
    p.I("s_lshr_b32", sT0, sW, 1); p.I("s_and_b32", sT0, sT0, 1)
    if grp == 0: p.I("s_mul_i32", sT1, sT0, 3)
    else: p.I("s_add_u32", sT1, sT0, 6)
    nxy = 3 if grp == 0 else 1
    for t in range(nxy):
        if t: p.I("s_add_u32", sT1, sT1, 1)
        if typ == "F":
            p.I("s_lshl_b32", sT2, sT1, 5)
            p.I("v_xor_b32", t2, sT2, t1); p.I("v_xor_b32", t2, t2, t7)
            p.I("v_lshl_add_u32", t2, ch, 13, t2)
        else:
            p.I("s_and_b32", sT2, sT1, 3); p.I("s_mul_i32", sT2, sT2, 56)
            p.I("s_lshr_b32", sT3, sT1, 2); p.I("s_lshl_b32", sT3, sT3, 13)
            p.I("v_add_u32", t2, sT2, t1); p.I("v_xor_b32", t2, t2, t7)
            p.I("v_add_u32", t2, sT3, t2)
        p.I("v_lshl_add_u32", vBt[t][0], t6, 8, t2)
        p.I("v_add_u32", vBt[t][1], 3 * XYS, vBt[t][0])
    if grp == 1:
        p.I("v_bfe_u32", t7, lane, 3, 1); p.I("v_lshlrev_b32", t7, 6, t7)
        p.I("v_xor_b32", t2, t1, t7)
        p.I("v_lshl_add_u32", t2, t6, 7, t2)
        p.I("v_add_u32", vBt[1][0], KVB, t2)
        p.I("v_xor_b32", vBt[2][0], 64, vBt[1][0])
    p.I("s_and_b32", sT2, sW, 1); p.I("s_lshl_b32", sT2, sT2, 1); p.I("s_lshl_b32", sT3, sR, 2); p.I("s_add_u32", sT2, sT2, sT3)
    if nxy > 1: p.I("s_sub_u32", sT1, sT1, nxy - 1)
    if typ == "F":
        p.I("s_mul_i32", sOut, sT2, NKS * 1024)
        p.I("s_lshl_b32", sT3, sJ, 3); p.I("s_add_u32", sT3, sT3, sT1); p.I("s_lshl_b32", sT3, sT3, 10)
        p.I("s_add_u32", sOut, sOut, sT3)
        RTS, TS = NKS * 1024, 1024
    else:
        p.I("s_lshl_b32", sOut, sT2, 15)
        p.I("s_sub_u32", sT3, sJ, 14); p.I("s_lshl_b32", sT3, sT3, 3); p.I("s_add_u32", sT3, sT3, sT1); p.I("s_lshl_b32", sT3, sT3, 11)
        p.I("s_add_u32", sOut, sOut, sT3); p.I("s_add_u32", sOut, sOut, QF_OFF)
        RTS, TS = 1 << 15, 2048
    if grp == 1:
        p.I("s_mul_i32", sT3, sT0, 8 * 528)
        p.I("v_add_u32", u3, 8 * 528, vAr); p.I("v_subrev_u32", u3, sT3, u3)
        p.I("v_add_u32", vAr, sT3, vAr)
        p.I("v_mov_b32", V(243), u3)
        p.I("s_mul_i32", sT3, sT0, RTS)
        p.I("s_add_u32", a0, sOut, RTS); p.I("s_sub_u32", a0, a0, sT3)
        p.I("s_add_u32", sOut, sOut, sT3)
        p.I("s_mov_b32", S(59), a0)
    vAr2 = V(243); sOut2 = S(59)
    ln_unit(p, 1, 0)

    def b_reads(c, ks, t):
        dst = BF[ks][t]
        if grp == 0 or t == 0:
            slot = c % NXY; var = slot // 3
            off = (slot % 3) * XYS + 16 * ks * 256
            return [Inst("ds_read_b64_tr_b16", (dst.sub(2 * pp, 2), vBt[t][var]), f"offset:{off + pp * 1024}") for pp in range(2)]
        off = ((c >> 1) % NKV) * PAGE + (32 * (c & 1) + 16 * ks) * 128
        return [Inst("ds_read_b64_tr_b16", (dst.sub(2 * pp, 2), vBt[t][0]), f"offset:{off + pp * 512}") for pp in range(2)]
    def a_read(c, ks, i):
        b = c >> 1; k4 = 2 * (c & 1) + ks
        if grp == 0: return Inst("ds_read_b128", (AFr[ks][i], vAr), f"offset:{(b % 2) * ABLK + (i * 4 + k4) * 2 * 528}")
        return Inst("ds_read_b128", (AFr[ks][i], vAr if i == 0 else vAr2), f"offset:{(b % 2) * ABLK + k4 * 2 * 528}")
    def reads(c, ks):
        return [a_read(c, ks, 0)] + b_reads(c, ks, 0) + [a_read(c, ks, 1)] + b_reads(c, ks, 1) + b_reads(c, ks, 2)
    def mfmas(c, ks):
        f = (c == 0 and ks == 0)
        M = lambda d, a, b: Inst(MF, (d, a, b, 0 if f else d))
        if grp == 0: return [M(ACC[2 * t + i], BF[ks][t], AFr[ks][i]) for t in range(3) for i in range(2)]
        return [M(ACC[0], BF[ks][0], AFr[ks][0]), M(ACC[1], BF[ks][0], AFr[ks][1]),
                M(ACC[2], BF[ks][1], AFr[ks][0]), M(ACC[3], AFr[ks][0], BF[ks][2])]

    seg = {n: Prog() for n in range(15)}
    W2T = XR.sub(0, 8); WT = XR.sub(8, 16)
    q = seg[11]
    srd(q, SD.n, 22, 256)
    q.I("v_lshlrev_b32", vL0, 2, lane)
    q.I("buffer_load_dword", vTk, vL0, SD, 0, mods="offen sc1")
    if cfg["wdpf"]:
        q = seg[cfg["wdpf"]]
        if cfg["wdmode"] == 0:
            q.I("s_lshr_b32", sT0, S(2), 3); q.I("s_lshl_b32", sT0, sT0, 3); q.I("s_add_u32", sT0, sT0, sW); q.I("s_lshl_b32", sT0, sT0, 13)
        else:
            q.I("s_lshl_b32", sT0, S(2), 3); q.I("s_add_u32", sT0, sT0, sW); q.I("s_lshl_b32", sT0, sT0, 10)
        q.I("s_sub_u32", sT1, sT0, 1792 * 896)
        q.I("s_mov_b32", sT2, 448 * 896)
        q.I("s_cmp_lt_u32", sT0, 1792 * 896)
        q.I("s_cselect_b32", SX[0], S(18), S(10)); q.I("s_cselect_b32", SX[1], S(19), S(11))
        q.I("s_cselect_b32", SX[2], 1792 * 896, sT2)
        q.I("s_cselect_b32", sT0, sT0, sT1)
        q.I("s_and_b32", SX[1], SX[1], 0xFFFF)
        if cfg["wdmode"] == 0:
            q.I("v_lshlrev_b32", u3, 7, lane)
            q.I("buffer_load_dword", XR[0], u3, SX, sT0, mods="offen")
        else:
            q.I("buffer_load_dwordx4", XR.sub(0, 4), vSt, SX, sT0, mods="offen")
    IDN = XR.sub(24, 8)
    if grp == 1:
        q = seg[0]
        srd(q, SD.n, 22, 256)
        q.I("v_mov_b32", u5, BIG)
        q.I("v_cmp_eq_u32", VCC, 0, lane)
        q.I("v_cndmask_b32", vL0, u5, 0, VCC)
        q.I("s_lshl_b32", sT0, sJ, 2); q.I("s_add_u32", sT0, sT0, sW); q.I("s_sub_u32", sT0, sT0, 4)
        q.I("s_lshl_b32", sT1, sT0, 11); q.I("s_add_u32", sT1, sT1, KVA_OFF)
        q.I("s_lshl_b32", sT2, sT0, 8); q.I("s_add_u32", sT2, sT2, FLG_OFF)
        q.I("s_lshl_b32", sFl, sT0, 2)
        q.I("s_lshl_b32", sZ, sJ, 13); q.I("s_add_u32", sZ, sZ, KVA_OFF)
        q.I("s_cmp_eq_u32", sR, sJ)
        q.I("s_cselect_b32", sT2, sT2, BIG)
        q.I("s_cselect_b32", sT1, sT1, BIG)
        q.I("s_cselect_b32", sFl, sFl, BIG)
        ZR = V(128, 4)
        for i in range(4): q.I("v_mov_b32", ZR[i], 0)
        for s in range(2): q.I("buffer_store_dwordx4", ZR, vSt, SWS, sT1, mods=f"offen offset:{s*1024} sc1", tag="zs")
        q.I("v_cmp_gt_u32", VCC, 16, lane)
        q.I("v_cndmask_b32", u3, u5, vSt, VCC)
        q.I("buffer_store_dwordx4", ZR, u3, SWS, sT2, mods="offen sc1", tag="zs")
        q = seg[5]
        q.I("v_mov_b32", vTk, 1)
        q.waittag("zs")
        q.I("buffer_store_dword", vTk, vL0, SD, sFl, mods="offen sc1")
        q = seg[10]
        srd(q, SPHI.n, 8, 16 * 1568)
        q.I("s_mov_b32", sL, f2u(LOG2E))
        wphi_gather(q, WT, SPHI, sJ, sT0, lane, u1, u2, u3, u4, u5)
        q.I("v_cmp_eq_u32", VCC, 0, u2)
        q.I("v_cndmask_b32", vMask, 0, 1.0, VCC)
        q = seg[12]
        q.I("v_cmp_eq_u32", sM28, 28, u1)
        q.I("v_lshlrev_b32", u3, 2, u2); q.I("v_sub_u32", u3, u1, u3)
        q.I("v_and_b32", u4, 1, u3); q.I("v_lshlrev_b32", u4, 4, u4); q.I("v_mov_b32", u5, 0x3F80); q.I("v_lshlrev_b32", u4, u4, u5)
        q.I("v_lshrrev_b32", u3, 1, u3)
        for s in range(2):
            for i in range(4):
                f0 = 16 * s + 8 * ((2 * i) >> 2) + ((2 * i) & 3)
                q.I("v_cmp_eq_u32", VCC, f0 // 2, u3)
                q.I("v_cndmask_b32", IDN[4 * s + i], 0, u4, VCC)
        q = seg[13]
        for i in range(8): q.I("v_lshl_or_b32", WPHI[i], WT[2 * i + 1], 16, WT[2 * i])
    q = seg[12]
    q.I("v_mov_b32", LT[8], 0); q.I("v_mov_b32", LT[9], KVL)
    q.I("ds_write_b32", LT[9], LT[8], tag="zl")

    p.waittag("dma0", "dma1", "kv0", "aw0")
    p.I("s_barrier")
    st.stamp(p)
    p.L.extend(reads(0, 0))
    nxt = cfg["npre"]
    for c in range(14):
        fill = Prog()
        ln = Prog()
        if c % 2 == 0:
            b = c // 2 + 1
            if b < 7: a_write(ln, b, 0); ln_unit(ln, b, 1); a_write(ln, b, 1)
        else:
            b = (c + 3) // 2
            if b < 7: ln_unit(ln, b, 0)
        dm = Prog()
        cnt = 0
        while nxt < 14 and nxt <= c + cfg["la"] and cnt < 2:
            dma_xy(dm, nxt); nxt += 1; cnt += 1
        kvp = cfg["kvodd"]
        if c % 2 == kvp and c // 2 + 2 < 7: dma_kv(dm, c // 2 + 2)
        if cfg["spread"]:
            groups = []; cur = []
            for i in dm.L:
                cur.append(i)
                if i.kind == "dma": groups.append(cur); cur = []
            if groups: groups[-1] += cur
            n = len(groups)
            step = max(1, len(ln.L) // max(1, n))
            k = 0
            for gi in range(n):
                fill.extend(groups[gi]); fill.extend(ln.L[k:k + step]); k += step
            fill.extend(ln.L[k:])
        else:
            fill.extend(ln); fill.extend(dm)
        if cfg.get("no_dma"): fill.L = [i for i in fill.L if i.kind != "dma"]
        if cfg.get("no_lnw"): fill.L = [i for i in fill.L if i.kind != "lwrite"]
        if cfg.get("no_lnv"): fill.L = [i for i in fill.L if i.kind != "valu"]
        fill.extend(seg[c])
        F = fill.L
        nm = 12 if grp == 0 else 8
        per = len(F) / max(1.0, nm * cfg["front"] / 100.0)
        acc = 0.0; fi = 0
        if cfg["pp"]:
            per = cfg["ppin"] / 10.0
            if grp == 1:
                nin = min(len(F), int(per * nm))
                p.L.extend(F[:len(F) - nin]); fi = len(F) - nin
        if cfg["prio"] and cfg["pp"]: p.I("s_setprio", 1)
        for ks in range(2):
            nc, nks = (c, 1) if ks == 0 else (c + 1, 0)
            rd = reads(nc, nks) if nc < 14 else []
            ms = mfmas(c, ks)
            rp = 2 if grp == 0 else 3
            for m in ms:
                p.L.append(m)
                p.L.extend(rd[:rp]); rd = rd[rp:]
                acc += per
                while acc >= 1 and fi < len(F):
                    p.L.append(F[fi]); fi += 1; acc -= 1
        if cfg["prio"] and cfg["pp"]: p.I("s_setprio", 0)
        p.L.extend(F[fi:])
        if c + 1 < 14:
            if cfg.get("its") is not None and cfg["its"] <= c < cfg["its"] + 4: st.stamp(p, force=True)
            p.waittag(f"dma{c+2}", f"kv{(c+2)//2}", f"aw{(c+2)//2}", "zl")
            p.I("s_barrier")
            if cfg.get("its") is not None and cfg["its"] <= c < cfg["its"] + 4: st.stamp(p, force=True)
    st.stamp(p)
    uid = f"{typ}{grp}"
    def spin(name, vd, va, srdreg, soff, mask=None, sleep=4, first_loaded=False):
        cmp = f"    v_cmp_ne_u32 vcc, 1, {vd}\n" + (f"    s_nop 4\n    s_and_b64 vcc, vcc, {mask}\n" if mask is not None else "    s_nop 4\n")
        L = f"SP_{name}_{uid}"
        t = ""
        if first_loaded:
            p.I("v_mov_b32", vd, vd)
            t += cmp + f"    s_cbranch_vccz {L}_OK\n"
        t += (f"    s_mov_b32 s61, 0\n{L}:\n    buffer_load_dword {vd}, {va}, {srdreg}, {soff} offen sc1\n    s_add_u32 s61, s61, 1\n    s_cmp_gt_u32 s61, 0x20000\n"
              f"    s_cbranch_scc1 {L}_OK\n    s_waitcnt vmcnt(0)\n" + cmp + f"    s_cbranch_vccz {L}_OK\n    s_sleep {sleep}\n    s_branch {L}\n{L}_OK:")
        p.raw(t)
    p.I("s_barrier")
    spin("Z", vTk, vL0, SD, 0, first_loaded=True)
    OUT = V(160, 40); TMP = XR.sub(32, 24)
    cnt = [0]
    def tile_epi(q, acc, so, off):
        k = cnt[0]; cnt[0] += 1
        if typ == "F":
            o = OUT.sub(4 * (k % 6), 4)
            gelu_tile(q, acc, TMP.sub(8 * (k % 2), 8), o, vC2)
            q.I("buffer_store_dwordx4", o, vSt, SWS, so, mods=f"offen offset:{off} sc1", tag="hst")
        else:
            o = OUT.sub(8 * (k % 4), 8)
            for i in range(8): q.I("v_cvt_pk_bf16_f32", o[i], acc[2 * i], acc[2 * i + 1])
            for s in range(2): q.I("buffer_store_dwordx4", o.sub(4 * s, 4), vSt, SWS, so, mods=f"offen offset:{off + s*1024} sc1", tag="hst")
    vOne, vLn0 = V(241), V(242)
    p.I("v_mov_b32", vOne, 1); p.I("v_mov_b32", u5, BIG)
    p.I("v_cmp_eq_u32", VCC, 0, lane)
    p.I("v_cndmask_b32", vLn0, u5, 0, VCC)
    def set_hflag():
        p.I("s_lshl_b32", sT0, sR, 1); p.I("s_and_b32", sT1, sW, 1); p.I("s_add_u32", sT0, sT0, sT1); p.I("s_lshl_b32", sT0, sT0, 8)
        p.I("s_lshl_b32", sT1, sJ, 2); p.I("s_lshr_b32", sT2, sW, 1); p.I("s_add_u32", sT1, sT1, sT2); p.I("s_lshl_b32", sT1, sT1, 2)
        p.I("s_add_u32", sT0, sT0, sT1); p.I("s_add_u32", sT0, sT0, HF_OFF)
        p.waittag("hst")
        p.I("buffer_store_dword", vOne, vLn0, SWS, sT0, mods="offen sc1")
    if grp == 0:
        SWD, SWO, SO = SQKV, SXs, SYs
        sRB, sCB, sBd, sBo, sRing, sTm = S(64), S(65), S(66), S(67), S(68), S(69)
        vE0, vE1, vT0, vT1 = V(216), V(217), V(218), V(219)
        srd(p, SWD.n, 18, 1792 * 896); srd(p, SWO.n, 10, 448 * 896); srd(p, SO.n, 20, 2048 * 896)
        p.I("s_sub_u32", sT2, S(2), 32)
        p.I("s_and_b32", sT0, sT2, 7); p.I("s_lshr_b32", sT1, sT2, 3)
        p.I("s_mul_i32", sT2, sT1, 37); p.I("s_lshr_b32", sT2, sT2, 8)
        p.I("s_lshl_b32", sRB, sT0, 2); p.I("s_add_u32", sRB, sRB, sT2)
        p.I("s_mul_i32", sT2, sT2, 7); p.I("s_sub_u32", sCB, sT1, sT2)
        p.I("s_lshl_b32", sT0, sCB, 7)
        p.I("s_mul_i32", sBd, sW, 28 * 16 * 896); p.I("s_add_u32", sBd, sBd, sT0)
        p.I("s_mul_i32", sBo, sW, 4 * 28 * 896); p.I("s_add_u32", sBo, sBo, sT0)
        p.I("s_cmp_lt_u32", S(2), 32); p.I("s_cselect_b32", sBd, BIG, sBd)
        p.I("s_mul_i32", sRing, sW, BRING)
        p.I("v_lshrrev_b32", t1, 3, lane); p.I("v_and_b32", t2, 7, lane)
        p.I("v_bfe_u32", t3, lane, 4, 1); p.I("v_lshlrev_b32", t3, 2, t3); p.I("v_xor_b32", t2, t2, t3)
        p.I("v_mul_u32_u24", vE0, 896, t1); p.I("v_lshl_add_u32", vE0, t2, 4, vE0)
        p.I("v_cmp_gt_u32", VCC, 32, lane)
        p.I("v_cndmask_b32", vE1, u5, vE0, VCC)
        p.I("v_bfe_u32", t1, lane, 2, 2); p.I("v_lshl_add_u32", t1, u2, 2, t1)
        p.I("v_bfe_u32", t2, lane, 4, 1); p.I("v_and_b32", t3, 3, lane); p.I("v_lshlrev_b32", t3, 3, t3); p.I("v_lshl_add_u32", t2, t2, 5, t3)
        p.I("v_bfe_u32", t3, lane, 3, 1); p.I("v_lshlrev_b32", t3, 6, t3); p.I("v_xor_b32", t2, t2, t3)
        p.I("v_lshl_add_u32", vT0, t1, 7, t2); p.I("v_add_u32", vT0, sRing, vT0)
        p.I("v_xor_b32", vT1, 64, vT0)
        def bdma(q, k):
            for i in range(2):
                if k < 28:
                    q.I("s_add_u32", sTm, sBd, (16 * k + 8 * i) * 896); sr, va = SWD, vE0
                else:
                    kk = k - 28
                    q.I("s_add_u32", sTm, sBo, ((kk >> 1) * 28 + 16 * (kk & 1) + 8 * i) * 896); sr = SWO
                    va = vE1 if (kk & 1 and i == 1) else vE0
                q.I("s_add_u32", M0, sRing, (k % NB) * 2048 + i * 1024)
                q.I("buffer_load_dwordx4", va, sr, sTm, mods="offen lds", tag=f"b{k}")
        E = Prog(); Dm = Prog()
        p.I("s_add_u32", sT3, sOut, RTS)
        p.I("s_add_u32", a1, sOut, 2 * TS); p.I("s_add_u32", a2, sT3, 2 * TS)
        for t in range(3):
            for i in range(2):
                if t < 2: tile_epi(E, ACC[2 * t + i], sOut if i == 0 else sT3, t * TS)
                else: tile_epi(E, ACC[2 * t + i], a1 if i == 0 else a2, 0)
        NE = cfg["bearly"]
        for k in range(NE): bdma(Dm, k)
        grp3 = [Dm.L[i:i + 3] for i in range(0, len(Dm.L), 3)]
        step = max(1, int(len(E.L) * 0.5) // max(1, len(grp3)))
        k = 0
        for g3 in grp3:
            p.L.extend(g3); p.L.extend(E.L[k:k + step]); k += step
        p.L.extend(E.L[k:])
        set_hflag()
        st.stamp(p)
        p.I("s_cmp_lt_u32", S(2), 32)
        p.raw(f"    s_cbranch_scc1 P2_END_{uid}")
        BP = cfg["bpre"]
        for k in range(NE, BP): bdma(p, k)
        nb = [BP]
        DA = cfg["da"]
        AC2 = [[V(64 + 32 * r + 16 * c, 16) for c in range(2)] for r in range(2)]
        BB = [V(8 + 8 * i, 8) for i in range(2)]
        AB = [V(128 + 8 * d, 8) for d in range(DA)]
        VO = V(24, 7); XV = V(32, 8); vP, vZ, vG, vLr, vLw = V(40), V(41), V(42), V(43), V(44)
        sA = [S(70), S(71)]; sAo = [S(73), S(74)]; sFlag = S(75); sM56 = S(76, 2) if False else S(56, 2)
        p.I("s_mul_i32", sT0, sW, 28 * 1024)
        p.I("s_mul_i32", sT1, sRB, 2 * NKS * 1024); p.I("s_add_u32", sA[0], sT1, sT0); p.I("s_add_u32", sA[1], sA[0], NKS * 1024)
        p.I("s_lshl_b32", sT0, sW, 13); p.I("s_add_u32", sT0, sT0, 112 * 1024)
        p.I("s_add_u32", sAo[0], sT1, sT0); p.I("s_add_u32", sAo[1], sAo[0], NKS * 1024)
        for m in range(7): p.I("v_add_u32", VO[m], 4096 * m, vSt)
        srd(p, SX.n, 4, 2048 * 896)
        p.I("s_lshl_b32", sT0, sW, 6); p.I("v_add_u32", t1, sT0, lane)
        p.I("v_lshrrev_b32", t2, 3, t1); p.I("v_and_b32", t3, 7, t1)
        p.I("s_lshl_b32", sT0, sRB, 6)
        p.I("v_add_u32", vG, sT0, t2); p.I("v_mul_u32_u24", vG, 896, vG); p.I("v_lshl_add_u32", vG, t3, 4, vG)
        p.I("s_lshl_b32", sT0, sCB, 7); p.I("v_add_u32", vG, sT0, vG)
        p.I("v_mul_u32_u24", vLr, K2_ROW, t2); p.I("v_lshl_add_u32", vLr, t3, 5, vLr)
        p.I("v_mul_u32_u24", vLw, K2_ROW, u1); p.I("v_lshl_add_u32", vLw, u2, 4, vLw); p.I("v_add_u32", vLw, sRing, vLw)
        p.I("v_lshlrev_b32", vZ, 2, lane)
        if cfg["hmask"]:
            p.I("s_mul_i32", sT0, sW, 7); p.I("s_lshr_b32", sT0, sT0, 1); p.I("s_lshl_b32", sT0, sT0, 2)
            p.I("s_mov_b32", sM56[0], 0xFFFF); p.I("s_mov_b32", sM56[1], 0)
            p.I("s_lshl_b64", sM56, sM56, sT0)
        else:
            p.I("s_mov_b32", sM56[0], -1); p.I("s_mov_b32", sM56[1], 0x00FFFFFF)
        p.I("s_lshl_b32", sFlag, sRB, 8); p.I("s_add_u32", sFlag, sFlag, HF_OFF)
        p.I("s_mov_b32", a0, 32 * 896)
        p.I("buffer_load_dwordx4", XV.sub(0, 4), vG, SX, 0, mods="offen")
        p.I("buffer_load_dwordx4", XV.sub(4, 4), vG, SX, a0, mods="offen")
        spin("H", vP, vZ, SWS, sFlag, mask=sM56, sleep=cfg["slh"])
        if cfg["inv"]: p.I("buffer_inv", mods="sc1")
        st.stamp(p)
        p.I("s_lshl_b32", sFlag, sRB, 7); p.I("s_add_u32", sFlag, sFlag, OF_OFF)
        p.I("v_lshlrev_b32", vZ, 2, u1)
        def aload(k):
            kk = k if k < 28 else k - 28
            for r in range(2):
                p.I("buffer_load_dwordx4", AB[k % DA].sub(4 * r, 4), VO[kk // 4], SWS, (sA if k < 28 else sAo)[r], mods=f"offen offset:{(kk % 4) * 1024}" + ("" if (cfg["inv"] and k < 28) else " sc1"))
        def bread(k):
            p.waittag(f"b{k}")
            for c in range(2):
                for pp in range(2):
                    p.I("ds_read_b64_tr_b16", BB[k & 1].sub(4 * c + 2 * pp, 2), vT1 if c else vT0, mods=f"offset:{(k % NB) * 2048 + pp * 1024}")
        for k in range(DA): aload(k)
        bread(0)
        kpoll = 28 - DA - cfg["pollahead"]
        for k in range(36):
            if k + 1 < 36: bread(k + 1)
            for r in range(2):
                for c in range(2):
                    p.I(MF, AC2[r][c], BB[k & 1].sub(4 * c, 4), AB[k % DA].sub(4 * r, 4), 0 if k == 0 else AC2[r][c])
            if k == kpoll: p.I("buffer_load_dword", vP, vZ, SWS, sFlag, mods="offen sc1")
            if k + DA == 28:
                if cfg["stamps"] == 2: st.stamp(p)
                spin("O", vP, vZ, SWS, sFlag, first_loaded=True, sleep=8)
                if cfg["stamps"] == 2: st.stamp(p)
            if k + DA < 36: aload(k + DA)
            c2 = 0
            while nb[0] < 36 and nb[0] <= k + cfg["bla"] and c2 < 2:
                bdma(p, nb[0]); nb[0] += 1; c2 += 1
        for r in range(2):
            for c in range(2):
                for g in range(4):
                    p.I("ds_write_b128", vLw, AC2[r][c].sub(4 * g, 4), mods=f"offset:{r*32*K2_ROW + (c*32+8*g)*4}", tag="pw")
        p.waittag("pw")
        p.I("s_barrier")
        RD = V(64, 64)
        p.I("v_add_u32", t1, 2 * BRING, vLr)
        for pp in range(2):
            for w in range(4):
                for hh in range(2):
                    p.I("ds_read_b128", RD.sub(32 * pp + 8 * w + 4 * hh, 4), vLr if w < 2 else t1, mods=f"offset:{(w & 1) * BRING + pp*32*K2_ROW + hh*16}")
        for pp in range(2):
            R = RD.sub(32 * pp, 32)
            for i in range(8): p.I("v_add_f32", R[i], R[i], R[8 + i])
            for i in range(8): p.I("v_add_f32", R[16 + i], R[16 + i], R[24 + i])
            Xr = XV.sub(4 * pp, 4); T = V(8, 8)
            for i in range(4):
                p.I("v_lshlrev_b32", T[2 * i], 16, Xr[i]); p.I("v_and_b32", T[2 * i + 1], 0xFFFF0000, Xr[i])
            for i in range(8): p.I("v_add_f32", R[i], R[i], R[16 + i])
            for i in range(8): p.I("v_add_f32", R[i], R[i], T[i])
            O = V(16 + 4 * pp, 4)
            for i in range(4): p.I("v_cvt_pk_bf16_f32", O[i], R[2 * i], R[2 * i + 1])
            p.I("buffer_store_dwordx4", O, vG, SO, 0 if pp == 0 else a0, mods="offen")
        p.label(f"P2_END_{uid}")
    else:
        if cfg["sprio"]: p.I("s_setprio", cfg["sprio"])
        tile_epi(p, ACC[0], sOut, 0)
        tile_epi(p, ACC[1], sOut2, 0)
        if cfg["sprio"] and cfg["sdrop"]: p.I("s_setprio", 0)
        K, Vv, PACC = ACC[2], ACC[3], ACC[4]
        qb = LT.sub(0, 8); VB = ACC[5].sub(0, 8); NEG = ACC[5].sub(8, 8); POS = LT.sub(0, 8)
        for i in range(8): p.I("v_cvt_pk_bf16_f32", qb[i], K[2 * i], K[2 * i + 1])
        p.I(MF, PACC, WPHI.sub(0, 4), qb.sub(0, 4), 0)
        p.I(MF, PACC, WPHI.sub(4, 4), qb.sub(4, 4), PACC)
        p.I("v_mov_b32", u3, 0x3F803F80)
        for r in range(8): p.I("v_cvt_pk_bf16_f32", VB[r], Vv[2 * r], Vv[2 * r + 1])
        for r in range(8): p.I("v_cndmask_b32", VB[r], VB[r], u3, sM28)
        set_hflag()
        if cfg["stamps"] == 2: st.stamp(p)
        softmax_core(p, PACC, K, LT.sub(8, 8), POS, NEG, vMask, sL)
        Tt = [K, PACC]
        for ft, src in enumerate((POS, NEG)):
            p.I(MF, Tt[ft], src.sub(0, 4), IDN.sub(0, 4), 0)
            p.I(MF, Tt[ft], src.sub(4, 4), IDN.sub(4, 4), Tt[ft])
        if cfg["sprio"] and cfg["sdrop"]: p.I("s_setprio", 3)
        p.I("v_lshlrev_b32", u4, 2, lane)
        PT = [LT.sub(0, 8), LT.sub(8, 8)]
        for ft in range(2):
            for r in range(8): p.I("v_cvt_pk_bf16_f32", PT[ft][r], Tt[ft][2 * r], Tt[ft][2 * r + 1])
        for ft in range(2):
            p.I(MF, Tt[ft], PT[ft].sub(0, 4), VB.sub(0, 4), 0)
            p.I(MF, Tt[ft], PT[ft].sub(4, 4), VB.sub(4, 4), Tt[ft])
        p.I("s_lshl_b32", sT0, sW, 13); p.I("s_add_u32", sT0, sT0, KVP_L - 4 * 8192)
        p.I("v_add_u32", u3, sT0, vSt)
        p.I("v_mov_b32", t1, KVL); p.I("v_mov_b32", t2, 1)
        for qd in range(8):
            p.I("ds_write_b128", u3, Tt[qd >> 2].sub(4 * (qd & 3), 4), mods=f"offset:{qd*1024}", tag="kva")
        p.waittag("kva")
        lbl = f"K1_{typ}_"
        p.raw("    s_mov_b64 exec, 1\n    ds_add_u32 v1, v2\n    s_mov_b64 exec, -1")
        p.raw(f"    s_mov_b32 s61, 0\n{lbl}LSPIN:\n    ds_read_b32 v3, v1\n    s_add_u32 s61, s61, 1\n    s_lshr_b32 s62, s61, 18\n    s_waitcnt lgkmcnt(0)\n    s_nop 1\n    v_readfirstlane_b32 s60, v3\n    s_nop 3\n    s_or_b32 s60, s60, s62\n    s_cmp_lt_u32 s60, 4\n    s_cbranch_scc1 {lbl}LSPIN")
        p.I("s_lshl_b32", sT0, sW, 11); p.I("s_sub_u32", sT0, sT0, 4 * 2048)
        p.I("s_add_u32", a0, sZ, sT0)
        p.I("s_add_u32", sT0, sT0, KVP_L)
        p.I("v_add_u32", t1, sT0, u4)
        R2 = V(128, 32)
        for e in range(8):
            p.I("ds_read2st64_b32", R2.sub(4 * e, 2), t1, mods=f"offset0:{e} offset1:{e+32}")
            p.I("ds_read2st64_b32", R2.sub(4 * e + 2, 2), t1, mods=f"offset0:{e+64} offset1:{e+96}")
        for e in range(8):
            p.I("v_add_f32", R2[4 * e], R2[4 * e], R2[4 * e + 1]); p.I("v_add_f32", R2[4 * e + 2], R2[4 * e + 2], R2[4 * e + 3])
            p.I("v_add_f32", R2[4 * e], R2[4 * e], R2[4 * e + 2])
            p.I("buffer_atomic_add_f32", R2[4 * e], u4, SWS, a0, mods=f"offen offset:{e * 256}", tag="kat")
        sKF, sRT, sQF = S(64), S(65), S(66)
        p.I("s_lshl_b32", sRT, sR, 2); p.I("s_add_u32", sRT, sRT, sW); p.I("s_sub_u32", sRT, sRT, 4)
        p.I("s_lshl_b32", sKF, sJ, 8); p.I("s_add_u32", sKF, sKF, KF_OFF)
        p.I("s_lshl_b32", sT0, sRT, 2); p.I("s_add_u32", sT0, sT0, sKF)
        if cfg["stamps"] == 2: st.stamp(p)
        p.waittag("kat")
        p.I("buffer_store_dword", vOne, vLn0, SWS, sT0, mods="offen sc1")
        st.stamp(p)
        p.I("s_lshr_b32", sQF, sRT, 1); p.I("s_lshl_b32", sQF, sQF, 8)
        p.I("s_lshr_b32", sT0, sJ, 3); p.I("s_lshl_b32", sT0, sT0, 4); p.I("s_add_u32", sQF, sQF, sT0); p.I("s_add_u32", sQF, sQF, HF_OFF + 224)
        p.I("v_and_b32", t1, 12, u4)
        spin("Q", t2, t1, SWS, sQF, sleep=cfg["slk"])
        QB = V(8, 8); KA = V(64, 32); P = V(96, 16); E2 = V(112, 16); TM = V(16, 8); POS, NEG = V(24, 8), V(32, 8); KFr = V(40, 16)
        p.I("s_lshl_b32", sT0, sRT, 15); p.I("s_lshl_b32", sT1, sJ, 11); p.I("s_add_u32", sT0, sT0, sT1); p.I("s_add_u32", sT0, sT0, QF_OFF)
        for s in range(2): p.I("buffer_load_dwordx4", QB.sub(4 * s, 4), vSt, SWS, sT0, mods=f"offen offset:{s*1024} sc1")
        p.I(MF, P, WPHI.sub(0, 4), QB.sub(0, 4), 0)
        p.I(MF, P, WPHI.sub(4, 4), QB.sub(4, 4), P)
        softmax_core(p, P, E2, TM, POS, NEG, vMask, sL)
        spin("K", t2, u4, SWS, sKF, sleep=cfg["slk"])
        st.stamp(p)
        p.I("s_add_u32", sT1, sZ, 4096)
        for qd in range(8): p.I("buffer_load_dwordx4", KA.sub(4 * qd, 4), vSt, SWS, sZ if qd < 4 else sT1, mods=f"offen offset:{(qd&3)*1024} sc1")
        for ft in range(2):
            for i in range(12, 16): p.I("v_mul_f32", KA[16 * ft + i], KA[16 * ft + i], vMask)
        for i in range(16): p.I("v_cvt_pk_bf16_f32", KFr[i], KA[2 * i], KA[2 * i + 1])
        N = P
        for s in range(4):
            p.I(MF, N, KFr.sub(4 * s, 4), (POS if s < 2 else NEG).sub(4 * (s & 1), 4), 0 if s == 0 else N)
        d0, d1 = TM[0], TM[1]
        p.I("s_mul_i32", sT0, sRT, NKS * 1024); p.I("s_lshl_b32", sT2, sJ, 11); p.I("s_add_u32", sT0, sT0, sT2); p.I("s_add_u32", sT0, sT0, 112 * 1024)
        p.I("s_lshl_b32", sT1, sRT, 6); p.I("s_lshl_b32", sT2, sJ, 2); p.I("s_add_u32", sT1, sT1, sT2); p.I("s_add_u32", sT1, sT1, OF_OFF)
        p.I("v_mov_b32", d0, N[12]); p.I("v_mov_b32", d1, N[12])
        p.I("v_permlane32_swap_b32", d0, d1)
        p.I("v_add_f32", d1, f2u(1e-6), d1)
        p.I("v_rcp_f32", d1, d1)
        for i in range(16): p.I("v_mul_f32", N[i], N[i], d1)
        T = QB
        for i in range(8): p.I("v_cvt_pk_bf16_f32", T[i], N[2 * i], N[2 * i + 1])
        for s in range(2): p.I("buffer_store_dwordx4", T.sub(4 * s, 4), vSt, SWS, sT0, mods=f"offen offset:{s*1024} sc1", tag="ost")
        p.waittag("ost")
        p.I("buffer_store_dword", vOne, vLn0, SWS, sT1, mods="offen sc1")
    if cfg["stamps"] != 2: st.stamp(p)
    st.stamp(p, True)
    st.flush(p, SWS, sW, 8, t1, t3)
    if cfg.get("dbgwg") is not None and grp == 0:
        p.I("s_lshl_b32", S(100), S(2), 3); p.I("s_add_u32", S(100), S(100), sW)
        p.I("s_cmp_eq_u32", S(100), cfg["dbgwg"] * 8)
        p.I("s_cselect_b32", S(100), 0, BIG)
        p.I("v_mov_b32", t3, 0)
        for i in range(1, st.n):
            p.I("s_sub_u32", S(101), S(80 + 2 * i), S(80))
            p.I("v_mov_b32", t1, S(101))
            p.I("buffer_store_dword", t1, t3, SD, S(100), mods=f"offen offset:{4*i}")
            p.I("s_nop", 1)
    p.I("s_endpgm")

K2_ROW = 272
def build(cfg):
    hdr = open("cdna_kernels/" + NAME + ".s.ref").read().split("\n")
    head = [l for l in hdr if l.startswith(";") and "@launch" not in l]
    head.append(f"; @launch grid=(256,1,1) block=(512,1,1) lds={K1_LDS}")
    out = "\n".join(head) + '\n.amdgcn_target "amdgcn-amd-amdhsa--gfx950"\n.text\n'
    descs = ""
    for g in (gen_k1,):
        t, d = g(cfg); out += t; descs += ".p2align 6\n" + d
    out += "CODE_END:\n    s_endpgm\n" + '.section .rodata,"a"\n' + descs
    if cfg["align"]:
        import align
        out, a, b = align.align(out, cfg["minrun"])
        print("align: promoted", a, "nops", b)
    return out

if __name__ == "__main__":
    cfg = dict(k2bar=1, k1map=0, k2depth=5, stamps=0, rot=1, pollahead=2, sc1=1, npre=3, la=5, xbar=2, w2it=10, ke=4, dmaper=4, bahead=3, front=85, cpref=1, wdpf=6, wdmode=1, sdrop=1, hmask=1, bearly=0, bpre=10, bla=12, slh=4, slk=16, inv=0, da=6, sprio=1, jcont=1, xrot=1, kvodd=1, spread=1, pp=1, ppin=0, prio=0, align=1, minrun=3, attprio=1)
    for a in sys.argv[2:]:
        k, v = a.split("="); cfg[k] = int(v)
    open(sys.argv[1], "w").write(build(cfg))
```

```python
import sys, struct
from asmgen import *
from gen2 import Stamps, srd, f2u, LOG2E, GC1, GC2, gelu_tile, NAME, MF, BIG, NKS, AF_OFF, W2F_OFF, WS_BYTES, DBG_OFF
QF_OFF = 0x0C00000
FLG_OFF = 0x1100000
KVA_OFF = 0x1000000

def code_prefetch(p, start, end, vd, va, sb, sa, sc):
    lbl = "CP_L"
    p.raw(f"    s_getpc_b64 {sb}\n{lbl}:")
    p.raw(f"    s_sub_u32 {sb[0]}, {sb[0]}, {lbl}-{start}\n    s_subb_u32 {sb[1]}, {sb[1]}, 0")
    p.I("s_lshr_b32", sa, S(2), 3); p.I("s_lshl_b32", sc, S(3), 5); p.I("s_add_u32", sa, sa, sc); p.I("s_lshl_b32", sa, sa, 10)
    p.raw(f"    s_cmp_lt_u32 {sa}, {end}-{start}-1024\n    s_cbranch_scc0 {lbl}_SKIP")
    p.I("v_lshl_add_u32", va, V(0), 4, sa)
    p.raw(f"    global_load_dwordx4 {vd}, {va}, {sb}\n{lbl}_SKIP:")

def split(L, n):
    k = (len(L) + n - 1) // n
    return [L[i * k:(i + 1) * k] for i in range(n)]

def softmax_core(p, P, E, tmp, pos, neg, vmask, sL):
    mx, mn, t0, t1, sp, sn, sp2, sn2 = [tmp[i] for i in range(8)]
    p.I("v_max3_f32", mx, P[0], P[1], P[2])
    p.I("v_min3_f32", mn, P[0], P[1], P[2])
    for i in range(6):
        p.I("v_max3_f32", mx, mx, P[3 + 2 * i], P[4 + 2 * i])
        p.I("v_min3_f32", mn, mn, P[3 + 2 * i], P[4 + 2 * i])
    p.I("v_max_f32", mx, mx, P[15])
    p.I("v_min_f32", mn, mn, P[15])
    p.I("v_mov_b32", t0, mx)
    p.I("v_mov_b32", t1, mn)
    p.I("v_permlane32_swap_b32", mx, t0)
    p.I("v_permlane32_swap_b32", mn, t1)
    p.I("v_max_f32", mx, mx, t0)
    p.I("v_min_f32", mn, mn, t1)
    p.I("v_mul_f32", mx, sL, mx)
    p.I("v_mul_f32", mn, sL, mn)
    for i in range(16): p.I("v_fma_f32", E[i], Neg(P[i]), sL, mn)
    for i in range(16): p.I("v_fma_f32", P[i], P[i], sL, Neg(mx))
    for i in range(16): p.I("v_exp_f32", E[i], E[i])
    for i in range(16): p.I("v_exp_f32", P[i], P[i])
    p.I("v_add_f32", sn, E[0], E[1]); p.I("v_add_f32", sn2, E[2], E[3])
    p.I("v_add_f32", sp, P[0], P[1]); p.I("v_add_f32", sp2, P[2], P[3])
    for i in range(4, 12, 2):
        p.I("v_add_f32", sn, sn, E[i]); p.I("v_add_f32", sn2, sn2, E[i + 1])
        p.I("v_add_f32", sp, sp, P[i]); p.I("v_add_f32", sp2, sp2, P[i + 1])
    for i in range(12, 16, 2):
        p.I("v_fmac_f32", sn, E[i], vmask); p.I("v_fmac_f32", sn2, E[i + 1], vmask)
        p.I("v_fmac_f32", sp, P[i], vmask); p.I("v_fmac_f32", sp2, P[i + 1], vmask)
    p.I("v_add_f32", sp, sp, sp2); p.I("v_add_f32", sn, sn, sn2)
    p.I("v_mov_b32", t0, sp); p.I("v_mov_b32", t1, sn)
    p.I("v_permlane32_swap_b32", sp, t0)
    p.I("v_permlane32_swap_b32", sn, t1)
    p.I("v_add_f32", sp, sp, t0); p.I("v_add_f32", sn, sn, t1)
    p.I("v_rcp_f32", sp, sp); p.I("v_rcp_f32", sn, sn)
    for i in range(16): p.I("v_mul_f32", P[i], P[i], sp)
    for i in range(16): p.I("v_mul_f32", E[i], E[i], sn)
    for i in range(8): p.I("v_cvt_pk_bf16_f32", pos[i], P[2 * i], P[2 * i + 1])
    for i in range(8): p.I("v_cvt_pk_bf16_f32", neg[i], E[2 * i], E[2 * i + 1])

def wphi_gather(q, WT, SPHI, sHead, sT, lane, u1, u2, u3, u4, u5):
    q.I("v_and_b32", u1, 31, lane); q.I("v_lshrrev_b32", u2, 5, lane); q.I("v_mov_b32", u5, BIG)
    q.I("v_subrev_u32", u3, 24, u1)
    q.I("v_cmp_lt_u32", VCC, 27, u1)
    q.I("v_cndmask_b32", u3, u1, u3, VCC)
    q.I("v_lshlrev_b32", u3, 1, u3)
    q.I("v_mul_u32_u24", u4, 4 * 56, u2)
    q.I("v_add_u32", u3, u3, u4)
    q.I("s_mul_i32", sT, sHead, 1568)
    q.I("v_add_u32", u3, sT, u3)
    q.I("v_cmp_eq_u32", VCC, 1, u2)
    q.I("v_cndmask_b32", u4, u3, u5, VCC)
    for s in range(2):
        for j in range(8):
            d0 = 16 * s + 8 * (j >> 2) + (j & 3)
            q.I("buffer_load_ushort", WT[8 * s + j], u4 if d0 + 4 >= 28 else u3, SPHI, 0, mods=f"offen offset:{d0*56}")

XYS = 16384; NXY = 6; KVB = XYS * NXY; PAGE = 8192; NKV = 3
ASB = KVB + NKV * PAGE; ABLK = 32 * 528
K1_LDS = ASB + 2 * ABLK
KVL = ASB + 32768
KVROW = 320
KVP_L = ASB
NB = 15; BRING = NB * 2048
HF_OFF = FLG_OFF; KF_OFF = FLG_OFF + 8192; OF_OFF = FLG_OFF + 12288

lane = V(0)
XR = V(8, 56)
def xr(b, g): return XR.sub(8 * b + 4 * g, 4)
ACC = [V(64 + 16 * i, 16) for i in range(6)]
BF = [[V(160 + 12 * s + 4 * t, 4) for t in range(3)] for s in range(2)]
AFr = [[V(184 + 8 * s + 4 * i, 4) for i in range(2)] for s in range(2)]
LT = V(200, 16)
vBt = [[V(216 + 2 * t), V(217 + 2 * t)] for t in range(3)]
vAw, vAr, vD0, vDX, vDY, vSt = [V(222 + i) for i in range(6)]
vR = [V(228), V(229)]; vNM = [V(230), V(231)]
vMask, vC2, vTk, vL0 = V(232), V(233), V(234), V(235)
u1, u2, u3, u4, u5 = [V(236 + i) for i in range(5)]
WPHI = V(244, 8)
sW = S(3); sR, sJ, sRot = S(26), S(27), S(72)
SX, SQKV, SXs, SYs, SWS, SPHI, SD, SW2 = [S(28 + 4 * i, 4) for i in range(8)]
sT0, sT1, sT2, sT3 = S(60), S(61), S(62), S(63)
sO0, sOX, sLdsW, sL = S(64), S(65), S(66), S(67)
sM28 = S(68, 2)
sOut, sW2d = S(70), S(71)
sZ, sFl, sStr, sEnd = S(73), S(74), S(75), S(76)
a0, a1, a2 = S(77), S(78), S(79)
sG = S(58)

def dma_xy(q, c):
    slot = (c % NXY) * XYS
    q.I("s_add_u32", M0, sLdsW, slot)
    q.I("buffer_load_dwordx4", vDX, SXs, sOX, mods="offen lds", tag=f"dma{c}")
    q.I("s_add_u32", M0, sLdsW, slot + PAGE)
    q.I("buffer_load_dwordx4", vDY, SYs, sOX, mods="offen lds", tag=f"dma{c}")
    if c < 13:
        q.I("s_add_u32", sOX, sOX, sStr)
        if c % 2 == 1:
            q.I("s_cmp_eq_u32", sOX, sEnd); q.I("s_cselect_b32", sOX, 0, sOX)
def dma_kv(q, b):
    q.I("s_add_u32", M0, sLdsW, KVB + (b % NKV) * PAGE)
    q.I("buffer_load_dwordx4", vD0, SQKV, sO0, mods="offen lds", tag=f"kv{b}")
    if b < 6:
        q.I("s_add_u32", sO0, sO0, 64 * 2688); q.I("s_cmp_eq_u32", sO0, 448 * 2688); q.I("s_cselect_b32", sO0, 0, sO0)
def ln_unit(q, b, g):
    x = xr(b, g); T = LT.sub(0, 8)
    for i in range(4):
        q.I("v_lshlrev_b32", T[2 * i], 16, x[i])
        q.I("v_and_b32", T[2 * i + 1], 0xFFFF0000, x[i])
    for i in range(8): q.I("v_fma_f32", T[i], T[i], vR[g], vNM[g])
    for i in range(4): q.I("v_cvt_pk_bf16_f32", x[i], T[2 * i], T[2 * i + 1])
def a_write(q, b, g):
    q.I("ds_write_b128", vAw, xr(b, g), mods=f"offset:{(b % 2) * ABLK + g * 128}", tag=f"aw{b}")

def k1_common(p, cfg, st):
    t1, t2, t3, t4, t5, t6, t7 = [V(i) for i in range(1, 8)]
    p.I("s_cmp_ge_u32", S(2), 256)
    p.raw("    s_cbranch_scc1 K1_END")
    p.I("s_load_dwordx8", S(4, 8), S(0, 2), 0)
    p.I("s_load_dwordx8", S(12, 8), S(0, 2), 32)
    p.I("s_load_dwordx4", S(20, 4), S(0, 2), 64)
    p.I("s_load_dwordx2", S(24, 2), S(0, 2), 80)
    st.stamp(p, True)
    if cfg["stamps"] != 2: st.stamp(p)
    p.I("v_lshrrev_b32", V(1), 6, V(0))
    p.I("v_readfirstlane_b32", S(3), V(1))
    p.I("v_and_b32", V(0), 63, V(0))
    p.I("s_and_b32", sT0, S(2), 7); p.I("s_lshr_b32", sT1, S(2), 3)
    lr = {0: 3, 2: 2, 1: 1}[cfg["k1map"]]
    nxr = 16 >> lr
    p.I("s_and_b32", sT2, sT0, nxr - 1); p.I("s_lshl_b32", sT2, sT2, lr)
    p.I("s_and_b32", sT3, sT1, (1 << lr) - 1); p.I("s_add_u32", sR, sT2, sT3)
    p.I("s_lshr_b32", sT2, sT0, 4 - lr)
    p.I("s_lshr_b32", sT1, sT1, lr)
    if cfg["jcont"]: p.I("s_lshl_b32", sJ, sT2, 5 - lr); p.I("s_add_u32", sJ, sJ, sT1)
    else: p.I("s_lshl_b32", sJ, sT1, lr - 1); p.I("s_add_u32", sJ, sJ, sT2)
    p.I("s_lshl_b32", sRot, sT3, 3 - lr)
    p.I("s_and_b32", a0, sT0, nxr - 1); p.I("s_add_u32", sRot, sRot, a0)
    p.I("s_cmp_ge_u32", sRot, 7); p.I("s_cselect_b32", sT2, 7, 0); p.I("s_sub_u32", sRot, sRot, sT2)
    p.I("s_cmp_ge_u32", sRot, 7); p.I("s_cselect_b32", sT2, 7, 0); p.I("s_sub_u32", sRot, sRot, sT2)
    if cfg["rot"] == 0: p.I("s_mov_b32", sRot, 0)
    elif cfg["rot"] == 2: p.I("s_and_b32", sRot, sT3, 1); p.I("s_mul_i32", sRot, sRot, 3)
    elif cfg["rot"] == 3: p.I("s_and_b32", sRot, sT3, 3); p.I("s_lshl_b32", sRot, sRot, 1)
    elif cfg["rot"] == 4: p.I("s_and_b32", sRot, sT3, 1)
    if lr == 3: p.I("s_lshl_b32", sG, sT1, 1)
    else: p.I("s_mov_b32", sG, sT1)
    if not cfg["xrot"]: p.I("s_mov_b32", sG, 0)
    p.I("s_add_u32", sG, sG, sW); p.I("s_and_b32", sG, sG, 7)
    r8, k8 = t1, t2
    p.I("v_lshrrev_b32", r8, 3, lane)
    p.I("v_and_b32", k8, 7, lane)
    p.I("s_lshl_b32", sT0, sR, 7); p.I("s_lshl_b32", sT1, sG, 4); p.I("s_add_u32", sT0, sT0, sT1)
    p.I("v_add_u32", t3, sT0, r8)
    p.I("v_mul_u32_u24", t3, 896, t3)
    p.I("v_lshl_add_u32", t3, k8, 4, t3)
    p.I("v_add_u32", t4, 8 * 896, t3)
    p.I("s_lshl_b32", sT0, sRot, 7)
    srd(p, SX.n, 4, 2048 * 896)
    for b in range(7):
        p.I("buffer_load_dwordx4", xr(b, 0), t3, SX, sT0, mods="offen")
        p.I("buffer_load_dwordx4", xr(b, 1), t4, SX, sT0, mods="offen")
        if b < 6:
            p.I("s_add_u32", sT0, sT0, 128); p.I("s_cmp_eq_u32", sT0, 896); p.I("s_cselect_b32", sT0, 0, sT0)
    if cfg["xbar"] == 2:
        p.I("s_cmp_lt_u32", sW, 4); p.raw("    s_cbranch_scc1 K1_NB0"); p.I("s_barrier"); p.label("K1_NB0")
    if cfg["cpref"]: code_prefetch(p, NAME + "_kernel", "CODE_END", V(64, 4), t3, S(56, 2), sT0, sT1)
    srd(p, SQKV.n, 6, 448 * 2688)
    p.I("s_lshl_b32", sT1, sJ, 8)
    p.I("s_sub_u32", sT2, sJ, 14); p.I("s_mul_i32", sT2, sT2, 448)
    p.I("s_mov_b32", a0, 2688); p.I("s_mov_b32", a1, 448 * 2688)
    p.I("s_cmp_lt_u32", sJ, 14)
    p.I("s_cselect_b32", SXs[0], S(14), S(6)); p.I("s_cselect_b32", SXs[1], S(15), S(7))
    p.I("s_cselect_b32", SYs[0], S(16), S(6)); p.I("s_cselect_b32", SYs[1], S(17), S(7))
    p.I("s_cselect_b32", a0, 3584, a0)
    p.I("s_cselect_b32", sEnd, 448 * 3584, a1)
    p.I("s_cselect_b32", sT1, sT1, sT2)
    p.I("s_cselect_b32", a1, 2, 0)
    p.I("s_cselect_b32", a2, 0, 224)
    p.I("s_and_b32", SXs[1], SXs[1], 0xFFFF); p.I("s_and_b32", SYs[1], SYs[1], 0xFFFF)
    p.I("s_mov_b32", SXs[2], sEnd); p.I("s_mov_b32", SYs[2], sEnd)
    p.I("s_mov_b32", SXs[3], 0x20000); p.I("s_mov_b32", SYs[3], 0x20000)
    p.I("s_lshl_b32", sStr, a0, 5)
    p.I("s_mul_i32", sOX, sRot, sStr); p.I("s_lshl_b32", sOX, sOX, 1)
    p.I("v_lshrrev_b32", t3, 4, lane)
    p.I("v_and_b32", t4, 15, lane)
    p.I("v_lshlrev_b32", t5, 2, t3); p.I("v_xor_b32", t4, t4, t5)
    p.I("s_lshl_b32", sT0, sW, 2)
    p.I("v_add_u32", t3, sT0, t3)
    p.I("v_mul_u32_u24", t3, a0, t3)
    p.I("v_add_u32", t3, sT1, t3)
    p.I("v_lshl_add_u32", vDX, t4, 4, t3)
    p.I("v_xor_b32", t4, a1, t4)
    p.I("v_lshl_add_u32", vDY, t4, 4, t3)
    p.I("v_add_u32", vDY, a2, vDY)
    p.I("s_lshl_b32", sLdsW, sW, 10)
    p.I("v_bfe_u32", t5, r8, 1, 1)
    p.I("v_lshlrev_b32", t5, 2, t5)
    p.I("v_xor_b32", t5, t5, k8)
    p.I("s_lshl_b32", sT0, sW, 3)
    p.I("v_add_u32", t6, sT0, r8)
    p.I("v_lshrrev_b32", t3, 2, t5); p.I("v_mul_u32_u24", t3, 896, t3)
    p.I("v_and_b32", t4, 3, t5); p.I("v_lshl_add_u32", t3, t4, 4, t3)
    p.I("v_mul_u32_u24", t4, 2688, t6); p.I("v_add_u32", t3, t3, t4)
    p.I("s_mul_i32", sT1, sJ, 56); p.I("s_add_u32", sT1, sT1, 896)
    p.I("v_add_u32", vD0, sT1, t3)
    p.I("s_mul_i32", sO0, sRot, 64 * 2688)
    p.I("v_mul_u32_u24", vAw, 528, k8)
    p.I("v_lshl_add_u32", vAw, r8, 4, vAw)
    p.I("s_lshr_b32", sT0, sG, 1); p.I("s_mul_i32", sT0, sT0, 8 * 528)
    p.I("s_and_b32", sT1, sG, 1); p.I("s_lshl_b32", sT2, sT1, 8)
    p.I("s_add_u32", sT0, sT0, sT2); p.I("s_add_u32", sT0, sT0, ASB)
    p.I("v_add_u32", vAw, sT0, vAw)
    p.I("s_and_b32", sT1, sW, 1)
    srd(p, SWS.n, 24, WS_BYTES)
    p.I("v_lshlrev_b32", vSt, 4, lane)
    p.I("v_and_b32", u1, 31, lane)
    p.I("v_lshrrev_b32", u2, 5, lane)
    p.I("v_mul_u32_u24", vAr, 528, u2)
    p.I("v_lshl_add_u32", vAr, u1, 4, vAr)
    p.I("s_mul_i32", sT2, sT1, 16 * 528); p.I("s_add_u32", sT2, sT2, ASB)
    p.I("v_add_u32", vAr, sT2, vAr)
    p.I("v_mov_b32", vC2, f2u(GC2))
    sm = [LT[0], LT[1]]; sq = [LT[2], LT[3]]; ones = LT[4]
    p.I("v_mov_b32", ones, 0x3F803F80)
    for r in sm + sq: p.I("v_mov_b32", r, 0)
    for b in range(7):
        for g in range(2):
            for i in range(4):
                p.I("v_dot2c_f32_bf16", sm[g], xr(b, g)[i], ones)
                p.I("v_dot2c_f32_bf16", sq[g], xr(b, g)[i], xr(b, g)[i])
    for mod in ("quad_perm:[1,0,3,2]", "quad_perm:[2,3,0,1]", "row_half_mirror"):
        for r in sm + sq:
            p.I("v_add_f32_dpp", r, r, r, mods=mod + " row_mask:0xf bank_mask:0xf")
    for g in range(2):
        p.I("v_mul_f32", sm[g], f2u(1.0 / 448), sm[g])
        p.I("v_mul_f32", sq[g], f2u(1.0 / 448), sq[g])
    for g in range(2): p.I("v_fma_f32", sq[g], Neg(sm[g]), sm[g], sq[g])
    for g in range(2): p.I("v_max_f32", sq[g], 0, sq[g])
    for g in range(2): p.I("v_add_f32", sq[g], f2u(1e-5), sq[g])
    for g in range(2): p.I("v_rsq_f32", vR[g], sq[g])
    for g in range(2): p.I("v_mul_f32_e64", vNM[g], Neg(sm[g]), vR[g])
    st.stamp(p)
    p.I("s_lshr_b32", a0, sStr, 1)
    if cfg["xbar"] == 2:
        p.I("s_cmp_ge_u32", sW, 4); p.raw("    s_cbranch_scc1 K1_NB1"); p.I("s_barrier"); p.label("K1_NB1")
    p.I("s_cmp_ge_u32", sW, 4)
    p.raw("    s_cbranch_scc1 K1_NODMA")
    p.I("s_mov_b32", a1, sOX)
    for c in range(2):
        for hh in range(2):
            if hh: p.I("s_add_u32", a2, a1, a0)
            so = a2 if hh else a1
            p.I("s_add_u32", M0, sLdsW, c * XYS + hh * 4096)
            p.I("buffer_load_dwordx4", vDX, SXs, so, mods="offen lds", tag=f"dma{c}")
            p.I("s_add_u32", M0, sLdsW, c * XYS + PAGE + hh * 4096)
            p.I("buffer_load_dwordx4", vDY, SYs, so, mods="offen lds", tag=f"dma{c}")
        if c == 0:
            p.I("s_add_u32", a1, a1, sStr)
            p.I("s_add_u32", a2, sO0, 32 * 2688)
            p.I("s_add_u32", M0, sLdsW, KVB)
            p.I("buffer_load_dwordx4", vD0, SQKV, sO0, mods="offen lds", tag="kv0")
            p.I("s_add_u32", M0, sLdsW, KVB + 4096)
            p.I("buffer_load_dwordx4", vD0, SQKV, a2, mods="offen lds", tag="kv0")
    p.label("K1_NODMA")
    p.I("s_add_u32", sOX, sOX, sStr); p.I("s_add_u32", sOX, sOX, sStr)
    p.I("s_cmp_eq_u32", sOX, sEnd); p.I("s_cselect_b32", sOX, 0, sOX)
    p.I("s_add_u32", sO0, sO0, 64 * 2688); p.I("s_cmp_eq_u32", sO0, 448 * 2688); p.I("s_cselect_b32", sO0, 0, sO0)
    ln_unit(p, 0, 0); a_write(p, 0, 0); ln_unit(p, 0, 1); a_write(p, 0, 1)
    for c in range(2, cfg["npre"]): dma_xy(p, c)
    dma_kv(p, 1)
    p.I("s_cmp_ge_u32", sJ, 14)
    p.raw("    s_cbranch_scc1 K1_Q")
    p.I("s_cmp_ge_u32", S(3), 4)
    p.raw("    s_cbranch_scc1 K1_F1")

def gen_k1(cfg):
    name = NAME + "_kernel"
    txt = kernel_header(name)
    first = True
    for typ in ("F", "Q"):
        for grp in (0, 1):
            p = Prog(); st = Stamps(cfg["stamps"], 0)
            if cfg["stamps"] == 2:
                o2 = st.stamp
                st.stamp = lambda pp, real=False, o2=o2: o2(pp, True)
            if cfg.get("its") is not None:
                orig = st.stamp
                def stamp2(pp, real=False, force=False, orig=orig):
                    if real or force: orig(pp, real)
                st.stamp = stamp2
            k1_common(p, cfg, st)
            mark = p.raw("; ---- role code ----")
            if typ == "Q" and grp == 0:
                p.label("K1_Q"); p.I("s_cmp_ge_u32", S(3), 4); p.raw("    s_cbranch_scc1 K1_Q1")
            elif grp == 1: p.label(f"K1_{typ}1")
            k1_role(p, typ, grp, cfg, st)
            L = finalize(p)
            k = L.index(mark)
            txt += render(L if first else L[k:])
            first = False
    txt += "K1_END:\n    s_endpgm\n"
    return txt, kernel_desc(name, 256)

def k1_role(p, typ, grp, cfg, st):
    t1, t2, t3, t4, t5, t6, t7 = [V(i) for i in range(1, 8)]
    stp = " sc1" if cfg["sc1"] else ""
    NT = 3
    ch, r4, cq = t3, t4, t5
    p.I("v_bfe_u32", ch, lane, 4, 1); p.I("v_bfe_u32", r4, lane, 2, 2); p.I("v_and_b32", cq, 3, lane)
    p.I("v_lshl_add_u32", t6, u2, 3, r4)
    p.I("v_lshlrev_b32", cq, 3, cq)
    p.I("v_lshl_add_u32", t1, ch, 5, cq)
    p.I("v_lshlrev_b32", t7, 6, r4)
    p.I("s_lshr_b32", sT0, sW, 1); p.I("s_and_b32", sT0, sT0, 1)
    if grp == 0: p.I("s_mul_i32", sT1, sT0, 3)
    else: p.I("s_add_u32", sT1, sT0, 6)
    nxy = 3 if grp == 0 else 1
    for t in range(nxy):
        if t: p.I("s_add_u32", sT1, sT1, 1)
        if typ == "F":
            p.I("s_lshl_b32", sT2, sT1, 5)
            p.I("v_xor_b32", t2, sT2, t1); p.I("v_xor_b32", t2, t2, t7)
            p.I("v_lshl_add_u32", t2, ch, 13, t2)
        else:
            p.I("s_and_b32", sT2, sT1, 3); p.I("s_mul_i32", sT2, sT2, 56)
            p.I("s_lshr_b32", sT3, sT1, 2); p.I("s_lshl_b32", sT3, sT3, 13)
            p.I("v_add_u32", t2, sT2, t1); p.I("v_xor_b32", t2, t2, t7)
            p.I("v_add_u32", t2, sT3, t2)
        p.I("v_lshl_add_u32", vBt[t][0], t6, 8, t2)
        p.I("v_add_u32", vBt[t][1], 3 * XYS, vBt[t][0])
    if grp == 1:
        p.I("v_bfe_u32", t7, lane, 3, 1); p.I("v_lshlrev_b32", t7, 6, t7)
        p.I("v_xor_b32", t2, t1, t7)
        p.I("v_lshl_add_u32", t2, t6, 7, t2)
        p.I("v_add_u32", vBt[1][0], KVB, t2)
        p.I("v_xor_b32", vBt[2][0], 64, vBt[1][0])
    p.I("s_and_b32", sT2, sW, 1); p.I("s_lshl_b32", sT2, sT2, 1); p.I("s_lshl_b32", sT3, sR, 2); p.I("s_add_u32", sT2, sT2, sT3)
    if nxy > 1: p.I("s_sub_u32", sT1, sT1, nxy - 1)
    if typ == "F":
        p.I("s_mul_i32", sOut, sT2, NKS * 1024)
        p.I("s_lshl_b32", sT3, sJ, 3); p.I("s_add_u32", sT3, sT3, sT1); p.I("s_lshl_b32", sT3, sT3, 10)
        p.I("s_add_u32", sOut, sOut, sT3)
        RTS, TS = NKS * 1024, 1024
    else:
        p.I("s_lshl_b32", sOut, sT2, 15)
        p.I("s_sub_u32", sT3, sJ, 14); p.I("s_lshl_b32", sT3, sT3, 3); p.I("s_add_u32", sT3, sT3, sT1); p.I("s_lshl_b32", sT3, sT3, 11)
        p.I("s_add_u32", sOut, sOut, sT3); p.I("s_add_u32", sOut, sOut, QF_OFF)
        RTS, TS = 1 << 15, 2048
    if grp == 1:
        p.I("s_mul_i32", sT3, sT0, 8 * 528)
        p.I("v_add_u32", u3, 8 * 528, vAr); p.I("v_subrev_u32", u3, sT3, u3)
        p.I("v_add_u32", vAr, sT3, vAr)
        p.I("v_mov_b32", V(243), u3)
        p.I("s_mul_i32", sT3, sT0, RTS)
        p.I("s_add_u32", a0, sOut, RTS); p.I("s_sub_u32", a0, a0, sT3)
        p.I("s_add_u32", sOut, sOut, sT3)
        p.I("s_mov_b32", S(59), a0)
    vAr2 = V(243); sOut2 = S(59)
    ln_unit(p, 1, 0)

    def b_reads(c, ks, t):
        dst = BF[ks][t]
        if grp == 0 or t == 0:
            slot = c % NXY; var = slot // 3
            off = (slot % 3) * XYS + 16 * ks * 256
            return [Inst("ds_read_b64_tr_b16", (dst.sub(2 * pp, 2), vBt[t][var]), f"offset:{off + pp * 1024}") for pp in range(2)]
        off = ((c >> 1) % NKV) * PAGE + (32 * (c & 1) + 16 * ks) * 128
        return [Inst("ds_read_b64_tr_b16", (dst.sub(2 * pp, 2), vBt[t][0]), f"offset:{off + pp * 512}") for pp in range(2)]
    def a_read(c, ks, i):
        b = c >> 1; k4 = 2 * (c & 1) + ks
        if grp == 0: return Inst("ds_read_b128", (AFr[ks][i], vAr), f"offset:{(b % 2) * ABLK + (i * 4 + k4) * 2 * 528}")
        return Inst("ds_read_b128", (AFr[ks][i], vAr if i == 0 else vAr2), f"offset:{(b % 2) * ABLK + k4 * 2 * 528}")
    def reads(c, ks):
        return [a_read(c, ks, 0)] + b_reads(c, ks, 0) + [a_read(c, ks, 1)] + b_reads(c, ks, 1) + b_reads(c, ks, 2)
    def mfmas(c, ks):
        f = (c == 0 and ks == 0)
        M = lambda d, a, b: Inst(MF, (d, a, b, 0 if f else d))
        if grp == 0: return [M(ACC[2 * t + i], BF[ks][t], AFr[ks][i]) for t in range(3) for i in range(2)]
        return [M(ACC[0], BF[ks][0], AFr[ks][0]), M(ACC[1], BF[ks][0], AFr[ks][1]),
                M(ACC[2], BF[ks][1], AFr[ks][0]), M(ACC[3], AFr[ks][0], BF[ks][2])]

    seg = {n: Prog() for n in range(15)}
    W2T = XR.sub(0, 8); WT = XR.sub(8, 16)
    q = seg[11]
    srd(q, SD.n, 22, 256)
    q.I("v_lshlrev_b32", vL0, 2, lane)
    q.I("buffer_load_dword", vTk, vL0, SD, 0, mods="offen sc1")
    if cfg["wdpf"]:
        q = seg[cfg["wdpf"]]
        if cfg["wdmode"] == 0:
            q.I("s_lshr_b32", sT0, S(2), 3); q.I("s_lshl_b32", sT0, sT0, 3); q.I("s_add_u32", sT0, sT0, sW); q.I("s_lshl_b32", sT0, sT0, 13)
        else:
            q.I("s_lshl_b32", sT0, S(2), 3); q.I("s_add_u32", sT0, sT0, sW); q.I("s_lshl_b32", sT0, sT0, 10)
        q.I("s_sub_u32", sT1, sT0, 1792 * 896)
        q.I("s_mov_b32", sT2, 448 * 896)
        q.I("s_cmp_lt_u32", sT0, 1792 * 896)
        q.I("s_cselect_b32", SX[0], S(18), S(10)); q.I("s_cselect_b32", SX[1], S(19), S(11))
        q.I("s_cselect_b32", SX[2], 1792 * 896, sT2)
        q.I("s_cselect_b32", sT0, sT0, sT1)
        q.I("s_and_b32", SX[1], SX[1], 0xFFFF)
        if cfg["wdmode"] == 0:
            q.I("v_lshlrev_b32", u3, 7, lane)
            q.I("buffer_load_dword", XR[0], u3, SX, sT0, mods="offen")
        else:
            q.I("buffer_load_dwordx4", XR.sub(0, 4), vSt, SX, sT0, mods="offen")
    if cfg["l2pf"]:
        f0 = cfg["l2pf"]
        q = seg[f0]
        sPf = S(71)
        q.I("s_lshr_b32", sT0, S(2), 3); q.I("s_lshl_b32", sT0, sT0, 3); q.I("s_add_u32", sT0, sT0, sW); q.I("s_lshl_b32", sT0, sT0, 13)
        q.I("s_sub_u32", sT1, sT0, 1792 * 896)
        q.I("s_mov_b32", sT2, 448 * 896)
        q.I("s_cmp_lt_u32", sT0, 1792 * 896)
        q.I("s_cselect_b32", SX[0], S(18), S(10)); q.I("s_cselect_b32", SX[1], S(19), S(11))
        q.I("s_cselect_b32", SX[2], 1792 * 896, sT2)
        q.I("s_cselect_b32", sPf, sT0, sT1)
        q.I("s_and_b32", SX[1], SX[1], 0xFFFF)
        q.I("v_lshlrev_b32", V(252), 7, lane); q.I("v_mov_b32", V(253), BIG)
        q.I("v_cmp_gt_u32", VCC, 64 // cfg["l2n"], lane); q.I("v_cndmask_b32", V(252), V(253), V(252), VCC)
        for i in range(cfg["l2n"]):
            q = seg[f0 + i * cfg["l2s"]]
            q.I("buffer_load_dword", V(254), V(252), SX, sPf, mods="offen")
            q.I("s_add_u32", sPf, sPf, 8192 // cfg["l2n"])
    IDN = XR.sub(24, 8)
    if grp == 1:
        q = seg[0]
        srd(q, SD.n, 22, 256)
        q.I("v_mov_b32", u5, BIG)
        q.I("v_cmp_eq_u32", VCC, 0, lane)
        q.I("v_cndmask_b32", vL0, u5, 0, VCC)
        q.I("s_lshl_b32", sT0, sJ, 2); q.I("s_add_u32", sT0, sT0, sW); q.I("s_sub_u32", sT0, sT0, 4)
        q.I("s_lshl_b32", sT1, sT0, 11); q.I("s_add_u32", sT1, sT1, KVA_OFF)
        q.I("s_lshl_b32", sT2, sT0, 8); q.I("s_add_u32", sT2, sT2, FLG_OFF)
        q.I("s_lshl_b32", sFl, sT0, 2)
        q.I("s_lshl_b32", sZ, sJ, 13); q.I("s_add_u32", sZ, sZ, KVA_OFF)
        q.I("s_cmp_eq_u32", sR, sJ)
        q.I("s_cselect_b32", sT2, sT2, BIG)
        q.I("s_cselect_b32", sT1, sT1, BIG)
        q.I("s_cselect_b32", sFl, sFl, BIG)
        ZR = V(128, 4)
        for i in range(4): q.I("v_mov_b32", ZR[i], 0)
        for s in range(2): q.I("buffer_store_dwordx4", ZR, vSt, SWS, sT1, mods=f"offen offset:{s*1024} sc1", tag="zs")
        q.I("v_cmp_gt_u32", VCC, 16, lane)
        q.I("v_cndmask_b32", u3, u5, vSt, VCC)
        q.I("buffer_store_dwordx4", ZR, u3, SWS, sT2, mods="offen sc1", tag="zs")
        q = seg[5]
        q.I("v_mov_b32", vTk, 1)
        q.waittag("zs")
        q.I("buffer_store_dword", vTk, vL0, SD, sFl, mods="offen sc1")
        q = seg[10]
        srd(q, SPHI.n, 8, 16 * 1568)
        q.I("s_mov_b32", sL, f2u(LOG2E))
        wphi_gather(q, WT, SPHI, sJ, sT0, lane, u1, u2, u3, u4, u5)
        q.I("v_cmp_eq_u32", VCC, 0, u2)
        q.I("v_cndmask_b32", vMask, 0, 1.0, VCC)
        q = seg[12]
        q.I("v_cmp_eq_u32", sM28, 28, u1)
        q.I("v_lshlrev_b32", u3, 2, u2); q.I("v_sub_u32", u3, u1, u3)
        q.I("v_and_b32", u4, 1, u3); q.I("v_lshlrev_b32", u4, 4, u4); q.I("v_mov_b32", u5, 0x3F80); q.I("v_lshlrev_b32", u4, u4, u5)
        q.I("v_lshrrev_b32", u3, 1, u3)
        for s in range(2):
            for i in range(4):
                f0 = 16 * s + 8 * ((2 * i) >> 2) + ((2 * i) & 3)
                q.I("v_cmp_eq_u32", VCC, f0 // 2, u3)
                q.I("v_cndmask_b32", IDN[4 * s + i], 0, u4, VCC)
        q = seg[13]
        for i in range(8): q.I("v_lshl_or_b32", WPHI[i], WT[2 * i + 1], 16, WT[2 * i])
    q = seg[12]
    q.I("v_mov_b32", LT[8], 0); q.I("v_mov_b32", LT[9], KVL)
    q.I("ds_write_b32", LT[9], LT[8], tag="zl")

    p.waittag("dma0", "dma1", "kv0", "aw0")
    p.I("s_barrier")
    st.stamp(p)
    p.L.extend(reads(0, 0))
    nxt = cfg["npre"]
    for c in range(14):
        fill = Prog()
        ln = Prog()
        if c % 2 == 0:
            b = c // 2 + 1
            if b < 7: a_write(ln, b, 0); ln_unit(ln, b, 1); a_write(ln, b, 1)
        else:
            b = (c + 3) // 2
            if b < 7: ln_unit(ln, b, 0)
        dm = Prog()
        cnt = 0
        while nxt < 14 and nxt <= c + cfg["la"] and cnt < 2:
            dma_xy(dm, nxt); nxt += 1; cnt += 1
        kvp = cfg["kvodd"]
        if c % 2 == kvp and c // 2 + 2 < 7: dma_kv(dm, c // 2 + 2)
        if cfg["spread"]:
            groups = []; cur = []
            for i in dm.L:
                cur.append(i)
                if i.kind == "dma": groups.append(cur); cur = []
            if groups: groups[-1] += cur
            n = len(groups)
            step = max(1, len(ln.L) // max(1, n))
            k = 0
            for gi in range(n):
                fill.extend(groups[gi]); fill.extend(ln.L[k:k + step]); k += step
            fill.extend(ln.L[k:])
        else:
            fill.extend(ln); fill.extend(dm)
        if cfg.get("no_dma"): fill.L = [i for i in fill.L if i.kind != "dma"]
        if cfg.get("no_lnw"): fill.L = [i for i in fill.L if i.kind != "lwrite"]
        if cfg.get("no_lnv"): fill.L = [i for i in fill.L if i.kind != "valu"]
        fill.extend(seg[c])
        F = fill.L
        nm = 12 if grp == 0 else 8
        per = len(F) / max(1.0, nm * cfg["front"] / 100.0)
        acc = 0.0; fi = 0
        if cfg["pp"]:
            per = cfg["ppin"] / 10.0
            if grp == 1:
                nin = min(len(F), int(per * nm))
                p.L.extend(F[:len(F) - nin]); fi = len(F) - nin
        if cfg["prio"] and cfg["pp"]: p.I("s_setprio", 1)
        for ks in range(2):
            nc, nks = (c, 1) if ks == 0 else (c + 1, 0)
            rd = reads(nc, nks) if nc < 14 else []
            ms = mfmas(c, ks)
            rp = 2 if grp == 0 else 3
            for m in ms:
                p.L.append(m)
                p.L.extend(rd[:rp]); rd = rd[rp:]
                acc += per
                while acc >= 1 and fi < len(F):
                    p.L.append(F[fi]); fi += 1; acc -= 1
        if cfg["prio"] and cfg["pp"]: p.I("s_setprio", 0)
        p.L.extend(F[fi:])
        if c + 1 < 14:
            if cfg.get("its") is not None and cfg["its"] <= c < cfg["its"] + 4: st.stamp(p, force=True)
            p.waittag(f"dma{c+2}", f"kv{(c+2)//2}", f"aw{(c+2)//2}", "zl")
            p.I("s_barrier")
            if cfg.get("its") is not None and cfg["its"] <= c < cfg["its"] + 4: st.stamp(p, force=True)
    st.stamp(p)
    uid = f"{typ}{grp}"
    def spin(name, vd, va, srdreg, soff, mask=None, sleep=4, first_loaded=False):
        cmp = f"    v_cmp_ne_u32 vcc, 1, {vd}\n" + (f"    s_nop 4\n    s_and_b64 vcc, vcc, {mask}\n" if mask is not None else "    s_nop 4\n")
        L = f"SP_{name}_{uid}"
        t = ""
        if first_loaded:
            p.I("v_mov_b32", vd, vd)
            t += cmp + f"    s_cbranch_vccz {L}_OK\n"
        t += (f"    s_mov_b32 s61, 0\n{L}:\n    buffer_load_dword {vd}, {va}, {srdreg}, {soff} offen sc1\n    s_add_u32 s61, s61, 1\n    s_cmp_gt_u32 s61, 0x20000\n"
              f"    s_cbranch_scc1 {L}_OK\n    s_waitcnt vmcnt(0)\n" + cmp + f"    s_cbranch_vccz {L}_OK\n    s_sleep {sleep}\n    s_branch {L}\n{L}_OK:")
        p.raw(t)
    p.I("s_barrier")
    spin("Z", vTk, vL0, SD, 0, first_loaded=True)
    OUT = V(160, 40); TMP = XR.sub(32, 24)
    cnt = [0]
    def tile_epi(q, acc, so, off):
        k = cnt[0]; cnt[0] += 1
        if typ == "F":
            o = OUT.sub(4 * (k % 6), 4)
            gelu_tile(q, acc, TMP.sub(8 * (k % 2), 8), o, vC2)
            q.I("buffer_store_dwordx4", o, vSt, SWS, so, mods=f"offen offset:{off} sc1", tag="hst")
        else:
            o = OUT.sub(8 * (k % 4), 8)
            for i in range(8): q.I("v_cvt_pk_bf16_f32", o[i], acc[2 * i], acc[2 * i + 1])
            for s in range(2): q.I("buffer_store_dwordx4", o.sub(4 * s, 4), vSt, SWS, so, mods=f"offen offset:{off + s*1024} sc1", tag="hst")
    vOne, vLn0 = V(241), V(242)
    p.I("v_mov_b32", vOne, 1); p.I("v_mov_b32", u5, BIG)
    p.I("v_cmp_eq_u32", VCC, 0, lane)
    p.I("v_cndmask_b32", vLn0, u5, 0, VCC)
    def set_hflag():
        p.I("s_lshl_b32", sT0, sR, 1); p.I("s_and_b32", sT1, sW, 1); p.I("s_add_u32", sT0, sT0, sT1); p.I("s_lshl_b32", sT0, sT0, 8)
        p.I("s_lshl_b32", sT1, sJ, 2); p.I("s_lshr_b32", sT2, sW, 1); p.I("s_add_u32", sT1, sT1, sT2); p.I("s_lshl_b32", sT1, sT1, 2)
        p.I("s_add_u32", sT0, sT0, sT1); p.I("s_add_u32", sT0, sT0, HF_OFF)
        p.waittag("hst")
        p.I("buffer_store_dword", vOne, vLn0, SWS, sT0, mods="offen sc1")
    if grp == 0:
        SWD, SWO, SO = SQKV, SXs, SYs
        sRB, sCB, sBd, sBo, sRing, sTm = S(64), S(65), S(66), S(67), S(68), S(69)
        vE0, vE1, vT0, vT1 = V(216), V(217), V(218), V(219)
        srd(p, SWD.n, 18, 1792 * 896); srd(p, SWO.n, 10, 448 * 896); srd(p, SO.n, 20, 2048 * 896)
        p.I("s_sub_u32", sT2, S(2), 32)
        p.I("s_and_b32", sT0, sT2, 7); p.I("s_lshr_b32", sT1, sT2, 3)
        p.I("s_mul_i32", sT2, sT1, 37); p.I("s_lshr_b32", sT2, sT2, 8)
        p.I("s_lshl_b32", sRB, sT0, 2); p.I("s_add_u32", sRB, sRB, sT2)
        p.I("s_mul_i32", sT2, sT2, 7); p.I("s_sub_u32", sCB, sT1, sT2)
        p.I("s_lshl_b32", sT0, sCB, 7)
        p.I("s_mul_i32", sBd, sW, 28 * 16 * 896); p.I("s_add_u32", sBd, sBd, sT0)
        p.I("s_mul_i32", sBo, sW, 4 * 28 * 896); p.I("s_add_u32", sBo, sBo, sT0)
        p.I("s_cmp_lt_u32", S(2), 32); p.I("s_cselect_b32", sBd, BIG, sBd)
        p.I("s_mul_i32", sRing, sW, BRING)
        p.I("v_lshrrev_b32", t1, 3, lane); p.I("v_and_b32", t2, 7, lane)
        p.I("v_bfe_u32", t3, lane, 4, 1); p.I("v_lshlrev_b32", t3, 2, t3); p.I("v_xor_b32", t2, t2, t3)
        p.I("v_mul_u32_u24", vE0, 896, t1); p.I("v_lshl_add_u32", vE0, t2, 4, vE0)
        p.I("v_cmp_gt_u32", VCC, 32, lane)
        p.I("v_cndmask_b32", vE1, u5, vE0, VCC)
        p.I("v_bfe_u32", t1, lane, 2, 2); p.I("v_lshl_add_u32", t1, u2, 2, t1)
        p.I("v_bfe_u32", t2, lane, 4, 1); p.I("v_and_b32", t3, 3, lane); p.I("v_lshlrev_b32", t3, 3, t3); p.I("v_lshl_add_u32", t2, t2, 5, t3)
        p.I("v_bfe_u32", t3, lane, 3, 1); p.I("v_lshlrev_b32", t3, 6, t3); p.I("v_xor_b32", t2, t2, t3)
        p.I("v_lshl_add_u32", vT0, t1, 7, t2); p.I("v_add_u32", vT0, sRing, vT0)
        p.I("v_xor_b32", vT1, 64, vT0)
        def bdma(q, k):
            for i in range(2):
                if k < 28:
                    q.I("s_add_u32", sTm, sBd, (16 * k + 8 * i) * 896); sr, va = SWD, vE0
                else:
                    kk = k - 28
                    q.I("s_add_u32", sTm, sBo, ((kk >> 1) * 28 + 16 * (kk & 1) + 8 * i) * 896); sr = SWO
                    va = vE1 if (kk & 1 and i == 1) else vE0
                q.I("s_add_u32", M0, sRing, (k % NB) * 2048 + i * 1024)
                q.I("buffer_load_dwordx4", va, sr, sTm, mods="offen lds", tag=f"b{k}")
        if cfg["btouch"]:
            p.I("s_and_b32", sT0, sRB, 3)
            p.I("s_mul_i32", sT1, sT0, 112 * 896); p.I("s_add_u32", sT1, sT1, sBd)
            p.I("v_mul_u32_u24", t1, 896, lane)
            p.I("buffer_load_dword", V(220), t1, SWD, sT1, mods="offen")
            p.I("v_add_u32", t2, 64 * 896, t1)
            p.I("v_cmp_gt_u32", VCC, 48, lane); p.I("v_cndmask_b32", t2, u5, t2, VCC)
            p.I("buffer_load_dword", V(221), t2, SWD, sT1, mods="offen")
            p.I("s_mul_i32", sT1, sT0, 28 * 896); p.I("s_add_u32", sT1, sT1, sBo)
            p.I("v_cmp_gt_u32", VCC, 28, lane); p.I("v_cndmask_b32", t2, u5, t1, VCC)
            p.I("buffer_load_dword", V(222), t2, SWO, sT1, mods="offen")
        E = Prog(); Dm = Prog()
        p.I("s_add_u32", sT3, sOut, RTS)
        p.I("s_add_u32", a1, sOut, 2 * TS); p.I("s_add_u32", a2, sT3, 2 * TS)
        for t in range(3):
            for i in range(2):
                if t < 2: tile_epi(E, ACC[2 * t + i], sOut if i == 0 else sT3, t * TS)
                else: tile_epi(E, ACC[2 * t + i], a1 if i == 0 else a2, 0)
        NE = cfg["bearly"]
        for k in range(NE): bdma(Dm, k)
        grp3 = [Dm.L[i:i + 3] for i in range(0, len(Dm.L), 3)]
        step = max(1, int(len(E.L) * 0.5) // max(1, len(grp3)))
        k = 0
        for g3 in grp3:
            p.L.extend(g3); p.L.extend(E.L[k:k + step]); k += step
        p.L.extend(E.L[k:])
        set_hflag()
        st.stamp(p)
        p.I("s_cmp_lt_u32", S(2), 32)
        p.raw(f"    s_cbranch_scc1 P2_END_{uid}")
        BP = cfg["bpre"]
        for k in range(NE, BP): bdma(p, k)
        nb = [BP]
        DA = cfg["da"]
        AC2 = [[V(64 + 32 * r + 16 * c, 16) for c in range(2)] for r in range(2)]
        BB = [V(8 + 8 * i, 8) for i in range(2)]
        AB = [V(128 + 8 * d, 8) for d in range(DA)]
        VO = V(24, 7); XV = V(32, 8); vP, vZ, vG, vLr, vLw = V(40), V(41), V(42), V(43), V(44)
        sA = [S(70), S(71)]; sAo = [S(73), S(74)]; sFlag = S(75); sM56 = S(76, 2) if False else S(56, 2)
        p.I("s_mul_i32", sT0, sW, 28 * 1024)
        p.I("s_mul_i32", sT1, sRB, 2 * NKS * 1024); p.I("s_add_u32", sA[0], sT1, sT0); p.I("s_add_u32", sA[1], sA[0], NKS * 1024)
        p.I("s_lshl_b32", sT0, sW, 13); p.I("s_add_u32", sT0, sT0, 112 * 1024)
        p.I("s_add_u32", sAo[0], sT1, sT0); p.I("s_add_u32", sAo[1], sAo[0], NKS * 1024)
        for m in range(7): p.I("v_add_u32", VO[m], 4096 * m, vSt)
        srd(p, SX.n, 4, 2048 * 896)
        p.I("s_lshl_b32", sT0, sW, 6); p.I("v_add_u32", t1, sT0, lane)
        p.I("v_lshrrev_b32", t2, 3, t1); p.I("v_and_b32", t3, 7, t1)
        p.I("s_lshl_b32", sT0, sRB, 6)
        p.I("v_add_u32", vG, sT0, t2); p.I("v_mul_u32_u24", vG, 896, vG); p.I("v_lshl_add_u32", vG, t3, 4, vG)
        p.I("s_lshl_b32", sT0, sCB, 7); p.I("v_add_u32", vG, sT0, vG)
        p.I("v_mul_u32_u24", vLr, K2_ROW, t2); p.I("v_lshl_add_u32", vLr, t3, 5, vLr)
        p.I("v_mul_u32_u24", vLw, K2_ROW, u1); p.I("v_lshl_add_u32", vLw, u2, 4, vLw); p.I("v_add_u32", vLw, sRing, vLw)
        p.I("v_lshlrev_b32", vZ, 2, lane)
        if cfg["hmask"]:
            p.I("s_mul_i32", sT0, sW, 7); p.I("s_lshr_b32", sT0, sT0, 1); p.I("s_lshl_b32", sT0, sT0, 2)
            p.I("s_mov_b32", sM56[0], 0xFFFF); p.I("s_mov_b32", sM56[1], 0)
            p.I("s_lshl_b64", sM56, sM56, sT0)
        else:
            p.I("s_mov_b32", sM56[0], -1); p.I("s_mov_b32", sM56[1], 0x00FFFFFF)
        p.I("s_lshl_b32", sFlag, sRB, 8); p.I("s_add_u32", sFlag, sFlag, HF_OFF)
        p.I("s_mov_b32", a0, 32 * 896)
        p.I("buffer_load_dwordx4", XV.sub(0, 4), vG, SX, 0, mods="offen")
        p.I("buffer_load_dwordx4", XV.sub(4, 4), vG, SX, a0, mods="offen")
        spin("H", vP, vZ, SWS, sFlag, mask=sM56, sleep=cfg["slh"])
        if cfg["inv"]: p.I("buffer_inv", mods="sc1")
        st.stamp(p)
        p.I("s_lshl_b32", sFlag, sRB, 7); p.I("s_add_u32", sFlag, sFlag, OF_OFF)
        p.I("v_lshlrev_b32", vZ, 2, u1)
        def aload(k):
            kk = k if k < 28 else k - 28
            for r in range(2):
                p.I("buffer_load_dwordx4", AB[k % DA].sub(4 * r, 4), VO[kk // 4], SWS, (sA if k < 28 else sAo)[r], mods=f"offen offset:{(kk % 4) * 1024}" + ("" if (cfg["inv"] and k < 28) else " sc1"))
        def bread(k):
            p.waittag(f"b{k}")
            for c in range(2):
                for pp in range(2):
                    p.I("ds_read_b64_tr_b16", BB[k & 1].sub(4 * c + 2 * pp, 2), vT1 if c else vT0, mods=f"offset:{(k % NB) * 2048 + pp * 1024}")
        if cfg["atouch"]:
            p.I("v_lshrrev_b32", t1, 4, lane); p.I("v_lshlrev_b32", t1, 10, t1)
            p.I("v_bfe_u32", t2, lane, 3, 1); p.I("v_mul_u32_u24", t2, NKS * 1024, t2); p.I("v_add_u32", t1, t1, t2)
            p.I("v_and_b32", t2, 7, lane); p.I("v_lshl_add_u32", t1, t2, 7, t1)
            p.I("s_lshl_b32", sT0, sCB, 12); p.I("s_add_u32", sT0, sT0, sA[0])
        for k in range(DA):
            aload(k)
            if cfg["atouch"] and k == 0: p.I("buffer_load_dword", V(223), t1, SWS, sT0, mods="offen sc1")
        bread(0)
        kpoll = 28 - DA - cfg["pollahead"]
        for k in range(36):
            if k + 1 < 36: bread(k + 1)
            for r in range(2):
                for c in range(2):
                    p.I(MF, AC2[r][c], BB[k & 1].sub(4 * c, 4), AB[k % DA].sub(4 * r, 4), 0 if k == 0 else AC2[r][c])
            if k == kpoll: p.I("buffer_load_dword", vP, vZ, SWS, sFlag, mods="offen sc1")
            if k + DA == 28:
                if cfg["stamps"] == 2: st.stamp(p)
                spin("O", vP, vZ, SWS, sFlag, first_loaded=True, sleep=8)
                if cfg["stamps"] == 2: st.stamp(p)
            if k + DA < 36: aload(k + DA)
            c2 = 0
            while nb[0] < 36 and nb[0] <= k + cfg["bla"] and c2 < 2:
                bdma(p, nb[0]); nb[0] += 1; c2 += 1
        for r in range(2):
            for c in range(2):
                for g in range(4):
                    p.I("ds_write_b128", vLw, AC2[r][c].sub(4 * g, 4), mods=f"offset:{r*32*K2_ROW + (c*32+8*g)*4}", tag="pw")
        p.waittag("pw")
        p.I("s_barrier")
        RD = V(64, 64)
        p.I("v_add_u32", t1, 2 * BRING, vLr)
        for pp in range(2):
            for w in range(4):
                for hh in range(2):
                    p.I("ds_read_b128", RD.sub(32 * pp + 8 * w + 4 * hh, 4), vLr if w < 2 else t1, mods=f"offset:{(w & 1) * BRING + pp*32*K2_ROW + hh*16}")
        for pp in range(2):
            R = RD.sub(32 * pp, 32)
            for i in range(8): p.I("v_add_f32", R[i], R[i], R[8 + i])
            for i in range(8): p.I("v_add_f32", R[16 + i], R[16 + i], R[24 + i])
            Xr = XV.sub(4 * pp, 4); T = V(8, 8)
            for i in range(4):
                p.I("v_lshlrev_b32", T[2 * i], 16, Xr[i]); p.I("v_and_b32", T[2 * i + 1], 0xFFFF0000, Xr[i])
            for i in range(8): p.I("v_add_f32", R[i], R[i], R[16 + i])
            for i in range(8): p.I("v_add_f32", R[i], R[i], T[i])
            O = V(16 + 4 * pp, 4)
            for i in range(4): p.I("v_cvt_pk_bf16_f32", O[i], R[2 * i], R[2 * i + 1])
            p.I("buffer_store_dwordx4", O, vG, SO, 0 if pp == 0 else a0, mods="offen")
        p.label(f"P2_END_{uid}")
    else:
        if cfg["sprio"]: p.I("s_setprio", cfg["sprio"])
        tile_epi(p, ACC[0], sOut, 0)
        tile_epi(p, ACC[1], sOut2, 0)
        if cfg["sprio"] and cfg["sdrop"]: p.I("s_setprio", 0)
        K, Vv, PACC = ACC[2], ACC[3], ACC[4]
        qb = LT.sub(0, 8); VB = ACC[5].sub(0, 8); NEG = ACC[5].sub(8, 8); POS = LT.sub(0, 8)
        for i in range(8): p.I("v_cvt_pk_bf16_f32", qb[i], K[2 * i], K[2 * i + 1])
        p.I(MF, PACC, WPHI.sub(0, 4), qb.sub(0, 4), 0)
        p.I(MF, PACC, WPHI.sub(4, 4), qb.sub(4, 4), PACC)
        p.I("v_mov_b32", u3, 0x3F803F80)
        for r in range(8): p.I("v_cvt_pk_bf16_f32", VB[r], Vv[2 * r], Vv[2 * r + 1])
        for r in range(8): p.I("v_cndmask_b32", VB[r], VB[r], u3, sM28)
        set_hflag()
        if cfg["stamps"] == 2: st.stamp(p)
        softmax_core(p, PACC, K, LT.sub(8, 8), POS, NEG, vMask, sL)
        Tt = [K, PACC]
        for ft, src in enumerate((POS, NEG)):
            p.I(MF, Tt[ft], src.sub(0, 4), IDN.sub(0, 4), 0)
            p.I(MF, Tt[ft], src.sub(4, 4), IDN.sub(4, 4), Tt[ft])
        if cfg["sprio"] and cfg["sdrop"]: p.I("s_setprio", 3)
        p.I("v_lshlrev_b32", u4, 2, lane)
        PT = [LT.sub(0, 8), LT.sub(8, 8)]
        for ft in range(2):
            for r in range(8): p.I("v_cvt_pk_bf16_f32", PT[ft][r], Tt[ft][2 * r], Tt[ft][2 * r + 1])
        for ft in range(2):
            p.I(MF, Tt[ft], PT[ft].sub(0, 4), VB.sub(0, 4), 0)
            p.I(MF, Tt[ft], PT[ft].sub(4, 4), VB.sub(4, 4), Tt[ft])
        p.I("s_lshl_b32", sT0, sW, 13); p.I("s_add_u32", sT0, sT0, KVP_L - 4 * 8192)
        p.I("v_add_u32", u3, sT0, vSt)
        p.I("v_mov_b32", t1, KVL); p.I("v_mov_b32", t2, 1)
        for qd in range(8):
            p.I("ds_write_b128", u3, Tt[qd >> 2].sub(4 * (qd & 3), 4), mods=f"offset:{qd*1024}", tag="kva")
        p.waittag("kva")
        lbl = f"K1_{typ}_"
        p.raw("    s_mov_b64 exec, 1\n    ds_add_u32 v1, v2\n    s_mov_b64 exec, -1")
        p.raw(f"    s_mov_b32 s61, 0\n{lbl}LSPIN:\n    ds_read_b32 v3, v1\n    s_add_u32 s61, s61, 1\n    s_lshr_b32 s62, s61, 18\n    s_waitcnt lgkmcnt(0)\n    s_nop 1\n    v_readfirstlane_b32 s60, v3\n    s_nop 3\n    s_or_b32 s60, s60, s62\n    s_cmp_lt_u32 s60, 4\n    s_cbranch_scc1 {lbl}LSPIN")
        p.I("s_lshl_b32", sT0, sW, 11); p.I("s_sub_u32", sT0, sT0, 4 * 2048)
        p.I("s_add_u32", a0, sZ, sT0)
        p.I("s_add_u32", sT0, sT0, KVP_L)
        p.I("v_add_u32", t1, sT0, u4)
        R2 = V(128, 32)
        for e in range(8):
            p.I("ds_read2st64_b32", R2.sub(4 * e, 2), t1, mods=f"offset0:{e} offset1:{e+32}")
            p.I("ds_read2st64_b32", R2.sub(4 * e + 2, 2), t1, mods=f"offset0:{e+64} offset1:{e+96}")
        for e in range(8):
            p.I("v_add_f32", R2[4 * e], R2[4 * e], R2[4 * e + 1]); p.I("v_add_f32", R2[4 * e + 2], R2[4 * e + 2], R2[4 * e + 3])
            p.I("v_add_f32", R2[4 * e], R2[4 * e], R2[4 * e + 2])
            p.I("buffer_atomic_add_f32", R2[4 * e], u4, SWS, a0, mods=f"offen offset:{e * 256}", tag="kat")
        sKF, sRT, sQF = S(64), S(65), S(66)
        p.I("s_lshl_b32", sRT, sR, 2); p.I("s_add_u32", sRT, sRT, sW); p.I("s_sub_u32", sRT, sRT, 4)
        p.I("s_lshl_b32", sKF, sJ, 8); p.I("s_add_u32", sKF, sKF, KF_OFF)
        p.I("s_lshl_b32", sT0, sRT, 2); p.I("s_add_u32", sT0, sT0, sKF)
        if cfg["stamps"] == 2: st.stamp(p)
        p.waittag("kat")
        p.I("buffer_store_dword", vOne, vLn0, SWS, sT0, mods="offen sc1")
        st.stamp(p)
        p.I("s_lshr_b32", sQF, sRT, 1); p.I("s_lshl_b32", sQF, sQF, 8)
        p.I("s_lshr_b32", sT0, sJ, 3); p.I("s_lshl_b32", sT0, sT0, 4); p.I("s_add_u32", sQF, sQF, sT0); p.I("s_add_u32", sQF, sQF, HF_OFF + 224)
        p.I("v_and_b32", t1, 12, u4)
        spin("Q", t2, t1, SWS, sQF, sleep=cfg["slk"])
        QB = V(8, 8); KA = V(64, 32); P = V(96, 16); E2 = V(112, 16); TM = V(16, 8); POS, NEG = V(24, 8), V(32, 8); KFr = V(40, 16)
        p.I("s_lshl_b32", sT0, sRT, 15); p.I("s_lshl_b32", sT1, sJ, 11); p.I("s_add_u32", sT0, sT0, sT1); p.I("s_add_u32", sT0, sT0, QF_OFF)
        for s in range(2): p.I("buffer_load_dwordx4", QB.sub(4 * s, 4), vSt, SWS, sT0, mods=f"offen offset:{s*1024} sc1")
        p.I(MF, P, WPHI.sub(0, 4), QB.sub(0, 4), 0)
        p.I(MF, P, WPHI.sub(4, 4), QB.sub(4, 4), P)
        softmax_core(p, P, E2, TM, POS, NEG, vMask, sL)
        spin("K", t2, u4, SWS, sKF, sleep=cfg["slk"])
        st.stamp(p)
        p.I("s_add_u32", sT1, sZ, 4096)
        for qd in range(8): p.I("buffer_load_dwordx4", KA.sub(4 * qd, 4), vSt, SWS, sZ if qd < 4 else sT1, mods=f"offen offset:{(qd&3)*1024} sc1")
        for ft in range(2):
            for i in range(12, 16): p.I("v_mul_f32", KA[16 * ft + i], KA[16 * ft + i], vMask)
        for i in range(16): p.I("v_cvt_pk_bf16_f32", KFr[i], KA[2 * i], KA[2 * i + 1])
        N = P
        for s in range(4):
            p.I(MF, N, KFr.sub(4 * s, 4), (POS if s < 2 else NEG).sub(4 * (s & 1), 4), 0 if s == 0 else N)
        d0, d1 = TM[0], TM[1]
        p.I("s_mul_i32", sT0, sRT, NKS * 1024); p.I("s_lshl_b32", sT2, sJ, 11); p.I("s_add_u32", sT0, sT0, sT2); p.I("s_add_u32", sT0, sT0, 112 * 1024)
        p.I("s_lshl_b32", sT1, sRT, 6); p.I("s_lshl_b32", sT2, sJ, 2); p.I("s_add_u32", sT1, sT1, sT2); p.I("s_add_u32", sT1, sT1, OF_OFF)
        p.I("v_mov_b32", d0, N[12]); p.I("v_mov_b32", d1, N[12])
        p.I("v_permlane32_swap_b32", d0, d1)
        p.I("v_add_f32", d1, f2u(1e-6), d1)
        p.I("v_rcp_f32", d1, d1)
        for i in range(16): p.I("v_mul_f32", N[i], N[i], d1)
        T = QB
        for i in range(8): p.I("v_cvt_pk_bf16_f32", T[i], N[2 * i], N[2 * i + 1])
        for s in range(2): p.I("buffer_store_dwordx4", T.sub(4 * s, 4), vSt, SWS, sT0, mods=f"offen offset:{s*1024} sc1", tag="ost")
        p.waittag("ost")
        p.I("buffer_store_dword", vOne, vLn0, SWS, sT1, mods="offen sc1")
    if cfg["stamps"] != 2: st.stamp(p)
    st.stamp(p, True)
    st.flush(p, SWS, sW, 8, t1, t3)
    if cfg.get("dbgwg") is not None and grp == 0:
        p.I("s_lshl_b32", S(100), S(2), 3); p.I("s_add_u32", S(100), S(100), sW)
        p.I("s_cmp_eq_u32", S(100), cfg["dbgwg"] * 8)
        p.I("s_cselect_b32", S(100), 0, BIG)
        p.I("v_mov_b32", t3, 0)
        for i in range(1, st.n):
            p.I("s_sub_u32", S(101), S(80 + 2 * i), S(80))
            p.I("v_mov_b32", t1, S(101))
            p.I("buffer_store_dword", t1, t3, SD, S(100), mods=f"offen offset:{4*i}")
            p.I("s_nop", 1)
    p.I("s_endpgm")

K2_ROW = 272
def build(cfg):
    hdr = open("cdna_kernels/" + NAME + ".s.ref").read().split("\n")
    head = [l for l in hdr if l.startswith(";") and "@launch" not in l]
    head.append(f"; @launch grid=(256,1,1) block=(512,1,1) lds={K1_LDS}")
    out = "\n".join(head) + '\n.amdgcn_target "amdgcn-amd-amdhsa--gfx950"\n.text\n'
    descs = ""
    for g in (gen_k1,):
        t, d = g(cfg); out += t; descs += ".p2align 6\n" + d
    out += "CODE_END:\n    s_endpgm\n" + '.section .rodata,"a"\n' + descs
    if cfg["align"]:
        import align
        out, a, b = align.align(out, cfg["minrun"])
        print("align: promoted", a, "nops", b)
    return out

if __name__ == "__main__":
    cfg = dict(k2bar=1, k1map=0, k2depth=5, stamps=0, rot=1, pollahead=2, sc1=1, npre=3, la=5, xbar=2, w2it=10, ke=4, dmaper=4, bahead=3, front=85, cpref=1, wdpf=3, wdmode=1, btouch=0, atouch=0, l2pf=3, l2n=8, l2s=1, sdrop=1, hmask=1, bearly=0, bpre=10, bla=4, slh=4, slk=16, inv=0, da=3, sprio=1, jcont=1, xrot=1, kvodd=1, spread=1, pp=1, ppin=0, prio=0, align=1, minrun=3, attprio=1)
    for a in sys.argv[2:]:
        k, v = a.split("="); cfg[k] = int(v)
    open(sys.argv[1], "w").write(build(cfg))
```

```python
import sys, struct
from asmgen import *
from gen2 import Stamps, srd, f2u, LOG2E, GC1, GC2, gelu_tile, NAME, MF, BIG, NKS, AF_OFF, W2F_OFF, WS_BYTES, DBG_OFF
QF_OFF = 0x0C00000
FLG_OFF = 0x1100000
KVA_OFF = 0x1000000

def code_prefetch(p, start, end, vd, va, sb, sa, sc):
    lbl = "CP_L"
    p.raw(f"    s_getpc_b64 {sb}\n{lbl}:")
    p.raw(f"    s_sub_u32 {sb[0]}, {sb[0]}, {lbl}-{start}\n    s_subb_u32 {sb[1]}, {sb[1]}, 0")
    p.I("s_lshr_b32", sa, S(2), 3); p.I("s_lshl_b32", sc, S(3), 5); p.I("s_add_u32", sa, sa, sc); p.I("s_lshl_b32", sa, sa, 10)
    p.raw(f"    s_cmp_lt_u32 {sa}, {end}-{start}-1024\n    s_cbranch_scc0 {lbl}_SKIP")
    p.I("v_lshl_add_u32", va, V(0), 4, sa)
    p.raw(f"    global_load_dwordx4 {vd}, {va}, {sb}\n{lbl}_SKIP:")

def gelu_pk(p, acc, t, out, KC):
    P = lambda r, j: r.sub(2 * j, 2)
    for j in range(4): p.I("v_pk_mul_f32", P(t, j), P(acc, j), P(acc, j))
    for j in range(4): p.I("v_pk_fma_f32", P(t, j), P(t, j), KC, KC, mods="op_sel:[0,0,1] op_sel_hi:[1,0,1]")
    for j in range(4): p.I("v_pk_mul_f32", P(t, j), P(t, j), P(acc, j))
    for j in range(4):
        p.I("v_exp_f32", t[2 * j], t[2 * j]); p.I("v_exp_f32", t[2 * j + 1], t[2 * j + 1])
        p.I("v_pk_mul_f32", P(acc, 4 + j), P(acc, j), P(acc, 4 + j))
    for j in range(4): p.I("v_pk_add_f32", P(t, j), P(t, j), 1.0, mods="op_sel_hi:[1,0]")
    for j in range(8): p.I("v_rcp_f32", t[j], t[j])
    for j in range(4): p.I("v_pk_mul_f32", P(t, j), P(t, j), P(acc, 4 + j))
    for j in range(4): p.I("v_cvt_pk_bf16_f32", out[j], t[2 * j], t[2 * j + 1])

def split(L, n):
    k = (len(L) + n - 1) // n
    return [L[i * k:(i + 1) * k] for i in range(n)]

PKS = [0]
def softmax_core(p, P, E, tmp, pos, neg, vmask, sL):
    mx, mn, t0, t1, sp, sn, sp2, sn2 = [tmp[i] for i in range(8)]
    p.I("v_max3_f32", mx, P[0], P[1], P[2])
    p.I("v_min3_f32", mn, P[0], P[1], P[2])
    for i in range(6):
        p.I("v_max3_f32", mx, mx, P[3 + 2 * i], P[4 + 2 * i])
        p.I("v_min3_f32", mn, mn, P[3 + 2 * i], P[4 + 2 * i])
    p.I("v_max_f32", mx, mx, P[15])
    p.I("v_min_f32", mn, mn, P[15])
    p.I("v_mov_b32", t0, mx)
    p.I("v_mov_b32", t1, mn)
    p.I("v_permlane32_swap_b32", mx, t0)
    p.I("v_permlane32_swap_b32", mn, t1)
    p.I("v_max_f32", mx, mx, t0)
    p.I("v_min_f32", mn, mn, t1)
    p.I("v_mul_f32", mx, sL, mx)
    p.I("v_mul_f32", mn, sL, mn)
    if PKS[0]:
        p.I("v_mov_b32", t0, sL)
        for i in range(8): p.I("v_pk_fma_f32", E.sub(2 * i, 2), P.sub(2 * i, 2), tmp.sub(2, 2), tmp.sub(0, 2), mods="op_sel:[0,0,1] op_sel_hi:[1,0,1] neg_lo:[1,0,0] neg_hi:[1,0,0]")
        for i in range(8): p.I("v_pk_fma_f32", P.sub(2 * i, 2), P.sub(2 * i, 2), tmp.sub(2, 2), tmp.sub(0, 2), mods="op_sel_hi:[1,0,0] neg_lo:[0,0,1] neg_hi:[0,0,1]")
    else:
        for i in range(16): p.I("v_fma_f32", E[i], Neg(P[i]), sL, mn)
        for i in range(16): p.I("v_fma_f32", P[i], P[i], sL, Neg(mx))
    for i in range(16): p.I("v_exp_f32", E[i], E[i])
    for i in range(16): p.I("v_exp_f32", P[i], P[i])
    p.I("v_add_f32", sn, E[0], E[1]); p.I("v_add_f32", sn2, E[2], E[3])
    p.I("v_add_f32", sp, P[0], P[1]); p.I("v_add_f32", sp2, P[2], P[3])
    for i in range(4, 12, 2):
        p.I("v_add_f32", sn, sn, E[i]); p.I("v_add_f32", sn2, sn2, E[i + 1])
        p.I("v_add_f32", sp, sp, P[i]); p.I("v_add_f32", sp2, sp2, P[i + 1])
    for i in range(12, 16, 2):
        p.I("v_fmac_f32", sn, E[i], vmask); p.I("v_fmac_f32", sn2, E[i + 1], vmask)
        p.I("v_fmac_f32", sp, P[i], vmask); p.I("v_fmac_f32", sp2, P[i + 1], vmask)
    p.I("v_add_f32", sp, sp, sp2); p.I("v_add_f32", sn, sn, sn2)
    p.I("v_mov_b32", t0, sp); p.I("v_mov_b32", t1, sn)
    p.I("v_permlane32_swap_b32", sp, t0)
    p.I("v_permlane32_swap_b32", sn, t1)
    p.I("v_add_f32", sp, sp, t0); p.I("v_add_f32", sn, sn, t1)
    p.I("v_rcp_f32", sp, sp); p.I("v_rcp_f32", sn, sn)
    if PKS[0]:
        for i in range(8): p.I("v_pk_mul_f32", P.sub(2 * i, 2), P.sub(2 * i, 2), tmp.sub(4, 2), mods="op_sel_hi:[1,0]")
        for i in range(8): p.I("v_pk_mul_f32", E.sub(2 * i, 2), E.sub(2 * i, 2), tmp.sub(4, 2), mods="op_sel:[0,1] op_sel_hi:[1,1]")
    else:
        for i in range(16): p.I("v_mul_f32", P[i], P[i], sp)
        for i in range(16): p.I("v_mul_f32", E[i], E[i], sn)
    for i in range(8): p.I("v_cvt_pk_bf16_f32", pos[i], P[2 * i], P[2 * i + 1])
    for i in range(8): p.I("v_cvt_pk_bf16_f32", neg[i], E[2 * i], E[2 * i + 1])

def wphi_gather(q, WT, SPHI, sHead, sT, lane, u1, u2, u3, u4, u5):
    q.I("v_and_b32", u1, 31, lane); q.I("v_lshrrev_b32", u2, 5, lane); q.I("v_mov_b32", u5, BIG)
    q.I("v_subrev_u32", u3, 24, u1)
    q.I("v_cmp_lt_u32", VCC, 27, u1)
    q.I("v_cndmask_b32", u3, u1, u3, VCC)
    q.I("v_lshlrev_b32", u3, 1, u3)
    q.I("v_mul_u32_u24", u4, 4 * 56, u2)
    q.I("v_add_u32", u3, u3, u4)
    q.I("s_mul_i32", sT, sHead, 1568)
    q.I("v_add_u32", u3, sT, u3)
    q.I("v_cmp_eq_u32", VCC, 1, u2)
    q.I("v_cndmask_b32", u4, u3, u5, VCC)
    for s in range(2):
        for j in range(8):
            d0 = 16 * s + 8 * (j >> 2) + (j & 3)
            q.I("buffer_load_ushort", WT[8 * s + j], u4 if d0 + 4 >= 28 else u3, SPHI, 0, mods=f"offen offset:{d0*56}")

XYS = 16384; NXY = 6; KVB = XYS * NXY; PAGE = 8192; NKV = 3
ASB = KVB + NKV * PAGE; ABLK = 32 * 528
K1_LDS = ASB + 2 * ABLK
KVL = ASB + 32768
KVROW = 320
KVP_L = ASB
NB = 15; BRING = NB * 2048
HF_OFF = FLG_OFF; KF_OFF = FLG_OFF + 8192; OF_OFF = FLG_OFF + 12288

lane = V(0)
XR = V(8, 56)
def xr(b, g): return XR.sub(8 * b + 4 * g, 4)
ACC = [V(64 + 16 * i, 16) for i in range(6)]
BF = [[V(160 + 12 * s + 4 * t, 4) for t in range(3)] for s in range(2)]
AFr = [[V(184 + 8 * s + 4 * i, 4) for i in range(2)] for s in range(2)]
LT = V(200, 16)
vBt = [[V(216 + 2 * t), V(217 + 2 * t)] for t in range(3)]
vAw, vAr, vD0, vDX, vDY, vSt = [V(222 + i) for i in range(6)]
vR = [V(228), V(229)]; vNM = [V(230), V(231)]
vMask, vC2, vTk, vL0 = V(232), V(233), V(234), V(235)
u1, u2, u3, u4, u5 = [V(236 + i) for i in range(5)]
WPHI = V(244, 8)
sW = S(3); sR, sJ, sRot = S(26), S(27), S(72)
SX, SQKV, SXs, SYs, SWS, SPHI, SD, SW2 = [S(28 + 4 * i, 4) for i in range(8)]
sT0, sT1, sT2, sT3 = S(60), S(61), S(62), S(63)
sO0, sOX, sLdsW, sL = S(64), S(65), S(66), S(67)
sM28 = S(68, 2)
sOut, sW2d = S(70), S(71)
sZ, sFl, sStr, sEnd = S(73), S(74), S(75), S(76)
a0, a1, a2 = S(77), S(78), S(79)
sG = S(58)

def dma_xy(q, c):
    slot = (c % NXY) * XYS
    q.I("s_add_u32", M0, sLdsW, slot)
    q.I("buffer_load_dwordx4", vDX, SXs, sOX, mods="offen lds", tag=f"dma{c}")
    q.I("s_add_u32", M0, sLdsW, slot + PAGE)
    q.I("buffer_load_dwordx4", vDY, SYs, sOX, mods="offen lds", tag=f"dma{c}")
    if c < 13:
        q.I("s_add_u32", sOX, sOX, sStr)
        if c % 2 == 1:
            q.I("s_cmp_eq_u32", sOX, sEnd); q.I("s_cselect_b32", sOX, 0, sOX)
def dma_kv(q, b):
    q.I("s_add_u32", M0, sLdsW, KVB + (b % NKV) * PAGE)
    q.I("buffer_load_dwordx4", vD0, SQKV, sO0, mods="offen lds", tag=f"kv{b}")
    if b < 6:
        q.I("s_add_u32", sO0, sO0, 64 * 2688); q.I("s_cmp_eq_u32", sO0, 448 * 2688); q.I("s_cselect_b32", sO0, 0, sO0)
def ln_unit(q, b, g):
    x = xr(b, g); T = LT.sub(0, 8)
    for i in range(4):
        q.I("v_lshlrev_b32", T[2 * i], 16, x[i])
        q.I("v_and_b32", T[2 * i + 1], 0xFFFF0000, x[i])
    for i in range(8): q.I("v_fma_f32", T[i], T[i], vR[g], vNM[g])
    for i in range(4): q.I("v_cvt_pk_bf16_f32", x[i], T[2 * i], T[2 * i + 1])
def a_write(q, b, g):
    q.I("ds_write_b128", vAw, xr(b, g), mods=f"offset:{(b % 2) * ABLK + g * 128}", tag=f"aw{b}")

def k1_common(p, cfg, st):
    t1, t2, t3, t4, t5, t6, t7 = [V(i) for i in range(1, 8)]
    p.I("s_cmp_ge_u32", S(2), 256)
    p.raw("    s_cbranch_scc1 K1_END")
    p.I("s_load_dwordx8", S(4, 8), S(0, 2), 0)
    p.I("s_load_dwordx8", S(12, 8), S(0, 2), 32)
    p.I("s_load_dwordx4", S(20, 4), S(0, 2), 64)
    p.I("s_load_dwordx2", S(24, 2), S(0, 2), 80)
    st.stamp(p, True)
    if cfg["stamps"] != 2: st.stamp(p)
    p.I("v_lshrrev_b32", V(1), 6, V(0))
    p.I("v_readfirstlane_b32", S(3), V(1))
    p.I("v_and_b32", V(0), 63, V(0))
    p.I("s_and_b32", sT0, S(2), 7); p.I("s_lshr_b32", sT1, S(2), 3)
    lr = {0: 3, 2: 2, 1: 1}[cfg["k1map"]]
    nxr = 16 >> lr
    p.I("s_and_b32", sT2, sT0, nxr - 1); p.I("s_lshl_b32", sT2, sT2, lr)
    p.I("s_and_b32", sT3, sT1, (1 << lr) - 1); p.I("s_add_u32", sR, sT2, sT3)
    p.I("s_lshr_b32", sT2, sT0, 4 - lr)
    p.I("s_lshr_b32", sT1, sT1, lr)
    if cfg["jcont"]: p.I("s_lshl_b32", sJ, sT2, 5 - lr); p.I("s_add_u32", sJ, sJ, sT1)
    else: p.I("s_lshl_b32", sJ, sT1, lr - 1); p.I("s_add_u32", sJ, sJ, sT2)
    p.I("s_lshl_b32", sRot, sT3, 3 - lr)
    p.I("s_and_b32", a0, sT0, nxr - 1); p.I("s_add_u32", sRot, sRot, a0)
    p.I("s_cmp_ge_u32", sRot, 7); p.I("s_cselect_b32", sT2, 7, 0); p.I("s_sub_u32", sRot, sRot, sT2)
    p.I("s_cmp_ge_u32", sRot, 7); p.I("s_cselect_b32", sT2, 7, 0); p.I("s_sub_u32", sRot, sRot, sT2)
    if cfg["rot"] == 0: p.I("s_mov_b32", sRot, 0)
    elif cfg["rot"] == 2: p.I("s_and_b32", sRot, sT3, 1); p.I("s_mul_i32", sRot, sRot, 3)
    elif cfg["rot"] == 3: p.I("s_and_b32", sRot, sT3, 3); p.I("s_lshl_b32", sRot, sRot, 1)
    elif cfg["rot"] == 4: p.I("s_and_b32", sRot, sT3, 1)
    if lr == 3: p.I("s_lshl_b32", sG, sT1, 1)
    else: p.I("s_mov_b32", sG, sT1)
    if not cfg["xrot"]: p.I("s_mov_b32", sG, 0)
    p.I("s_add_u32", sG, sG, sW); p.I("s_and_b32", sG, sG, 7)
    r8, k8 = t1, t2
    p.I("v_lshrrev_b32", r8, 3, lane)
    p.I("v_and_b32", k8, 7, lane)
    p.I("s_lshl_b32", sT0, sR, 7); p.I("s_lshl_b32", sT1, sG, 4); p.I("s_add_u32", sT0, sT0, sT1)
    p.I("v_add_u32", t3, sT0, r8)
    p.I("v_mul_u32_u24", t3, 896, t3)
    p.I("v_lshl_add_u32", t3, k8, 4, t3)
    p.I("v_add_u32", t4, 8 * 896, t3)
    p.I("s_lshl_b32", sT0, sRot, 7)
    srd(p, SX.n, 4, 2048 * 896)
    for b in range(7):
        p.I("buffer_load_dwordx4", xr(b, 0), t3, SX, sT0, mods="offen")
        p.I("buffer_load_dwordx4", xr(b, 1), t4, SX, sT0, mods="offen")
        if b < 6:
            p.I("s_add_u32", sT0, sT0, 128); p.I("s_cmp_eq_u32", sT0, 896); p.I("s_cselect_b32", sT0, 0, sT0)
    if cfg["xbar"] == 2:
        p.I("s_cmp_lt_u32", sW, 4); p.raw("    s_cbranch_scc1 K1_NB0"); p.I("s_barrier"); p.label("K1_NB0")
    if cfg["cpref"]: code_prefetch(p, NAME + "_kernel", "CODE_END", V(64, 4), t3, S(56, 2), sT0, sT1)
    srd(p, SQKV.n, 6, 448 * 2688)
    p.I("s_lshl_b32", sT1, sJ, 8)
    p.I("s_sub_u32", sT2, sJ, 14); p.I("s_mul_i32", sT2, sT2, 448)
    p.I("s_mov_b32", a0, 2688); p.I("s_mov_b32", a1, 448 * 2688)
    p.I("s_cmp_lt_u32", sJ, 14)
    p.I("s_cselect_b32", SXs[0], S(14), S(6)); p.I("s_cselect_b32", SXs[1], S(15), S(7))
    p.I("s_cselect_b32", SYs[0], S(16), S(6)); p.I("s_cselect_b32", SYs[1], S(17), S(7))
    p.I("s_cselect_b32", a0, 3584, a0)
    p.I("s_cselect_b32", sEnd, 448 * 3584, a1)
    p.I("s_cselect_b32", sT1, sT1, sT2)
    p.I("s_cselect_b32", a1, 2, 0)
    p.I("s_cselect_b32", a2, 0, 224)
    p.I("s_and_b32", SXs[1], SXs[1], 0xFFFF); p.I("s_and_b32", SYs[1], SYs[1], 0xFFFF)
    p.I("s_mov_b32", SXs[2], sEnd); p.I("s_mov_b32", SYs[2], sEnd)
    p.I("s_mov_b32", SXs[3], 0x20000); p.I("s_mov_b32", SYs[3], 0x20000)
    p.I("s_lshl_b32", sStr, a0, 5)
    p.I("s_mul_i32", sOX, sRot, sStr); p.I("s_lshl_b32", sOX, sOX, 1)
    p.I("v_lshrrev_b32", t3, 4, lane)
    p.I("v_and_b32", t4, 15, lane)
    p.I("v_lshlrev_b32", t5, 2, t3); p.I("v_xor_b32", t4, t4, t5)
    p.I("s_lshl_b32", sT0, sW, 2)
    p.I("v_add_u32", t3, sT0, t3)
    p.I("v_mul_u32_u24", t3, a0, t3)
    p.I("v_add_u32", t3, sT1, t3)
    p.I("v_lshl_add_u32", vDX, t4, 4, t3)
    p.I("v_xor_b32", t4, a1, t4)
    p.I("v_lshl_add_u32", vDY, t4, 4, t3)
    p.I("v_add_u32", vDY, a2, vDY)
    p.I("s_lshl_b32", sLdsW, sW, 10)
    p.I("v_bfe_u32", t5, r8, 1, 1)
    p.I("v_lshlrev_b32", t5, 2, t5)
    p.I("v_xor_b32", t5, t5, k8)
    p.I("s_lshl_b32", sT0, sW, 3)
    p.I("v_add_u32", t6, sT0, r8)
    p.I("v_lshrrev_b32", t3, 2, t5); p.I("v_mul_u32_u24", t3, 896, t3)
    p.I("v_and_b32", t4, 3, t5); p.I("v_lshl_add_u32", t3, t4, 4, t3)
    p.I("v_mul_u32_u24", t4, 2688, t6); p.I("v_add_u32", t3, t3, t4)
    p.I("s_mul_i32", sT1, sJ, 56); p.I("s_add_u32", sT1, sT1, 896)
    p.I("v_add_u32", vD0, sT1, t3)
    p.I("s_mul_i32", sO0, sRot, 64 * 2688)
    p.I("v_mul_u32_u24", vAw, 528, k8)
    p.I("v_lshl_add_u32", vAw, r8, 4, vAw)
    p.I("s_lshr_b32", sT0, sG, 1); p.I("s_mul_i32", sT0, sT0, 8 * 528)
    p.I("s_and_b32", sT1, sG, 1); p.I("s_lshl_b32", sT2, sT1, 8)
    p.I("s_add_u32", sT0, sT0, sT2); p.I("s_add_u32", sT0, sT0, ASB)
    p.I("v_add_u32", vAw, sT0, vAw)
    p.I("s_and_b32", sT1, sW, 1)
    srd(p, SWS.n, 24, WS_BYTES)
    p.I("v_lshlrev_b32", vSt, 4, lane)
    p.I("v_and_b32", u1, 31, lane)
    p.I("v_lshrrev_b32", u2, 5, lane)
    p.I("v_mul_u32_u24", vAr, 528, u2)
    p.I("v_lshl_add_u32", vAr, u1, 4, vAr)
    p.I("s_mul_i32", sT2, sT1, 16 * 528); p.I("s_add_u32", sT2, sT2, ASB)
    p.I("v_add_u32", vAr, sT2, vAr)
    p.I("v_mov_b32", vC2, f2u(GC2))
    sm = [LT[0], LT[1]]; sq = [LT[2], LT[3]]; ones = LT[4]
    p.I("v_mov_b32", ones, 0x3F803F80)
    for r in sm + sq: p.I("v_mov_b32", r, 0)
    for b in range(7):
        for g in range(2):
            for i in range(4):
                p.I("v_dot2c_f32_bf16", sm[g], xr(b, g)[i], ones)
                p.I("v_dot2c_f32_bf16", sq[g], xr(b, g)[i], xr(b, g)[i])
    for mod in ("quad_perm:[1,0,3,2]", "quad_perm:[2,3,0,1]", "row_half_mirror"):
        for r in sm + sq:
            p.I("v_add_f32_dpp", r, r, r, mods=mod + " row_mask:0xf bank_mask:0xf")
    for g in range(2):
        p.I("v_mul_f32", sm[g], f2u(1.0 / 448), sm[g])
        p.I("v_mul_f32", sq[g], f2u(1.0 / 448), sq[g])
    for g in range(2): p.I("v_fma_f32", sq[g], Neg(sm[g]), sm[g], sq[g])
    for g in range(2): p.I("v_max_f32", sq[g], 0, sq[g])
    for g in range(2): p.I("v_add_f32", sq[g], f2u(1e-5), sq[g])
    for g in range(2): p.I("v_rsq_f32", vR[g], sq[g])
    for g in range(2): p.I("v_mul_f32_e64", vNM[g], Neg(sm[g]), vR[g])
    st.stamp(p)
    p.I("s_lshr_b32", a0, sStr, 1)
    if cfg["xbar"] == 2:
        p.I("s_cmp_ge_u32", sW, 4); p.raw("    s_cbranch_scc1 K1_NB1"); p.I("s_barrier"); p.label("K1_NB1")
    p.I("s_cmp_ge_u32", sW, 4)
    p.raw("    s_cbranch_scc1 K1_NODMA")
    p.I("s_mov_b32", a1, sOX)
    for c in range(2):
        for hh in range(2):
            if hh: p.I("s_add_u32", a2, a1, a0)
            so = a2 if hh else a1
            p.I("s_add_u32", M0, sLdsW, c * XYS + hh * 4096)
            p.I("buffer_load_dwordx4", vDX, SXs, so, mods="offen lds", tag=f"dma{c}")
            p.I("s_add_u32", M0, sLdsW, c * XYS + PAGE + hh * 4096)
            p.I("buffer_load_dwordx4", vDY, SYs, so, mods="offen lds", tag=f"dma{c}")
        if c == 0:
            p.I("s_add_u32", a1, a1, sStr)
            p.I("s_add_u32", a2, sO0, 32 * 2688)
            p.I("s_add_u32", M0, sLdsW, KVB)
            p.I("buffer_load_dwordx4", vD0, SQKV, sO0, mods="offen lds", tag="kv0")
            p.I("s_add_u32", M0, sLdsW, KVB + 4096)
            p.I("buffer_load_dwordx4", vD0, SQKV, a2, mods="offen lds", tag="kv0")
    p.label("K1_NODMA")
    p.I("s_add_u32", sOX, sOX, sStr); p.I("s_add_u32", sOX, sOX, sStr)
    p.I("s_cmp_eq_u32", sOX, sEnd); p.I("s_cselect_b32", sOX, 0, sOX)
    p.I("s_add_u32", sO0, sO0, 64 * 2688); p.I("s_cmp_eq_u32", sO0, 448 * 2688); p.I("s_cselect_b32", sO0, 0, sO0)
    ln_unit(p, 0, 0); a_write(p, 0, 0); ln_unit(p, 0, 1); a_write(p, 0, 1)
    for c in range(2, cfg["npre"]): dma_xy(p, c)
    dma_kv(p, 1)
    p.I("s_cmp_ge_u32", sJ, 14)
    p.raw("    s_cbranch_scc1 K1_Q")
    p.I("s_cmp_ge_u32", S(3), 4)
    p.raw("    s_cbranch_scc1 K1_F1")

def gen_k1(cfg):
    name = NAME + "_kernel"
    txt = kernel_header(name)
    first = True
    for typ in ("F", "Q"):
        for grp in (0, 1):
            p = Prog(); st = Stamps(cfg["stamps"], 0)
            if cfg["stamps"] == 2:
                o2 = st.stamp
                st.stamp = lambda pp, real=False, o2=o2: o2(pp, True)
            if cfg.get("its") is not None:
                orig = st.stamp
                def stamp2(pp, real=False, force=False, orig=orig):
                    if real or force: orig(pp, real)
                st.stamp = stamp2
            k1_common(p, cfg, st)
            mark = p.raw("; ---- role code ----")
            if typ == "Q" and grp == 0:
                p.label("K1_Q"); p.I("s_cmp_ge_u32", S(3), 4); p.raw("    s_cbranch_scc1 K1_Q1")
            elif grp == 1: p.label(f"K1_{typ}1")
            k1_role(p, typ, grp, cfg, st)
            L = finalize(p)
            k = L.index(mark)
            txt += render(L if first else L[k:])
            first = False
    txt += "K1_END:\n    s_endpgm\n"
    return txt, kernel_desc(name, 256)

def k1_role(p, typ, grp, cfg, st):
    t1, t2, t3, t4, t5, t6, t7 = [V(i) for i in range(1, 8)]
    stp = " sc1" if cfg["sc1"] else ""
    NT = 3
    ch, r4, cq = t3, t4, t5
    p.I("v_bfe_u32", ch, lane, 4, 1); p.I("v_bfe_u32", r4, lane, 2, 2); p.I("v_and_b32", cq, 3, lane)
    p.I("v_lshl_add_u32", t6, u2, 3, r4)
    p.I("v_lshlrev_b32", cq, 3, cq)
    p.I("v_lshl_add_u32", t1, ch, 5, cq)
    p.I("v_lshlrev_b32", t7, 6, r4)
    p.I("s_lshr_b32", sT0, sW, 1); p.I("s_and_b32", sT0, sT0, 1)
    if grp == 0: p.I("s_mul_i32", sT1, sT0, 3)
    else: p.I("s_add_u32", sT1, sT0, 6)
    nxy = 3 if grp == 0 else 1
    for t in range(nxy):
        if t: p.I("s_add_u32", sT1, sT1, 1)
        if typ == "F":
            p.I("s_lshl_b32", sT2, sT1, 5)
            p.I("v_xor_b32", t2, sT2, t1); p.I("v_xor_b32", t2, t2, t7)
            p.I("v_lshl_add_u32", t2, ch, 13, t2)
        else:
            p.I("s_and_b32", sT2, sT1, 3); p.I("s_mul_i32", sT2, sT2, 56)
            p.I("s_lshr_b32", sT3, sT1, 2); p.I("s_lshl_b32", sT3, sT3, 13)
            p.I("v_add_u32", t2, sT2, t1); p.I("v_xor_b32", t2, t2, t7)
            p.I("v_add_u32", t2, sT3, t2)
        p.I("v_lshl_add_u32", vBt[t][0], t6, 8, t2)
        p.I("v_add_u32", vBt[t][1], 3 * XYS, vBt[t][0])
    if grp == 1:
        p.I("v_bfe_u32", t7, lane, 3, 1); p.I("v_lshlrev_b32", t7, 6, t7)
        p.I("v_xor_b32", t2, t1, t7)
        p.I("v_lshl_add_u32", t2, t6, 7, t2)
        p.I("v_add_u32", vBt[1][0], KVB, t2)
        p.I("v_xor_b32", vBt[2][0], 64, vBt[1][0])
    p.I("s_and_b32", sT2, sW, 1); p.I("s_lshl_b32", sT2, sT2, 1); p.I("s_lshl_b32", sT3, sR, 2); p.I("s_add_u32", sT2, sT2, sT3)
    if nxy > 1: p.I("s_sub_u32", sT1, sT1, nxy - 1)
    if typ == "F":
        p.I("s_mul_i32", sOut, sT2, NKS * 1024)
        p.I("s_lshl_b32", sT3, sJ, 3); p.I("s_add_u32", sT3, sT3, sT1); p.I("s_lshl_b32", sT3, sT3, 10)
        p.I("s_add_u32", sOut, sOut, sT3)
        RTS, TS = NKS * 1024, 1024
    else:
        p.I("s_lshl_b32", sOut, sT2, 15)
        p.I("s_sub_u32", sT3, sJ, 14); p.I("s_lshl_b32", sT3, sT3, 3); p.I("s_add_u32", sT3, sT3, sT1); p.I("s_lshl_b32", sT3, sT3, 11)
        p.I("s_add_u32", sOut, sOut, sT3); p.I("s_add_u32", sOut, sOut, QF_OFF)
        RTS, TS = 1 << 15, 2048
    if grp == 1:
        p.I("s_mul_i32", sT3, sT0, 8 * 528)
        p.I("v_add_u32", u3, 8 * 528, vAr); p.I("v_subrev_u32", u3, sT3, u3)
        p.I("v_add_u32", vAr, sT3, vAr)
        p.I("v_mov_b32", V(243), u3)
        p.I("s_mul_i32", sT3, sT0, RTS)
        p.I("s_add_u32", a0, sOut, RTS); p.I("s_sub_u32", a0, a0, sT3)
        p.I("s_add_u32", sOut, sOut, sT3)
        p.I("s_mov_b32", S(59), a0)
    vAr2 = V(243); sOut2 = S(59)
    ln_unit(p, 1, 0)

    def b_reads(c, ks, t):
        dst = BF[ks][t]
        if grp == 0 or t == 0:
            slot = c % NXY; var = slot // 3
            off = (slot % 3) * XYS + 16 * ks * 256
            return [Inst("ds_read_b64_tr_b16", (dst.sub(2 * pp, 2), vBt[t][var]), f"offset:{off + pp * 1024}") for pp in range(2)]
        off = ((c >> 1) % NKV) * PAGE + (32 * (c & 1) + 16 * ks) * 128
        return [Inst("ds_read_b64_tr_b16", (dst.sub(2 * pp, 2), vBt[t][0]), f"offset:{off + pp * 512}") for pp in range(2)]
    def a_read(c, ks, i):
        b = c >> 1; k4 = 2 * (c & 1) + ks
        if grp == 0: return Inst("ds_read_b128", (AFr[ks][i], vAr), f"offset:{(b % 2) * ABLK + (i * 4 + k4) * 2 * 528}")
        return Inst("ds_read_b128", (AFr[ks][i], vAr if i == 0 else vAr2), f"offset:{(b % 2) * ABLK + k4 * 2 * 528}")
    def reads(c, ks):
        return [a_read(c, ks, 0)] + b_reads(c, ks, 0) + [a_read(c, ks, 1)] + b_reads(c, ks, 1) + b_reads(c, ks, 2)
    def mfmas(c, ks):
        f = (c == 0 and ks == 0)
        M = lambda d, a, b: Inst(MF, (d, a, b, 0 if f else d))
        if grp == 0: return [M(ACC[2 * t + i], BF[ks][t], AFr[ks][i]) for t in range(3) for i in range(2)]
        return [M(ACC[0], BF[ks][0], AFr[ks][0]), M(ACC[1], BF[ks][0], AFr[ks][1]),
                M(ACC[2], BF[ks][1], AFr[ks][0]), M(ACC[3], AFr[ks][0], BF[ks][2])]

    seg = {n: Prog() for n in range(15)}
    W2T = XR.sub(0, 8); WT = XR.sub(8, 16)
    q = seg[11]
    srd(q, SD.n, 22, 256)
    q.I("v_lshlrev_b32", vL0, 2, lane)
    q.I("buffer_load_dword", vTk, vL0, SD, 0, mods="offen sc1")
    if cfg["wdpf"]:
        q = seg[cfg["wdpf"]]
        if cfg["wdmode"] == 0:
            q.I("s_lshr_b32", sT0, S(2), 3); q.I("s_lshl_b32", sT0, sT0, 3); q.I("s_add_u32", sT0, sT0, sW); q.I("s_lshl_b32", sT0, sT0, 13)
        else:
            q.I("s_lshl_b32", sT0, S(2), 3); q.I("s_add_u32", sT0, sT0, sW); q.I("s_lshl_b32", sT0, sT0, 10)
        q.I("s_sub_u32", sT1, sT0, 1792 * 896)
        q.I("s_mov_b32", sT2, 448 * 896)
        q.I("s_cmp_lt_u32", sT0, 1792 * 896)
        q.I("s_cselect_b32", SX[0], S(18), S(10)); q.I("s_cselect_b32", SX[1], S(19), S(11))
        q.I("s_cselect_b32", SX[2], 1792 * 896, sT2)
        q.I("s_cselect_b32", sT0, sT0, sT1)
        q.I("s_and_b32", SX[1], SX[1], 0xFFFF)
        if cfg["wdmode"] == 0:
            q.I("v_lshlrev_b32", u3, 7, lane)
            q.I("buffer_load_dword", XR[0], u3, SX, sT0, mods="offen")
        else:
            q.I("buffer_load_dwordx4", XR.sub(0, 4), vSt, SX, sT0, mods="offen")
    if cfg["l2pf"]:
        f0 = cfg["l2pf"]
        q = seg[f0]
        sPf = S(71)
        q.I("s_lshr_b32", sT0, S(2), 3); q.I("s_lshl_b32", sT0, sT0, 3); q.I("s_add_u32", sT0, sT0, sW); q.I("s_lshl_b32", sT0, sT0, 13)
        q.I("s_sub_u32", sT1, sT0, 1792 * 896)
        q.I("s_mov_b32", sT2, 448 * 896)
        q.I("s_cmp_lt_u32", sT0, 1792 * 896)
        q.I("s_cselect_b32", SX[0], S(18), S(10)); q.I("s_cselect_b32", SX[1], S(19), S(11))
        q.I("s_cselect_b32", SX[2], 1792 * 896, sT2)
        q.I("s_cselect_b32", sPf, sT0, sT1)
        q.I("s_and_b32", SX[1], SX[1], 0xFFFF)
        q.I("v_lshlrev_b32", V(252), 7, lane); q.I("v_mov_b32", V(253), BIG)
        q.I("v_cmp_gt_u32", VCC, 64 // cfg["l2n"], lane); q.I("v_cndmask_b32", V(252), V(253), V(252), VCC)
        for i in range(cfg["l2n"]):
            q = seg[f0 + i * cfg["l2s"]]
            q.I("buffer_load_dword", V(254), V(252), SX, sPf, mods="offen")
            q.I("s_add_u32", sPf, sPf, 8192 // cfg["l2n"])
    IDN = XR.sub(24, 8)
    if grp == 1:
        q = seg[0]
        srd(q, SD.n, 22, 256)
        q.I("v_mov_b32", u5, BIG)
        q.I("v_cmp_eq_u32", VCC, 0, lane)
        q.I("v_cndmask_b32", vL0, u5, 0, VCC)
        q.I("s_lshl_b32", sT0, sJ, 2); q.I("s_add_u32", sT0, sT0, sW); q.I("s_sub_u32", sT0, sT0, 4)
        q.I("s_lshl_b32", sT1, sT0, 11); q.I("s_add_u32", sT1, sT1, KVA_OFF)
        q.I("s_lshl_b32", sT2, sT0, 8); q.I("s_add_u32", sT2, sT2, FLG_OFF)
        q.I("s_lshl_b32", sFl, sT0, 2)
        q.I("s_lshl_b32", sZ, sJ, 13); q.I("s_add_u32", sZ, sZ, KVA_OFF)
        q.I("s_cmp_eq_u32", sR, sJ)
        q.I("s_cselect_b32", sT2, sT2, BIG)
        q.I("s_cselect_b32", sT1, sT1, BIG)
        q.I("s_cselect_b32", sFl, sFl, BIG)
        ZR = V(128, 4)
        for i in range(4): q.I("v_mov_b32", ZR[i], 0)
        for s in range(2): q.I("buffer_store_dwordx4", ZR, vSt, SWS, sT1, mods=f"offen offset:{s*1024} sc1", tag="zs")
        q.I("v_cmp_gt_u32", VCC, 16, lane)
        q.I("v_cndmask_b32", u3, u5, vSt, VCC)
        q.I("buffer_store_dwordx4", ZR, u3, SWS, sT2, mods="offen sc1", tag="zs")
        q = seg[5]
        q.I("v_mov_b32", vTk, 1)
        q.waittag("zs")
        q.I("buffer_store_dword", vTk, vL0, SD, sFl, mods="offen sc1")
        q = seg[10]
        srd(q, SPHI.n, 8, 16 * 1568)
        q.I("s_mov_b32", sL, f2u(LOG2E))
        wphi_gather(q, WT, SPHI, sJ, sT0, lane, u1, u2, u3, u4, u5)
        q.I("v_cmp_eq_u32", VCC, 0, u2)
        q.I("v_cndmask_b32", vMask, 0, 1.0, VCC)
        q = seg[12]
        q.I("v_cmp_eq_u32", sM28, 28, u1)
        q.I("v_lshlrev_b32", u3, 2, u2); q.I("v_sub_u32", u3, u1, u3)
        q.I("v_and_b32", u4, 1, u3); q.I("v_lshlrev_b32", u4, 4, u4); q.I("v_mov_b32", u5, 0x3F80); q.I("v_lshlrev_b32", u4, u4, u5)
        q.I("v_lshrrev_b32", u3, 1, u3)
        for s in range(2):
            for i in range(4):
                f0 = 16 * s + 8 * ((2 * i) >> 2) + ((2 * i) & 3)
                q.I("v_cmp_eq_u32", VCC, f0 // 2, u3)
                q.I("v_cndmask_b32", IDN[4 * s + i], 0, u4, VCC)
        q = seg[13]
        for i in range(8): q.I("v_lshl_or_b32", WPHI[i], WT[2 * i + 1], 16, WT[2 * i])
    q = seg[12]
    q.I("v_mov_b32", LT[8], 0); q.I("v_mov_b32", LT[9], KVL)
    q.I("ds_write_b32", LT[9], LT[8], tag="zl")

    p.waittag("dma0", "dma1", "kv0", "aw0")
    p.I("s_barrier")
    st.stamp(p)
    p.L.extend(reads(0, 0))
    nxt = cfg["npre"]
    for c in range(14):
        fill = Prog()
        ln = Prog()
        if c % 2 == 0:
            b = c // 2 + 1
            if b < 7: a_write(ln, b, 0); ln_unit(ln, b, 1); a_write(ln, b, 1)
        else:
            b = (c + 3) // 2
            if b < 7: ln_unit(ln, b, 0)
        dm = Prog()
        cnt = 0
        while nxt < 14 and nxt <= c + cfg["la"] and cnt < 2:
            dma_xy(dm, nxt); nxt += 1; cnt += 1
        kvp = cfg["kvodd"]
        if c % 2 == kvp and c // 2 + 2 < 7: dma_kv(dm, c // 2 + 2)
        if cfg["spread"]:
            groups = []; cur = []
            for i in dm.L:
                cur.append(i)
                if i.kind == "dma": groups.append(cur); cur = []
            if groups: groups[-1] += cur
            n = len(groups)
            step = max(1, len(ln.L) // max(1, n))
            k = 0
            for gi in range(n):
                fill.extend(groups[gi]); fill.extend(ln.L[k:k + step]); k += step
            fill.extend(ln.L[k:])
        else:
            fill.extend(ln); fill.extend(dm)
        if cfg.get("no_dma"): fill.L = [i for i in fill.L if i.kind != "dma"]
        if cfg.get("no_lnw"): fill.L = [i for i in fill.L if i.kind != "lwrite"]
        if cfg.get("no_lnv"): fill.L = [i for i in fill.L if i.kind != "valu"]
        fill.extend(seg[c])
        F = fill.L
        nm = 12 if grp == 0 else 8
        per = len(F) / max(1.0, nm * cfg["front"] / 100.0)
        acc = 0.0; fi = 0
        if cfg["pp"]:
            per = cfg["ppin"] / 10.0
            if grp == 1:
                nin = min(len(F), int(per * nm))
                p.L.extend(F[:len(F) - nin]); fi = len(F) - nin
        if cfg["prio"] and cfg["pp"]: p.I("s_setprio", 1)
        for ks in range(2):
            nc, nks = (c, 1) if ks == 0 else (c + 1, 0)
            rd = reads(nc, nks) if nc < 14 else []
            ms = mfmas(c, ks)
            rp = 2 if grp == 0 else 3
            for m in ms:
                p.L.append(m)
                p.L.extend(rd[:rp]); rd = rd[rp:]
                acc += per
                while acc >= 1 and fi < len(F):
                    p.L.append(F[fi]); fi += 1; acc -= 1
        if cfg["prio"] and cfg["pp"]: p.I("s_setprio", 0)
        p.L.extend(F[fi:])
        if c + 1 < 14:
            if cfg.get("its") is not None and cfg["its"] <= c < cfg["its"] + 4: st.stamp(p, force=True)
            p.waittag(f"dma{c+2}", f"kv{(c+2)//2}", f"aw{(c+2)//2}", "zl")
            p.I("s_barrier")
            if cfg.get("its") is not None and cfg["its"] <= c < cfg["its"] + 4: st.stamp(p, force=True)
    st.stamp(p)
    uid = f"{typ}{grp}"
    def spin(name, vd, va, srdreg, soff, mask=None, sleep=4, first_loaded=False):
        cmp = f"    v_cmp_ne_u32 vcc, 1, {vd}\n" + (f"    s_nop 4\n    s_and_b64 vcc, vcc, {mask}\n" if mask is not None else "    s_nop 4\n")
        L = f"SP_{name}_{uid}"
        t = ""
        if first_loaded:
            p.I("v_mov_b32", vd, vd)
            t += cmp + f"    s_cbranch_vccz {L}_OK\n"
        t += (f"    s_mov_b32 s61, 0\n{L}:\n    buffer_load_dword {vd}, {va}, {srdreg}, {soff} offen sc1\n    s_add_u32 s61, s61, 1\n    s_cmp_gt_u32 s61, 0x20000\n"
              f"    s_cbranch_scc1 {L}_OK\n    s_waitcnt vmcnt(0)\n" + cmp + f"    s_cbranch_vccz {L}_OK\n    s_sleep {sleep}\n    s_branch {L}\n{L}_OK:")
        p.raw(t)
    p.I("s_barrier")
    spin("Z", vTk, vL0, SD, 0, first_loaded=True)
    OUT = V(160, 40); TMP = XR.sub(32, 24)
    cnt = [0]
    def tile_epi(q, acc, so, off):
        k = cnt[0]; cnt[0] += 1
        if typ == "F":
            o = OUT.sub(4 * (k % 6), 4)
            if cfg["pk"]: gelu_pk(q, acc, TMP.sub(8 * (k % 2), 8), o, TMP.sub(16, 2))
            else: gelu_tile(q, acc, TMP.sub(8 * (k % 2), 8), o, vC2)
            q.I("buffer_store_dwordx4", o, vSt, SWS, so, mods=f"offen offset:{off} sc1", tag="hst")
        else:
            o = OUT.sub(8 * (k % 4), 8)
            for i in range(8): q.I("v_cvt_pk_bf16_f32", o[i], acc[2 * i], acc[2 * i + 1])
            for s in range(2): q.I("buffer_store_dwordx4", o.sub(4 * s, 4), vSt, SWS, so, mods=f"offen offset:{off + s*1024} sc1", tag="hst")
    p.I("v_mov_b32", TMP[16], f2u(GC2)); p.I("v_mov_b32", TMP[17], f2u(GC1))
    vOne, vLn0 = V(241), V(242)
    p.I("v_mov_b32", vOne, 1); p.I("v_mov_b32", u5, BIG)
    p.I("v_cmp_eq_u32", VCC, 0, lane)
    p.I("v_cndmask_b32", vLn0, u5, 0, VCC)
    def set_hflag():
        p.I("s_lshl_b32", sT0, sR, 1); p.I("s_and_b32", sT1, sW, 1); p.I("s_add_u32", sT0, sT0, sT1); p.I("s_lshl_b32", sT0, sT0, 8)
        p.I("s_lshl_b32", sT1, sJ, 2); p.I("s_lshr_b32", sT2, sW, 1); p.I("s_add_u32", sT1, sT1, sT2); p.I("s_lshl_b32", sT1, sT1, 2)
        p.I("s_add_u32", sT0, sT0, sT1); p.I("s_add_u32", sT0, sT0, HF_OFF)
        p.waittag("hst")
        p.I("buffer_store_dword", vOne, vLn0, SWS, sT0, mods="offen sc1")
    if grp == 0:
        SWD, SWO, SO = SQKV, SXs, SYs
        sRB, sCB, sBd, sBo, sRing, sTm = S(64), S(65), S(66), S(67), S(68), S(69)
        vE0, vE1, vT0, vT1 = V(244), V(245), V(246), V(247)
        srd(p, SWD.n, 18, 1792 * 896); srd(p, SWO.n, 10, 448 * 896); srd(p, SO.n, 20, 2048 * 896)
        p.I("s_sub_u32", sT2, S(2), 32)
        p.I("s_and_b32", sT0, sT2, 7); p.I("s_lshr_b32", sT1, sT2, 3)
        p.I("s_mul_i32", sT2, sT1, 37); p.I("s_lshr_b32", sT2, sT2, 8)
        p.I("s_lshl_b32", sRB, sT0, 2); p.I("s_add_u32", sRB, sRB, sT2)
        p.I("s_mul_i32", sT2, sT2, 7); p.I("s_sub_u32", sCB, sT1, sT2)
        p.I("s_lshl_b32", sT0, sCB, 7)
        p.I("s_mul_i32", sBd, sW, 28 * 16 * 896); p.I("s_add_u32", sBd, sBd, sT0)
        p.I("s_mul_i32", sBo, sW, 4 * 28 * 896); p.I("s_add_u32", sBo, sBo, sT0)
        p.I("s_cmp_lt_u32", S(2), 32); p.I("s_cselect_b32", sBd, BIG, sBd)
        p.I("s_mul_i32", sRing, sW, BRING)
        p.I("v_lshrrev_b32", t1, 3, lane); p.I("v_and_b32", t2, 7, lane)
        p.I("v_bfe_u32", t3, lane, 4, 1); p.I("v_lshlrev_b32", t3, 2, t3); p.I("v_xor_b32", t2, t2, t3)
        p.I("v_mul_u32_u24", vE0, 896, t1); p.I("v_lshl_add_u32", vE0, t2, 4, vE0)
        p.I("v_cmp_gt_u32", VCC, 32, lane)
        p.I("v_cndmask_b32", vE1, u5, vE0, VCC)
        p.I("v_bfe_u32", t1, lane, 2, 2); p.I("v_lshl_add_u32", t1, u2, 2, t1)
        p.I("v_bfe_u32", t2, lane, 4, 1); p.I("v_and_b32", t3, 3, lane); p.I("v_lshlrev_b32", t3, 3, t3); p.I("v_lshl_add_u32", t2, t2, 5, t3)
        p.I("v_bfe_u32", t3, lane, 3, 1); p.I("v_lshlrev_b32", t3, 6, t3); p.I("v_xor_b32", t2, t2, t3)
        p.I("v_lshl_add_u32", vT0, t1, 7, t2); p.I("v_add_u32", vT0, sRing, vT0)
        p.I("v_xor_b32", vT1, 64, vT0)
        def bdma(q, k):
            for i in range(2):
                if k < 28:
                    q.I("s_add_u32", sTm, sBd, (16 * k + 8 * i) * 896); sr, va = SWD, vE0
                else:
                    kk = k - 28
                    q.I("s_add_u32", sTm, sBo, ((kk >> 1) * 28 + 16 * (kk & 1) + 8 * i) * 896); sr = SWO
                    va = vE1 if (kk & 1 and i == 1) else vE0
                q.I("s_add_u32", M0, sRing, (k % NB) * 2048 + i * 1024)
                q.I("buffer_load_dwordx4", va, sr, sTm, mods="offen lds", tag=f"b{k}")
        if cfg["btouch"]:
            p.I("s_and_b32", sT0, sRB, 3)
            p.I("s_mul_i32", sT1, sT0, 112 * 896); p.I("s_add_u32", sT1, sT1, sBd)
            p.I("v_mul_u32_u24", t1, 896, lane)
            p.I("buffer_load_dword", V(220), t1, SWD, sT1, mods="offen")
            p.I("v_add_u32", t2, 64 * 896, t1)
            p.I("v_cmp_gt_u32", VCC, 48, lane); p.I("v_cndmask_b32", t2, u5, t2, VCC)
            p.I("buffer_load_dword", V(221), t2, SWD, sT1, mods="offen")
            p.I("s_mul_i32", sT1, sT0, 28 * 896); p.I("s_add_u32", sT1, sT1, sBo)
            p.I("v_cmp_gt_u32", VCC, 28, lane); p.I("v_cndmask_b32", t2, u5, t1, VCC)
            p.I("buffer_load_dword", V(222), t2, SWO, sT1, mods="offen")
        E = Prog(); Dm = Prog()
        p.I("s_add_u32", sT3, sOut, RTS)
        p.I("s_add_u32", a1, sOut, 2 * TS); p.I("s_add_u32", a2, sT3, 2 * TS)
        for t in range(3):
            for i in range(2):
                if t < 2: tile_epi(E, ACC[2 * t + i], sOut if i == 0 else sT3, t * TS)
                else: tile_epi(E, ACC[2 * t + i], a1 if i == 0 else a2, 0)
        NE = cfg["bearly"]
        for k in range(NE): bdma(Dm, k)
        grp3 = [Dm.L[i:i + 3] for i in range(0, len(Dm.L), 3)]
        step = max(1, int(len(E.L) * 0.5) // max(1, len(grp3)))
        k = 0
        for g3 in grp3:
            p.L.extend(g3); p.L.extend(E.L[k:k + step]); k += step
        p.L.extend(E.L[k:])
        set_hflag()
        st.stamp(p)
        p.I("s_cmp_lt_u32", S(2), 32)
        p.raw(f"    s_cbranch_scc1 P2_END_{uid}")
        BP = cfg["bpre"]
        for k in range(NE, BP): bdma(p, k)
        nb = [BP]
        DA = cfg["da"]
        AC2 = [[V(64 + 32 * r + 16 * c, 16) for c in range(2)] for r in range(2)]
        NR = cfg["nreg"]
        assert DA <= 4
        BB = [V(40 + 8 * i, 8) for i in range(2)]
        AB = [V(8 + 8 * d, 8) for d in range(DA)]
        RB = [V(128 + 8 * k, 8) for k in range(12)]
        def bfrag(k): return RB[k] if k < NR else BB[k & 1]
        VO = V(56, 7); XV = V(248, 8); vP, vZ, vG, vLr, vLw = V(228), V(229), V(230), V(231), V(232)
        sA = [S(70), S(71)]; sAo = [S(73), S(74)]; sFlag = S(75); sM56 = S(76, 2) if False else S(56, 2)
        p.I("s_mul_i32", sT0, sW, 28 * 1024)
        p.I("s_mul_i32", sT1, sRB, 2 * NKS * 1024); p.I("s_add_u32", sA[0], sT1, sT0); p.I("s_add_u32", sA[1], sA[0], NKS * 1024)
        p.I("s_lshl_b32", sT0, sW, 13); p.I("s_add_u32", sT0, sT0, 112 * 1024)
        p.I("s_add_u32", sAo[0], sT1, sT0); p.I("s_add_u32", sAo[1], sAo[0], NKS * 1024)
        for m in range(7): p.I("v_add_u32", VO[m], 4096 * m, vSt)
        srd(p, SX.n, 4, 2048 * 896)
        p.I("s_lshl_b32", sT0, sW, 6); p.I("v_add_u32", t1, sT0, lane)
        p.I("v_lshrrev_b32", t2, 3, t1); p.I("v_and_b32", t3, 7, t1)
        p.I("s_lshl_b32", sT0, sRB, 6)
        p.I("v_add_u32", vG, sT0, t2); p.I("v_mul_u32_u24", vG, 896, vG); p.I("v_lshl_add_u32", vG, t3, 4, vG)
        p.I("s_lshl_b32", sT0, sCB, 7); p.I("v_add_u32", vG, sT0, vG)
        p.I("v_mul_u32_u24", vLr, K2_ROW, t2); p.I("v_lshl_add_u32", vLr, t3, 5, vLr)
        p.I("v_mul_u32_u24", vLw, K2_ROW, u1); p.I("v_lshl_add_u32", vLw, u2, 4, vLw); p.I("v_add_u32", vLw, sRing, vLw)
        p.I("v_lshlrev_b32", vZ, 2, lane)
        if cfg["hmask"]:
            p.I("s_mul_i32", sT0, sW, 7); p.I("s_lshr_b32", sT0, sT0, 1); p.I("s_lshl_b32", sT0, sT0, 2)
            p.I("s_mov_b32", sM56[0], 0xFFFF); p.I("s_mov_b32", sM56[1], 0)
            p.I("s_lshl_b64", sM56, sM56, sT0)
        else:
            p.I("s_mov_b32", sM56[0], -1); p.I("s_mov_b32", sM56[1], 0x00FFFFFF)
        p.I("s_lshl_b32", sFlag, sRB, 8); p.I("s_add_u32", sFlag, sFlag, HF_OFF)
        p.I("s_mov_b32", a0, 32 * 896)
        p.I("buffer_load_dwordx4", XV.sub(0, 4), vG, SX, 0, mods="offen")
        p.I("buffer_load_dwordx4", XV.sub(4, 4), vG, SX, a0, mods="offen")
        def bread(k):
            p.waittag(f"b{k}")
            for c in range(2):
                for pp in range(2):
                    p.I("ds_read_b64_tr_b16", bfrag(k).sub(4 * c + 2 * pp, 2), vT1 if c else vT0, mods=f"offset:{(k % NB) * 2048 + pp * 1024}", tag=f"r{k}")
        for k in range(NR):
            bread(k)
            if k >= 1 and nb[0] < cfg["bpre2"] and nb[0] - NB <= k - 1:
                p.waittag(f"r{k-1}"); bdma(p, nb[0]); nb[0] += 1
        while nb[0] < cfg["bpre2"] and nb[0] - NB <= NR - 1:
            p.waittag(f"r{NR-1}"); bdma(p, nb[0]); nb[0] += 1
        spin("H", vP, vZ, SWS, sFlag, mask=sM56, sleep=cfg["slh"])
        if cfg["inv"]: p.I("buffer_inv", mods="sc1")
        st.stamp(p)
        p.I("s_lshl_b32", sFlag, sRB, 7); p.I("s_add_u32", sFlag, sFlag, OF_OFF)
        p.I("v_lshlrev_b32", vZ, 2, u1)
        def abuf(k): return AB[k % DA] if k < 28 else RB[k - 28]
        def aload(k):
            kk = k if k < 28 else k - 28
            for r in range(2):
                p.I("buffer_load_dwordx4", abuf(k).sub(4 * r, 4), VO[kk // 4], SWS, (sA if k < 28 else sAo)[r], mods=f"offen offset:{(kk % 4) * 1024} sc1")
        if cfg["atouch"]:
            p.I("v_lshrrev_b32", t1, 4, lane); p.I("v_lshlrev_b32", t1, 10, t1)
            p.I("v_bfe_u32", t2, lane, 3, 1); p.I("v_mul_u32_u24", t2, NKS * 1024, t2); p.I("v_add_u32", t1, t1, t2)
            p.I("v_and_b32", t2, 7, lane); p.I("v_lshl_add_u32", t1, t2, 7, t1)
            p.I("s_lshl_b32", sT0, sCB, 12); p.I("s_add_u32", sT0, sT0, sA[0])
        for k in range(DA):
            aload(k)
            if cfg["atouch"] and k == 0: p.I("buffer_load_dword", V(223), t1, SWS, sT0, mods="offen sc1")
        if NR == 0: bread(0)
        KO = cfg["ko"]
        kpoll = KO - cfg["pollahead"]
        for k in range(36):
            if NR <= k + 1 < 36: bread(k + 1)
            for r in range(2):
                for c in range(2):
                    p.I(MF, AC2[r][c], bfrag(k).sub(4 * c, 4), abuf(k).sub(4 * r, 4), 0 if k == 0 else AC2[r][c])
            if k == kpoll: p.I("buffer_load_dword", vP, vZ, SWS, sFlag, mods="offen sc1")
            if k + DA < 28: aload(k + DA)
            if k == KO:
                if cfg["stamps"] == 2: st.stamp(p)
                spin("O", vP, vZ, SWS, sFlag, first_loaded=True, sleep=8)
                if cfg["stamps"] == 2: st.stamp(p)
                for k2 in range(28, 36): aload(k2)
            c2 = 0
            while nb[0] < 36 and nb[0] <= k + cfg["bla"] and nb[0] - NB <= max(k, NR - 1) and c2 < 2:
                if not cfg.get("hackB"): bdma(p, nb[0])
                nb[0] += 1; c2 += 1
        for r in range(2):
            for c in range(2):
                for g in range(4):
                    p.I("ds_write_b128", vLw, AC2[r][c].sub(4 * g, 4), mods=f"offset:{r*32*K2_ROW + (c*32+8*g)*4}", tag="pw")
        p.waittag("pw")
        p.I("s_barrier")
        RD = V(64, 64)
        p.I("v_add_u32", t1, 2 * BRING, vLr)
        for pp in range(2):
            for w in range(4):
                for hh in range(2):
                    p.I("ds_read_b128", RD.sub(32 * pp + 8 * w + 4 * hh, 4), vLr if w < 2 else t1, mods=f"offset:{(w & 1) * BRING + pp*32*K2_ROW + hh*16}")
        for pp in range(2):
            R = RD.sub(32 * pp, 32)
            for i in range(8): p.I("v_add_f32", R[i], R[i], R[8 + i])
            for i in range(8): p.I("v_add_f32", R[16 + i], R[16 + i], R[24 + i])
            Xr = XV.sub(4 * pp, 4); T = V(8, 8)
            for i in range(4):
                p.I("v_lshlrev_b32", T[2 * i], 16, Xr[i]); p.I("v_and_b32", T[2 * i + 1], 0xFFFF0000, Xr[i])
            for i in range(8): p.I("v_add_f32", R[i], R[i], R[16 + i])
            for i in range(8): p.I("v_add_f32", R[i], R[i], T[i])
            O = V(16 + 4 * pp, 4)
            for i in range(4): p.I("v_cvt_pk_bf16_f32", O[i], R[2 * i], R[2 * i + 1])
            p.I("buffer_store_dwordx4", O, vG, SO, 0 if pp == 0 else a0, mods="offen")
        p.label(f"P2_END_{uid}")
    else:
        if cfg["sprio"]: p.I("s_setprio", cfg["sprio"])
        tile_epi(p, ACC[0], sOut, 0)
        tile_epi(p, ACC[1], sOut2, 0)
        if cfg["sprio"] and cfg["sdrop"]: p.I("s_setprio", 0)
        K, Vv, PACC = ACC[2], ACC[3], ACC[4]
        qb = LT.sub(0, 8); VB = ACC[5].sub(0, 8); NEG = ACC[5].sub(8, 8); POS = LT.sub(0, 8)
        for i in range(8): p.I("v_cvt_pk_bf16_f32", qb[i], K[2 * i], K[2 * i + 1])
        p.I(MF, PACC, WPHI.sub(0, 4), qb.sub(0, 4), 0)
        p.I(MF, PACC, WPHI.sub(4, 4), qb.sub(4, 4), PACC)
        p.I("v_mov_b32", u3, 0x3F803F80)
        for r in range(8): p.I("v_cvt_pk_bf16_f32", VB[r], Vv[2 * r], Vv[2 * r + 1])
        for r in range(8): p.I("v_cndmask_b32", VB[r], VB[r], u3, sM28)
        set_hflag()
        if cfg["stamps"] == 2: st.stamp(p)
        PKS[0] = cfg["pks"]
        softmax_core(p, PACC, K, LT.sub(8, 8), POS, NEG, vMask, sL)
        PKS[0] = 0
        Tt = [K, PACC]
        for ft, src in enumerate((POS, NEG)):
            p.I(MF, Tt[ft], src.sub(0, 4), IDN.sub(0, 4), 0)
            p.I(MF, Tt[ft], src.sub(4, 4), IDN.sub(4, 4), Tt[ft])
        if cfg["sprio"] and cfg["sdrop"]: p.I("s_setprio", 3)
        p.I("v_lshlrev_b32", u4, 2, lane)
        PT = [LT.sub(0, 8), LT.sub(8, 8)]
        for ft in range(2):
            for r in range(8): p.I("v_cvt_pk_bf16_f32", PT[ft][r], Tt[ft][2 * r], Tt[ft][2 * r + 1])
        for ft in range(2):
            p.I(MF, Tt[ft], PT[ft].sub(0, 4), VB.sub(0, 4), 0)
            p.I(MF, Tt[ft], PT[ft].sub(4, 4), VB.sub(4, 4), Tt[ft])
        p.I("s_lshl_b32", sT0, sW, 13); p.I("s_add_u32", sT0, sT0, KVP_L - 4 * 8192)
        p.I("v_add_u32", u3, sT0, vSt)
        p.I("v_mov_b32", t1, KVL); p.I("v_mov_b32", t2, 1)
        for qd in range(8):
            p.I("ds_write_b128", u3, Tt[qd >> 2].sub(4 * (qd & 3), 4), mods=f"offset:{qd*1024}", tag="kva")
        p.waittag("kva")
        lbl = f"K1_{typ}_"
        p.raw("    s_mov_b64 exec, 1\n    ds_add_u32 v1, v2\n    s_mov_b64 exec, -1")
        p.raw(f"    s_mov_b32 s61, 0\n{lbl}LSPIN:\n    ds_read_b32 v3, v1\n    s_add_u32 s61, s61, 1\n    s_lshr_b32 s62, s61, 18\n    s_waitcnt lgkmcnt(0)\n    s_nop 1\n    v_readfirstlane_b32 s60, v3\n    s_nop 3\n    s_or_b32 s60, s60, s62\n    s_cmp_lt_u32 s60, 4\n    s_cbranch_scc1 {lbl}LSPIN")
        p.I("s_lshl_b32", sT0, sW, 11); p.I("s_sub_u32", sT0, sT0, 4 * 2048)
        p.I("s_add_u32", a0, sZ, sT0)
        p.I("s_add_u32", sT0, sT0, KVP_L)
        p.I("v_add_u32", t1, sT0, u4)
        R2 = V(128, 32)
        for e in range(8):
            p.I("ds_read2st64_b32", R2.sub(4 * e, 2), t1, mods=f"offset0:{e} offset1:{e+32}")
            p.I("ds_read2st64_b32", R2.sub(4 * e + 2, 2), t1, mods=f"offset0:{e+64} offset1:{e+96}")
        for e in range(8):
            p.I("v_add_f32", R2[4 * e], R2[4 * e], R2[4 * e + 1]); p.I("v_add_f32", R2[4 * e + 2], R2[4 * e + 2], R2[4 * e + 3])
            p.I("v_add_f32", R2[4 * e], R2[4 * e], R2[4 * e + 2])
            p.I("buffer_atomic_add_f32", R2[4 * e], u4, SWS, a0, mods=f"offen offset:{e * 256}", tag="kat")
        sKF, sRT, sQF = S(64), S(65), S(66)
        p.I("s_lshl_b32", sRT, sR, 2); p.I("s_add_u32", sRT, sRT, sW); p.I("s_sub_u32", sRT, sRT, 4)
        p.I("s_lshl_b32", sKF, sJ, 8); p.I("s_add_u32", sKF, sKF, KF_OFF)
        p.I("s_lshl_b32", sT0, sRT, 2); p.I("s_add_u32", sT0, sT0, sKF)
        if cfg["stamps"] == 2: st.stamp(p)
        p.waittag("kat")
        p.I("buffer_store_dword", vOne, vLn0, SWS, sT0, mods="offen sc1")
        st.stamp(p)
        p.I("s_lshr_b32", sQF, sRT, 1); p.I("s_lshl_b32", sQF, sQF, 8)
        p.I("s_lshr_b32", sT0, sJ, 3); p.I("s_lshl_b32", sT0, sT0, 4); p.I("s_add_u32", sQF, sQF, sT0); p.I("s_add_u32", sQF, sQF, HF_OFF + 224)
        p.I("v_and_b32", t1, 12, u4)
        spin("Q", t2, t1, SWS, sQF, sleep=cfg["slk"])
        QB = V(8, 8); KA = V(64, 32); P = V(96, 16); E2 = V(112, 16); TM = V(16, 8); POS, NEG = V(24, 8), V(32, 8); KFr = V(40, 16)
        p.I("s_lshl_b32", sT0, sRT, 15); p.I("s_lshl_b32", sT1, sJ, 11); p.I("s_add_u32", sT0, sT0, sT1); p.I("s_add_u32", sT0, sT0, QF_OFF)
        for s in range(2): p.I("buffer_load_dwordx4", QB.sub(4 * s, 4), vSt, SWS, sT0, mods=f"offen offset:{s*1024} sc1")
        p.I(MF, P, WPHI.sub(0, 4), QB.sub(0, 4), 0)
        p.I(MF, P, WPHI.sub(4, 4), QB.sub(4, 4), P)
        softmax_core(p, P, E2, TM, POS, NEG, vMask, sL)
        spin("K", t2, u4, SWS, sKF, sleep=cfg["slk"])
        st.stamp(p)
        p.I("s_add_u32", sT1, sZ, 4096)
        for qd in range(8): p.I("buffer_load_dwordx4", KA.sub(4 * qd, 4), vSt, SWS, sZ if qd < 4 else sT1, mods=f"offen offset:{(qd&3)*1024} sc1")
        for ft in range(2):
            for i in range(12, 16): p.I("v_mul_f32", KA[16 * ft + i], KA[16 * ft + i], vMask)
        for i in range(16): p.I("v_cvt_pk_bf16_f32", KFr[i], KA[2 * i], KA[2 * i + 1])
        N = P
        for s in range(4):
            p.I(MF, N, KFr.sub(4 * s, 4), (POS if s < 2 else NEG).sub(4 * (s & 1), 4), 0 if s == 0 else N)
        d0, d1 = TM[0], TM[1]
        p.I("s_mul_i32", sT0, sRT, NKS * 1024); p.I("s_lshl_b32", sT2, sJ, 11); p.I("s_add_u32", sT0, sT0, sT2); p.I("s_add_u32", sT0, sT0, 112 * 1024)
        p.I("s_lshl_b32", sT1, sRT, 6); p.I("s_lshl_b32", sT2, sJ, 2); p.I("s_add_u32", sT1, sT1, sT2); p.I("s_add_u32", sT1, sT1, OF_OFF)
        p.I("v_mov_b32", d0, N[12]); p.I("v_mov_b32", d1, N[12])
        p.I("v_permlane32_swap_b32", d0, d1)
        p.I("v_add_f32", d1, f2u(1e-6), d1)
        p.I("v_rcp_f32", d1, d1)
        for i in range(16): p.I("v_mul_f32", N[i], N[i], d1)
        T = QB
        for i in range(8): p.I("v_cvt_pk_bf16_f32", T[i], N[2 * i], N[2 * i + 1])
        for s in range(2): p.I("buffer_store_dwordx4", T.sub(4 * s, 4), vSt, SWS, sT0, mods=f"offen offset:{s*1024} sc1", tag="ost")
        p.waittag("ost")
        p.I("buffer_store_dword", vOne, vLn0, SWS, sT1, mods="offen sc1")
    if cfg["stamps"] != 2: st.stamp(p)
    st.stamp(p, True)
    st.flush(p, SWS, sW, 8, t1, t3)
    if cfg.get("dbgwg") is not None and grp == 0:
        p.I("s_lshl_b32", S(100), S(2), 3); p.I("s_add_u32", S(100), S(100), sW)
        p.I("s_cmp_eq_u32", S(100), cfg["dbgwg"] * 8)
        p.I("s_cselect_b32", S(100), 0, BIG)
        p.I("v_mov_b32", t3, 0)
        for i in range(1, st.n):
            p.I("s_sub_u32", S(101), S(80 + 2 * i), S(80))
            p.I("v_mov_b32", t1, S(101))
            p.I("buffer_store_dword", t1, t3, SD, S(100), mods=f"offen offset:{4*i}")
            p.I("s_nop", 1)
    p.I("s_endpgm")

K2_ROW = 272
def build(cfg):
    hdr = open("cdna_kernels/" + NAME + ".s.ref").read().split("\n")
    head = [l for l in hdr if l.startswith(";") and "@launch" not in l]
    head.append(f"; @launch grid=(256,1,1) block=(512,1,1) lds={K1_LDS}")
    out = "\n".join(head) + '\n.amdgcn_target "amdgcn-amd-amdhsa--gfx950"\n.text\n'
    descs = ""
    for g in (gen_k1,):
        t, d = g(cfg); out += t; descs += ".p2align 6\n" + d
    out += "CODE_END:\n    s_endpgm\n" + '.section .rodata,"a"\n' + descs
    if cfg["align"]:
        import align
        out, a, b = align.align(out, cfg["minrun"])
        print("align: promoted", a, "nops", b)
    return out

if __name__ == "__main__":
    cfg = dict(k2bar=1, k1map=0, k2depth=5, stamps=0, rot=1, pollahead=2, sc1=1, npre=3, la=5, xbar=2, w2it=10, ke=4, dmaper=4, bahead=3, front=85, cpref=1, wdpf=3, wdmode=1, btouch=0, atouch=0, l2pf=0, pk=1, pks=1, ko=23, nreg=12, bpre2=27, l2n=8, l2s=1, sdrop=1, hmask=1, bearly=8, bpre=15, bla=15, slh=4, slk=16, inv=0, da=4, sprio=1, jcont=1, xrot=1, kvodd=1, spread=1, pp=1, ppin=0, prio=0, align=1, minrun=3, attprio=1)
    for a in sys.argv[2:]:
        k, v = a.split("="); cfg[k] = int(v)
    open(sys.argv[1], "w").write(build(cfg))
```

```python
import sys, struct
from asmgen import *
from gen2 import Stamps, srd, f2u, LOG2E, GC1, GC2, gelu_tile, NAME, MF, BIG, NKS, AF_OFF, W2F_OFF, WS_BYTES, DBG_OFF
QF_OFF = 0x0C00000
FLG_OFF = 0x1100000
KVA_OFF = 0x1000000

def code_prefetch(p, start, end, vd, va, sb, sa, sc):
    lbl = "CP_L"
    p.raw(f"    s_getpc_b64 {sb}\n{lbl}:")
    p.raw(f"    s_sub_u32 {sb[0]}, {sb[0]}, {lbl}-{start}\n    s_subb_u32 {sb[1]}, {sb[1]}, 0")
    p.I("s_lshr_b32", sa, S(2), 3); p.I("s_lshl_b32", sc, S(3), 5); p.I("s_add_u32", sa, sa, sc); p.I("s_lshl_b32", sa, sa, 10)
    p.raw(f"    s_cmp_lt_u32 {sa}, {end}-{start}-1024\n    s_cbranch_scc0 {lbl}_SKIP")
    p.I("v_lshl_add_u32", va, V(0), 4, sa)
    p.raw(f"    global_load_dwordx4 {vd}, {va}, {sb}\n{lbl}_SKIP:")

def gelu_pk(p, acc, t, out, KC):
    P = lambda r, j: r.sub(2 * j, 2)
    for j in range(4): p.I("v_pk_mul_f32", P(t, j), P(acc, j), P(acc, j))
    for j in range(4): p.I("v_pk_fma_f32", P(t, j), P(t, j), KC, KC, mods="op_sel:[0,0,1] op_sel_hi:[1,0,1]")
    for j in range(4): p.I("v_pk_mul_f32", P(t, j), P(t, j), P(acc, j))
    for j in range(4):
        p.I("v_exp_f32", t[2 * j], t[2 * j]); p.I("v_exp_f32", t[2 * j + 1], t[2 * j + 1])
        p.I("v_pk_mul_f32", P(acc, 4 + j), P(acc, j), P(acc, 4 + j))
    for j in range(4): p.I("v_pk_add_f32", P(t, j), P(t, j), 1.0, mods="op_sel_hi:[1,0]")
    for j in range(8): p.I("v_rcp_f32", t[j], t[j])
    for j in range(4): p.I("v_pk_mul_f32", P(t, j), P(t, j), P(acc, 4 + j))
    for j in range(4): p.I("v_cvt_pk_bf16_f32", out[j], t[2 * j], t[2 * j + 1])

def split(L, n):
    k = (len(L) + n - 1) // n
    return [L[i * k:(i + 1) * k] for i in range(n)]

PKS = [0]
def softmax_core(p, P, E, tmp, pos, neg, vmask, sL):
    mx, mn, t0, t1, sp, sn, sp2, sn2 = [tmp[i] for i in range(8)]
    p.I("v_max3_f32", mx, P[0], P[1], P[2])
    p.I("v_min3_f32", mn, P[0], P[1], P[2])
    for i in range(6):
        p.I("v_max3_f32", mx, mx, P[3 + 2 * i], P[4 + 2 * i])
        p.I("v_min3_f32", mn, mn, P[3 + 2 * i], P[4 + 2 * i])
    p.I("v_max_f32", mx, mx, P[15])
    p.I("v_min_f32", mn, mn, P[15])
    p.I("v_mov_b32", t0, mx)
    p.I("v_mov_b32", t1, mn)
    p.I("v_permlane32_swap_b32", mx, t0)
    p.I("v_permlane32_swap_b32", mn, t1)
    p.I("v_max_f32", mx, mx, t0)
    p.I("v_min_f32", mn, mn, t1)
    p.I("v_mul_f32", mx, sL, mx)
    p.I("v_mul_f32", mn, sL, mn)
    if PKS[0]:
        p.I("v_mov_b32", t0, sL)
        for i in range(8): p.I("v_pk_fma_f32", E.sub(2 * i, 2), P.sub(2 * i, 2), tmp.sub(2, 2), tmp.sub(0, 2), mods="op_sel:[0,0,1] op_sel_hi:[1,0,1] neg_lo:[1,0,0] neg_hi:[1,0,0]")
        for i in range(8): p.I("v_pk_fma_f32", P.sub(2 * i, 2), P.sub(2 * i, 2), tmp.sub(2, 2), tmp.sub(0, 2), mods="op_sel_hi:[1,0,0] neg_lo:[0,0,1] neg_hi:[0,0,1]")
    else:
        for i in range(16): p.I("v_fma_f32", E[i], Neg(P[i]), sL, mn)
        for i in range(16): p.I("v_fma_f32", P[i], P[i], sL, Neg(mx))
    for i in range(16): p.I("v_exp_f32", E[i], E[i])
    for i in range(16): p.I("v_exp_f32", P[i], P[i])
    p.I("v_add_f32", sn, E[0], E[1]); p.I("v_add_f32", sn2, E[2], E[3])
    p.I("v_add_f32", sp, P[0], P[1]); p.I("v_add_f32", sp2, P[2], P[3])
    for i in range(4, 12, 2):
        p.I("v_add_f32", sn, sn, E[i]); p.I("v_add_f32", sn2, sn2, E[i + 1])
        p.I("v_add_f32", sp, sp, P[i]); p.I("v_add_f32", sp2, sp2, P[i + 1])
    for i in range(12, 16, 2):
        p.I("v_fmac_f32", sn, E[i], vmask); p.I("v_fmac_f32", sn2, E[i + 1], vmask)
        p.I("v_fmac_f32", sp, P[i], vmask); p.I("v_fmac_f32", sp2, P[i + 1], vmask)
    p.I("v_add_f32", sp, sp, sp2); p.I("v_add_f32", sn, sn, sn2)
    p.I("v_mov_b32", t0, sp); p.I("v_mov_b32", t1, sn)
    p.I("v_permlane32_swap_b32", sp, t0)
    p.I("v_permlane32_swap_b32", sn, t1)
    p.I("v_add_f32", sp, sp, t0); p.I("v_add_f32", sn, sn, t1)
    p.I("v_rcp_f32", sp, sp); p.I("v_rcp_f32", sn, sn)
    if PKS[0]:
        for i in range(8): p.I("v_pk_mul_f32", P.sub(2 * i, 2), P.sub(2 * i, 2), tmp.sub(4, 2), mods="op_sel_hi:[1,0]")
        for i in range(8): p.I("v_pk_mul_f32", E.sub(2 * i, 2), E.sub(2 * i, 2), tmp.sub(4, 2), mods="op_sel:[0,1] op_sel_hi:[1,1]")
    else:
        for i in range(16): p.I("v_mul_f32", P[i], P[i], sp)
        for i in range(16): p.I("v_mul_f32", E[i], E[i], sn)
    for i in range(8): p.I("v_cvt_pk_bf16_f32", pos[i], P[2 * i], P[2 * i + 1])
    for i in range(8): p.I("v_cvt_pk_bf16_f32", neg[i], E[2 * i], E[2 * i + 1])

def wphi_gather(q, WT, SPHI, sHead, sT, lane, u1, u2, u3, u4, u5):
    q.I("v_and_b32", u1, 31, lane); q.I("v_lshrrev_b32", u2, 5, lane); q.I("v_mov_b32", u5, BIG)
    q.I("v_subrev_u32", u3, 24, u1)
    q.I("v_cmp_lt_u32", VCC, 27, u1)
    q.I("v_cndmask_b32", u3, u1, u3, VCC)
    q.I("v_lshlrev_b32", u3, 1, u3)
    q.I("v_mul_u32_u24", u4, 4 * 56, u2)
    q.I("v_add_u32", u3, u3, u4)
    q.I("s_mul_i32", sT, sHead, 1568)
    q.I("v_add_u32", u3, sT, u3)
    q.I("v_cmp_eq_u32", VCC, 1, u2)
    q.I("v_cndmask_b32", u4, u3, u5, VCC)
    for s in range(2):
        for j in range(8):
            d0 = 16 * s + 8 * (j >> 2) + (j & 3)
            q.I("buffer_load_ushort", WT[8 * s + j], u4 if d0 + 4 >= 28 else u3, SPHI, 0, mods=f"offen offset:{d0*56}")

XYS = 16384; NXY = 6; KVB = XYS * NXY; PAGE = 8192; NKV = 3
ASB = KVB + NKV * PAGE; ABLK = 32 * 528
K1_LDS = ASB + 2 * ABLK
KVL = ASB + 32768
KVROW = 320
KVP_L = ASB
NB = 15; BRING = NB * 2048
HF_OFF = FLG_OFF; KF_OFF = FLG_OFF + 8192; OF_OFF = FLG_OFF + 12288

lane = V(0)
XR = V(8, 56)
def xr(b, g): return XR.sub(8 * b + 4 * g, 4)
ACC = [V(64 + 16 * i, 16) for i in range(6)]
BF = [[V(160 + 12 * s + 4 * t, 4) for t in range(3)] for s in range(2)]
AFr = [[V(184 + 8 * s + 4 * i, 4) for i in range(2)] for s in range(2)]
LT = V(200, 16)
vBt = [[V(216 + 2 * t), V(217 + 2 * t)] for t in range(3)]
vAw, vAr, vD0, vDX, vDY, vSt = [V(222 + i) for i in range(6)]
vR = [V(228), V(229)]; vNM = [V(230), V(231)]
vMask, vC2, vTk, vL0 = V(232), V(233), V(234), V(235)
u1, u2, u3, u4, u5 = [V(236 + i) for i in range(5)]
WPHI = V(244, 8)
sW = S(3); sR, sJ, sRot = S(26), S(27), S(72)
SX, SQKV, SXs, SYs, SWS, SPHI, SD, SW2 = [S(28 + 4 * i, 4) for i in range(8)]
sT0, sT1, sT2, sT3 = S(60), S(61), S(62), S(63)
sO0, sOX, sLdsW, sL = S(64), S(65), S(66), S(67)
sM28 = S(68, 2)
sOut, sW2d = S(70), S(71)
sZ, sFl, sStr, sEnd = S(73), S(74), S(75), S(76)
a0, a1, a2 = S(77), S(78), S(79)
sG = S(58)

def dma_xy(q, c):
    slot = (c % NXY) * XYS
    q.I("s_add_u32", M0, sLdsW, slot)
    q.I("buffer_load_dwordx4", vDX, SXs, sOX, mods="offen lds", tag=f"dma{c}")
    q.I("s_add_u32", M0, sLdsW, slot + PAGE)
    q.I("buffer_load_dwordx4", vDY, SYs, sOX, mods="offen lds", tag=f"dma{c}")
    if c < 13:
        q.I("s_add_u32", sOX, sOX, sStr)
        if c % 2 == 1:
            q.I("s_cmp_eq_u32", sOX, sEnd); q.I("s_cselect_b32", sOX, 0, sOX)
def dma_kv(q, b):
    q.I("s_add_u32", M0, sLdsW, KVB + (b % NKV) * PAGE)
    q.I("buffer_load_dwordx4", vD0, SQKV, sO0, mods="offen lds", tag=f"kv{b}")
    if b < 6:
        q.I("s_add_u32", sO0, sO0, 64 * 2688); q.I("s_cmp_eq_u32", sO0, 448 * 2688); q.I("s_cselect_b32", sO0, 0, sO0)
def ln_unit(q, b, g):
    x = xr(b, g); T = LT.sub(0, 8)
    for i in range(4):
        q.I("v_lshlrev_b32", T[2 * i], 16, x[i])
        q.I("v_and_b32", T[2 * i + 1], 0xFFFF0000, x[i])
    for i in range(8): q.I("v_fma_f32", T[i], T[i], vR[g], vNM[g])
    for i in range(4): q.I("v_cvt_pk_bf16_f32", x[i], T[2 * i], T[2 * i + 1])
def a_write(q, b, g):
    q.I("ds_write_b128", vAw, xr(b, g), mods=f"offset:{(b % 2) * ABLK + g * 128}", tag=f"aw{b}")

def k1_common(p, cfg, st):
    t1, t2, t3, t4, t5, t6, t7 = [V(i) for i in range(1, 8)]
    p.I("s_cmp_ge_u32", S(2), 256)
    p.raw("    s_cbranch_scc1 K1_END")
    p.I("s_load_dwordx8", S(4, 8), S(0, 2), 0)
    p.I("s_load_dwordx8", S(12, 8), S(0, 2), 32)
    p.I("s_load_dwordx4", S(20, 4), S(0, 2), 64)
    p.I("s_load_dwordx2", S(24, 2), S(0, 2), 80)
    st.stamp(p, True)
    if cfg["stamps"] != 2: st.stamp(p)
    p.I("v_lshrrev_b32", V(1), 6, V(0))
    p.I("v_readfirstlane_b32", S(3), V(1))
    p.I("v_and_b32", V(0), 63, V(0))
    p.I("s_and_b32", sT0, S(2), 7); p.I("s_lshr_b32", sT1, S(2), 3)
    lr = {0: 3, 2: 2, 1: 1}[cfg["k1map"]]
    nxr = 16 >> lr
    p.I("s_and_b32", sT2, sT0, nxr - 1); p.I("s_lshl_b32", sT2, sT2, lr)
    p.I("s_and_b32", sT3, sT1, (1 << lr) - 1); p.I("s_add_u32", sR, sT2, sT3)
    p.I("s_lshr_b32", sT2, sT0, 4 - lr)
    p.I("s_lshr_b32", sT1, sT1, lr)
    if cfg["jcont"]: p.I("s_lshl_b32", sJ, sT2, 5 - lr); p.I("s_add_u32", sJ, sJ, sT1)
    else: p.I("s_lshl_b32", sJ, sT1, lr - 1); p.I("s_add_u32", sJ, sJ, sT2)
    p.I("s_lshl_b32", sRot, sT3, 3 - lr)
    p.I("s_and_b32", a0, sT0, nxr - 1); p.I("s_add_u32", sRot, sRot, a0)
    p.I("s_cmp_ge_u32", sRot, 7); p.I("s_cselect_b32", sT2, 7, 0); p.I("s_sub_u32", sRot, sRot, sT2)
    p.I("s_cmp_ge_u32", sRot, 7); p.I("s_cselect_b32", sT2, 7, 0); p.I("s_sub_u32", sRot, sRot, sT2)
    if cfg["rot"] == 0: p.I("s_mov_b32", sRot, 0)
    elif cfg["rot"] == 2: p.I("s_and_b32", sRot, sT3, 1); p.I("s_mul_i32", sRot, sRot, 3)
    elif cfg["rot"] == 3: p.I("s_and_b32", sRot, sT3, 3); p.I("s_lshl_b32", sRot, sRot, 1)
    elif cfg["rot"] == 4: p.I("s_and_b32", sRot, sT3, 1)
    if lr == 3: p.I("s_lshl_b32", sG, sT1, 1)
    else: p.I("s_mov_b32", sG, sT1)
    if not cfg["xrot"]: p.I("s_mov_b32", sG, 0)
    p.I("s_add_u32", sG, sG, sW); p.I("s_and_b32", sG, sG, 7)
    r8, k8 = t1, t2
    p.I("v_lshrrev_b32", r8, 3, lane)
    p.I("v_and_b32", k8, 7, lane)
    p.I("s_lshl_b32", sT0, sR, 7); p.I("s_lshl_b32", sT1, sG, 4); p.I("s_add_u32", sT0, sT0, sT1)
    p.I("v_add_u32", t3, sT0, r8)
    p.I("v_mul_u32_u24", t3, 896, t3)
    p.I("v_lshl_add_u32", t3, k8, 4, t3)
    p.I("v_add_u32", t4, 8 * 896, t3)
    p.I("s_lshl_b32", sT0, sRot, 7)
    p.I("v_mov_b32", LT[8], t3); p.I("v_mov_b32", LT[9], t4); p.I("s_mov_b32", S(57), sT0)
    def xloads():
        srd(p, SX.n, 4, 2048 * 896)
        for b in range(7):
            p.I("buffer_load_dwordx4", xr(b, 0), LT[8], SX, S(57), mods="offen")
            p.I("buffer_load_dwordx4", xr(b, 1), LT[9], SX, S(57), mods="offen")
            if b < 6:
                p.I("s_add_u32", S(57), S(57), 128); p.I("s_cmp_eq_u32", S(57), 896); p.I("s_cselect_b32", S(57), 0, S(57))
    EARLY = cfg["early"]
    if EARLY != 2: xloads()
    if cfg["xbar"] == 2 and not EARLY:
        p.I("s_cmp_lt_u32", sW, 4); p.raw("    s_cbranch_scc1 K1_NB0"); p.I("s_barrier"); p.label("K1_NB0")
    if cfg["cpref"] and EARLY != 2: code_prefetch(p, NAME + "_kernel", "CODE_END", V(64, 4), t3, S(56, 2), sT0, sT1)
    srd(p, SQKV.n, 6, 448 * 2688)
    p.I("s_lshl_b32", sT1, sJ, 8)
    p.I("s_sub_u32", sT2, sJ, 14); p.I("s_mul_i32", sT2, sT2, 448)
    p.I("s_mov_b32", a0, 2688); p.I("s_mov_b32", a1, 448 * 2688)
    p.I("s_cmp_lt_u32", sJ, 14)
    p.I("s_cselect_b32", SXs[0], S(14), S(6)); p.I("s_cselect_b32", SXs[1], S(15), S(7))
    p.I("s_cselect_b32", SYs[0], S(16), S(6)); p.I("s_cselect_b32", SYs[1], S(17), S(7))
    p.I("s_cselect_b32", a0, 3584, a0)
    p.I("s_cselect_b32", sEnd, 448 * 3584, a1)
    p.I("s_cselect_b32", sT1, sT1, sT2)
    p.I("s_cselect_b32", a1, 2, 0)
    p.I("s_cselect_b32", a2, 0, 224)
    p.I("s_and_b32", SXs[1], SXs[1], 0xFFFF); p.I("s_and_b32", SYs[1], SYs[1], 0xFFFF)
    p.I("s_mov_b32", SXs[2], sEnd); p.I("s_mov_b32", SYs[2], sEnd)
    p.I("s_mov_b32", SXs[3], 0x20000); p.I("s_mov_b32", SYs[3], 0x20000)
    p.I("s_lshl_b32", sStr, a0, 5)
    p.I("s_mul_i32", sOX, sRot, sStr); p.I("s_lshl_b32", sOX, sOX, 1)
    p.I("v_lshrrev_b32", t3, 4, lane)
    p.I("v_and_b32", t4, 15, lane)
    p.I("v_lshlrev_b32", t5, 2, t3); p.I("v_xor_b32", t4, t4, t5)
    p.I("s_lshl_b32", sT0, sW, 2)
    p.I("v_add_u32", t3, sT0, t3)
    p.I("v_mul_u32_u24", t3, a0, t3)
    p.I("v_add_u32", t3, sT1, t3)
    p.I("v_lshl_add_u32", vDX, t4, 4, t3)
    p.I("v_xor_b32", t4, a1, t4)
    p.I("v_lshl_add_u32", vDY, t4, 4, t3)
    p.I("v_add_u32", vDY, a2, vDY)
    p.I("s_lshl_b32", sLdsW, sW, 10)
    p.I("v_bfe_u32", t5, r8, 1, 1)
    p.I("v_lshlrev_b32", t5, 2, t5)
    p.I("v_xor_b32", t5, t5, k8)
    p.I("s_lshl_b32", sT0, sW, 3)
    p.I("v_add_u32", t6, sT0, r8)
    p.I("v_lshrrev_b32", t3, 2, t5); p.I("v_mul_u32_u24", t3, 896, t3)
    p.I("v_and_b32", t4, 3, t5); p.I("v_lshl_add_u32", t3, t4, 4, t3)
    p.I("v_mul_u32_u24", t4, 2688, t6); p.I("v_add_u32", t3, t3, t4)
    p.I("s_mul_i32", sT1, sJ, 56); p.I("s_add_u32", sT1, sT1, 896)
    p.I("v_add_u32", vD0, sT1, t3)
    p.I("s_mul_i32", sO0, sRot, 64 * 2688)
    if EARLY == 1: p.I("s_barrier")
    if EARLY:
        dma_xy(p, 0); dma_kv(p, 0)
        if EARLY == 2:
            xloads()
            if cfg["cpref"]: code_prefetch(p, NAME + "_kernel", "CODE_END", V(64, 4), t3, S(56, 2), sT0, sT1)
        dma_xy(p, 1)
    p.I("v_mul_u32_u24", vAw, 528, k8)
    p.I("v_lshl_add_u32", vAw, r8, 4, vAw)
    p.I("s_lshr_b32", sT0, sG, 1); p.I("s_mul_i32", sT0, sT0, 8 * 528)
    p.I("s_and_b32", sT1, sG, 1); p.I("s_lshl_b32", sT2, sT1, 8)
    p.I("s_add_u32", sT0, sT0, sT2); p.I("s_add_u32", sT0, sT0, ASB)
    p.I("v_add_u32", vAw, sT0, vAw)
    p.I("s_and_b32", sT1, sW, 1)
    srd(p, SWS.n, 24, WS_BYTES)
    p.I("v_lshlrev_b32", vSt, 4, lane)
    p.I("v_and_b32", u1, 31, lane)
    p.I("v_lshrrev_b32", u2, 5, lane)
    p.I("v_mul_u32_u24", vAr, 528, u2)
    p.I("v_lshl_add_u32", vAr, u1, 4, vAr)
    p.I("s_mul_i32", sT2, sT1, 16 * 528); p.I("s_add_u32", sT2, sT2, ASB)
    p.I("v_add_u32", vAr, sT2, vAr)
    p.I("v_mov_b32", vC2, f2u(GC2))
    sm = [LT[0], LT[1]]; sq = [LT[2], LT[3]]; ones = LT[4]
    p.I("v_mov_b32", ones, 0x3F803F80)
    for r in sm + sq: p.I("v_mov_b32", r, 0)
    for b in range(7):
        for g in range(2):
            for i in range(4):
                p.I("v_dot2c_f32_bf16", sm[g], xr(b, g)[i], ones)
                p.I("v_dot2c_f32_bf16", sq[g], xr(b, g)[i], xr(b, g)[i])
    for mod in ("quad_perm:[1,0,3,2]", "quad_perm:[2,3,0,1]", "row_half_mirror"):
        for r in sm + sq:
            p.I("v_add_f32_dpp", r, r, r, mods=mod + " row_mask:0xf bank_mask:0xf")
    for g in range(2):
        p.I("v_mul_f32", sm[g], f2u(1.0 / 448), sm[g])
        p.I("v_mul_f32", sq[g], f2u(1.0 / 448), sq[g])
    for g in range(2): p.I("v_fma_f32", sq[g], Neg(sm[g]), sm[g], sq[g])
    for g in range(2): p.I("v_max_f32", sq[g], 0, sq[g])
    for g in range(2): p.I("v_add_f32", sq[g], f2u(1e-5), sq[g])
    for g in range(2): p.I("v_rsq_f32", vR[g], sq[g])
    for g in range(2): p.I("v_mul_f32_e64", vNM[g], Neg(sm[g]), vR[g])
    st.stamp(p)
    if not EARLY:
        p.I("s_lshr_b32", a0, sStr, 1)
        if cfg["xbar"] == 2:
            p.I("s_cmp_ge_u32", sW, 4); p.raw("    s_cbranch_scc1 K1_NB1"); p.I("s_barrier"); p.label("K1_NB1")
        p.I("s_cmp_ge_u32", sW, 4)
        p.raw("    s_cbranch_scc1 K1_NODMA")
        p.I("s_mov_b32", a1, sOX)
        for c in range(2):
            for hh in range(2):
                if hh: p.I("s_add_u32", a2, a1, a0)
                so = a2 if hh else a1
                p.I("s_add_u32", M0, sLdsW, c * XYS + hh * 4096)
                p.I("buffer_load_dwordx4", vDX, SXs, so, mods="offen lds", tag=f"dma{c}")
                p.I("s_add_u32", M0, sLdsW, c * XYS + PAGE + hh * 4096)
                p.I("buffer_load_dwordx4", vDY, SYs, so, mods="offen lds", tag=f"dma{c}")
            if c == 0:
                p.I("s_add_u32", a1, a1, sStr)
                p.I("s_add_u32", a2, sO0, 32 * 2688)
                p.I("s_add_u32", M0, sLdsW, KVB)
                p.I("buffer_load_dwordx4", vD0, SQKV, sO0, mods="offen lds", tag="kv0")
                p.I("s_add_u32", M0, sLdsW, KVB + 4096)
                p.I("buffer_load_dwordx4", vD0, SQKV, a2, mods="offen lds", tag="kv0")
        p.label("K1_NODMA")
        p.I("s_add_u32", sOX, sOX, sStr); p.I("s_add_u32", sOX, sOX, sStr)
        p.I("s_cmp_eq_u32", sOX, sEnd); p.I("s_cselect_b32", sOX, 0, sOX)
        p.I("s_add_u32", sO0, sO0, 64 * 2688); p.I("s_cmp_eq_u32", sO0, 448 * 2688); p.I("s_cselect_b32", sO0, 0, sO0)
    ln_unit(p, 0, 0); a_write(p, 0, 0); ln_unit(p, 0, 1); a_write(p, 0, 1)
    for c in range(2, cfg["npre"]): dma_xy(p, c)
    dma_kv(p, 1)
    p.I("s_cmp_ge_u32", sJ, 14)
    p.raw("    s_cbranch_scc1 K1_Q")
    p.I("s_cmp_ge_u32", S(3), 4)
    p.raw("    s_cbranch_scc1 K1_F1")

def gen_k1(cfg):
    name = NAME + "_kernel"
    txt = kernel_header(name)
    first = True
    for typ in ("F", "Q"):
        for grp in (0, 1):
            p = Prog(); st = Stamps(cfg["stamps"], 0)
            if cfg["stamps"] == 2:
                o2 = st.stamp
                st.stamp = lambda pp, real=False, o2=o2: o2(pp, True)
            if cfg.get("its") is not None:
                orig = st.stamp
                def stamp2(pp, real=False, force=False, orig=orig):
                    if real or force: orig(pp, real)
                st.stamp = stamp2
            k1_common(p, cfg, st)
            mark = p.raw("; ---- role code ----")
            if typ == "Q" and grp == 0:
                p.label("K1_Q"); p.I("s_cmp_ge_u32", S(3), 4); p.raw("    s_cbranch_scc1 K1_Q1")
            elif grp == 1: p.label(f"K1_{typ}1")
            k1_role(p, typ, grp, cfg, st)
            L = finalize(p)
            k = L.index(mark)
            txt += render(L if first else L[k:])
            first = False
    txt += "K1_END:\n    s_endpgm\n"
    return txt, kernel_desc(name, 256)

def k1_role(p, typ, grp, cfg, st):
    t1, t2, t3, t4, t5, t6, t7 = [V(i) for i in range(1, 8)]
    stp = " sc1" if cfg["sc1"] else ""
    NT = 3
    ch, r4, cq = t3, t4, t5
    p.I("v_bfe_u32", ch, lane, 4, 1); p.I("v_bfe_u32", r4, lane, 2, 2); p.I("v_and_b32", cq, 3, lane)
    p.I("v_lshl_add_u32", t6, u2, 3, r4)
    p.I("v_lshlrev_b32", cq, 3, cq)
    p.I("v_lshl_add_u32", t1, ch, 5, cq)
    p.I("v_lshlrev_b32", t7, 6, r4)
    p.I("s_lshr_b32", sT0, sW, 1); p.I("s_and_b32", sT0, sT0, 1)
    if grp == 0: p.I("s_mul_i32", sT1, sT0, 3)
    else: p.I("s_add_u32", sT1, sT0, 6)
    nxy = 3 if grp == 0 else 1
    for t in range(nxy):
        if t: p.I("s_add_u32", sT1, sT1, 1)
        if typ == "F":
            p.I("s_lshl_b32", sT2, sT1, 5)
            p.I("v_xor_b32", t2, sT2, t1); p.I("v_xor_b32", t2, t2, t7)
            p.I("v_lshl_add_u32", t2, ch, 13, t2)
        else:
            p.I("s_and_b32", sT2, sT1, 3); p.I("s_mul_i32", sT2, sT2, 56)
            p.I("s_lshr_b32", sT3, sT1, 2); p.I("s_lshl_b32", sT3, sT3, 13)
            p.I("v_add_u32", t2, sT2, t1); p.I("v_xor_b32", t2, t2, t7)
            p.I("v_add_u32", t2, sT3, t2)
        p.I("v_lshl_add_u32", vBt[t][0], t6, 8, t2)
        p.I("v_add_u32", vBt[t][1], 3 * XYS, vBt[t][0])
    if grp == 1:
        p.I("v_bfe_u32", t7, lane, 3, 1); p.I("v_lshlrev_b32", t7, 6, t7)
        p.I("v_xor_b32", t2, t1, t7)
        p.I("v_lshl_add_u32", t2, t6, 7, t2)
        p.I("v_add_u32", vBt[1][0], KVB, t2)
        p.I("v_xor_b32", vBt[2][0], 64, vBt[1][0])
    p.I("s_and_b32", sT2, sW, 1); p.I("s_lshl_b32", sT2, sT2, 1); p.I("s_lshl_b32", sT3, sR, 2); p.I("s_add_u32", sT2, sT2, sT3)
    if nxy > 1: p.I("s_sub_u32", sT1, sT1, nxy - 1)
    if typ == "F":
        p.I("s_mul_i32", sOut, sT2, NKS * 1024)
        p.I("s_lshl_b32", sT3, sJ, 3); p.I("s_add_u32", sT3, sT3, sT1); p.I("s_lshl_b32", sT3, sT3, 10)
        p.I("s_add_u32", sOut, sOut, sT3)
        RTS, TS = NKS * 1024, 1024
    else:
        p.I("s_lshl_b32", sOut, sT2, 15)
        p.I("s_sub_u32", sT3, sJ, 14); p.I("s_lshl_b32", sT3, sT3, 3); p.I("s_add_u32", sT3, sT3, sT1); p.I("s_lshl_b32", sT3, sT3, 11)
        p.I("s_add_u32", sOut, sOut, sT3); p.I("s_add_u32", sOut, sOut, QF_OFF)
        RTS, TS = 1 << 15, 2048
    if grp == 1:
        p.I("s_mul_i32", sT3, sT0, 8 * 528)
        p.I("v_add_u32", u3, 8 * 528, vAr); p.I("v_subrev_u32", u3, sT3, u3)
        p.I("v_add_u32", vAr, sT3, vAr)
        p.I("v_mov_b32", V(243), u3)
        p.I("s_mul_i32", sT3, sT0, RTS)
        p.I("s_add_u32", a0, sOut, RTS); p.I("s_sub_u32", a0, a0, sT3)
        p.I("s_add_u32", sOut, sOut, sT3)
        p.I("s_mov_b32", S(59), a0)
    vAr2 = V(243); sOut2 = S(59)
    ln_unit(p, 1, 0)

    def b_reads(c, ks, t):
        dst = BF[ks][t]
        if grp == 0 or t == 0:
            slot = c % NXY; var = slot // 3
            off = (slot % 3) * XYS + 16 * ks * 256
            return [Inst("ds_read_b64_tr_b16", (dst.sub(2 * pp, 2), vBt[t][var]), f"offset:{off + pp * 1024}") for pp in range(2)]
        off = ((c >> 1) % NKV) * PAGE + (32 * (c & 1) + 16 * ks) * 128
        return [Inst("ds_read_b64_tr_b16", (dst.sub(2 * pp, 2), vBt[t][0]), f"offset:{off + pp * 512}") for pp in range(2)]
    def a_read(c, ks, i):
        b = c >> 1; k4 = 2 * (c & 1) + ks
        if grp == 0: return Inst("ds_read_b128", (AFr[ks][i], vAr), f"offset:{(b % 2) * ABLK + (i * 4 + k4) * 2 * 528}")
        return Inst("ds_read_b128", (AFr[ks][i], vAr if i == 0 else vAr2), f"offset:{(b % 2) * ABLK + k4 * 2 * 528}")
    def reads(c, ks):
        return [a_read(c, ks, 0)] + b_reads(c, ks, 0) + [a_read(c, ks, 1)] + b_reads(c, ks, 1) + b_reads(c, ks, 2)
    def mfmas(c, ks):
        f = (c == 0 and ks == 0)
        M = lambda d, a, b: Inst(MF, (d, a, b, 0 if f else d))
        if grp == 0: return [M(ACC[2 * t + i], BF[ks][t], AFr[ks][i]) for t in range(3) for i in range(2)]
        return [M(ACC[0], BF[ks][0], AFr[ks][0]), M(ACC[1], BF[ks][0], AFr[ks][1]),
                M(ACC[2], BF[ks][1], AFr[ks][0]), M(ACC[3], AFr[ks][0], BF[ks][2])]

    seg = {n: Prog() for n in range(15)}
    W2T = XR.sub(0, 8); WT = XR.sub(8, 16)
    q = seg[11]
    srd(q, SD.n, 22, 256)
    q.I("v_lshlrev_b32", vL0, 2, lane)
    q.I("buffer_load_dword", vTk, vL0, SD, 0, mods="offen sc1")
    if cfg["wdpf"]:
        q = seg[cfg["wdpf"]]
        if cfg["wdmode"] == 0:
            q.I("s_lshr_b32", sT0, S(2), 3); q.I("s_lshl_b32", sT0, sT0, 3); q.I("s_add_u32", sT0, sT0, sW); q.I("s_lshl_b32", sT0, sT0, 13)
        else:
            q.I("s_lshl_b32", sT0, S(2), 3); q.I("s_add_u32", sT0, sT0, sW); q.I("s_lshl_b32", sT0, sT0, 10)
        q.I("s_sub_u32", sT1, sT0, 1792 * 896)
        q.I("s_mov_b32", sT2, 448 * 896)
        q.I("s_cmp_lt_u32", sT0, 1792 * 896)
        q.I("s_cselect_b32", SX[0], S(18), S(10)); q.I("s_cselect_b32", SX[1], S(19), S(11))
        q.I("s_cselect_b32", SX[2], 1792 * 896, sT2)
        q.I("s_cselect_b32", sT0, sT0, sT1)
        q.I("s_and_b32", SX[1], SX[1], 0xFFFF)
        if cfg["wdmode"] == 0:
            q.I("v_lshlrev_b32", u3, 7, lane)
            q.I("buffer_load_dword", XR[0], u3, SX, sT0, mods="offen")
        else:
            q.I("buffer_load_dwordx4", XR.sub(0, 4), vSt, SX, sT0, mods="offen")
    if cfg["l2pf"]:
        f0 = cfg["l2pf"]
        q = seg[f0]
        sPf = S(71)
        q.I("s_lshr_b32", sT0, S(2), 3); q.I("s_lshl_b32", sT0, sT0, 3); q.I("s_add_u32", sT0, sT0, sW); q.I("s_lshl_b32", sT0, sT0, 13)
        q.I("s_sub_u32", sT1, sT0, 1792 * 896)
        q.I("s_mov_b32", sT2, 448 * 896)
        q.I("s_cmp_lt_u32", sT0, 1792 * 896)
        q.I("s_cselect_b32", SX[0], S(18), S(10)); q.I("s_cselect_b32", SX[1], S(19), S(11))
        q.I("s_cselect_b32", SX[2], 1792 * 896, sT2)
        q.I("s_cselect_b32", sPf, sT0, sT1)
        q.I("s_and_b32", SX[1], SX[1], 0xFFFF)
        q.I("v_lshlrev_b32", V(252), 7, lane); q.I("v_mov_b32", V(253), BIG)
        q.I("v_cmp_gt_u32", VCC, 64 // cfg["l2n"], lane); q.I("v_cndmask_b32", V(252), V(253), V(252), VCC)
        for i in range(cfg["l2n"]):
            q = seg[f0 + i * cfg["l2s"]]
            q.I("buffer_load_dword", V(254), V(252), SX, sPf, mods="offen")
            q.I("s_add_u32", sPf, sPf, 8192 // cfg["l2n"])
    IDN = XR.sub(24, 8)
    if grp == 1:
        q = seg[0]
        srd(q, SD.n, 22, 256)
        q.I("v_mov_b32", u5, BIG)
        q.I("v_cmp_eq_u32", VCC, 0, lane)
        q.I("v_cndmask_b32", vL0, u5, 0, VCC)
        q.I("s_lshl_b32", sT0, sJ, 2); q.I("s_add_u32", sT0, sT0, sW); q.I("s_sub_u32", sT0, sT0, 4)
        q.I("s_lshl_b32", sT1, sT0, 11); q.I("s_add_u32", sT1, sT1, KVA_OFF)
        q.I("s_lshl_b32", sT2, sT0, 8); q.I("s_add_u32", sT2, sT2, FLG_OFF)
        q.I("s_lshl_b32", sFl, sT0, 2)
        q.I("s_lshl_b32", sZ, sJ, 13); q.I("s_add_u32", sZ, sZ, KVA_OFF)
        q.I("s_cmp_eq_u32", sR, sJ)
        q.I("s_cselect_b32", sT2, sT2, BIG)
        q.I("s_cselect_b32", sT1, sT1, BIG)
        q.I("s_cselect_b32", sFl, sFl, BIG)
        ZR = V(128, 4)
        for i in range(4): q.I("v_mov_b32", ZR[i], 0)
        for s in range(2): q.I("buffer_store_dwordx4", ZR, vSt, SWS, sT1, mods=f"offen offset:{s*1024} sc1", tag="zs")
        q.I("v_cmp_gt_u32", VCC, 16, lane)
        q.I("v_cndmask_b32", u3, u5, vSt, VCC)
        q.I("buffer_store_dwordx4", ZR, u3, SWS, sT2, mods="offen sc1", tag="zs")
        q = seg[5]
        q.I("v_mov_b32", vTk, 1)
        q.waittag("zs")
        q.I("buffer_store_dword", vTk, vL0, SD, sFl, mods="offen sc1")
        q = seg[10]
        srd(q, SPHI.n, 8, 16 * 1568)
        q.I("s_mov_b32", sL, f2u(LOG2E))
        wphi_gather(q, WT, SPHI, sJ, sT0, lane, u1, u2, u3, u4, u5)
        q.I("v_cmp_eq_u32", VCC, 0, u2)
        q.I("v_cndmask_b32", vMask, 0, 1.0, VCC)
        q = seg[12]
        q.I("v_cmp_eq_u32", sM28, 28, u1)
        q.I("v_lshlrev_b32", u3, 2, u2); q.I("v_sub_u32", u3, u1, u3)
        q.I("v_and_b32", u4, 1, u3); q.I("v_lshlrev_b32", u4, 4, u4); q.I("v_mov_b32", u5, 0x3F80); q.I("v_lshlrev_b32", u4, u4, u5)
        q.I("v_lshrrev_b32", u3, 1, u3)
        for s in range(2):
            for i in range(4):
                f0 = 16 * s + 8 * ((2 * i) >> 2) + ((2 * i) & 3)
                q.I("v_cmp_eq_u32", VCC, f0 // 2, u3)
                q.I("v_cndmask_b32", IDN[4 * s + i], 0, u4, VCC)
        q = seg[13]
        for i in range(8): q.I("v_lshl_or_b32", WPHI[i], WT[2 * i + 1], 16, WT[2 * i])
    q = seg[12]
    q.I("v_mov_b32", LT[8], 0); q.I("v_mov_b32", LT[9], KVL)
    q.I("ds_write_b32", LT[9], LT[8], tag="zl")

    PO = [4, 5, 6, 7, 13, 8, 9, 10, 11, 14, 0, 1, 2, 3, 12]
    PAV = [9, 9, 10, 10, 10, 11, 11, 12, 12, 12, 13, 13]
    if grp == 0:
        SWD, SWO, SO = SPHI, SXs, SYs
        sRB, sCB, sBd, sBo, sRing, sTm = S(67), S(68), S(69), S(66), S(58), S(59)
        vE0, vE1 = V(244), V(245); vT = [[V(246), V(247)], [V(238), V(239)]]
        q = seg[8]
        srd(q, SWD.n, 18, 1792 * 896)
        q.I("s_sub_u32", sT2, S(2), 32)
        q.I("s_and_b32", sT0, sT2, 7); q.I("s_lshr_b32", sT1, sT2, 3)
        q.I("s_mul_i32", sT2, sT1, 37); q.I("s_lshr_b32", sT2, sT2, 8)
        q.I("s_lshl_b32", sRB, sT0, 2); q.I("s_add_u32", sRB, sRB, sT2)
        q.I("s_mul_i32", sT2, sT2, 7); q.I("s_sub_u32", sCB, sT1, sT2)
        q.I("s_lshl_b32", sT0, sCB, 7)
        q.I("s_mul_i32", sBd, sW, 28 * 16 * 896); q.I("s_add_u32", sBd, sBd, sT0)
        q.I("s_cmp_lt_u32", S(2), 32); q.I("s_cselect_b32", sBd, BIG, sBd)
        q.I("s_lshl_b32", sRing, sW, 11)
        q.I("v_lshrrev_b32", t1, 3, lane); q.I("v_and_b32", t2, 7, lane)
        q.I("v_bfe_u32", t3, lane, 4, 1); q.I("v_lshlrev_b32", t3, 2, t3); q.I("v_xor_b32", t2, t2, t3)
        q.I("v_mul_u32_u24", vE0, 896, t1); q.I("v_lshl_add_u32", vE0, t2, 4, vE0)
        def bdma(q, k):
            for i in range(2):
                if k < 28:
                    q.I("s_add_u32", sTm, sBd, (16 * k + 8 * i) * 896); sr, va = SWD, vE0
                else:
                    kk = k - 28
                    q.I("s_add_u32", sTm, sBo, ((kk >> 1) * 28 + 16 * (kk & 1) + 8 * i) * 896); sr = SWO
                    va = vE1 if (kk & 1 and i == 1) else vE0
                q.I("s_add_u32", M0, sRing, PO[k % NB] * PAGE + i * 1024)
                q.I("buffer_load_dwordx4", va, sr, sTm, mods="offen lds", tag=f"b{k}")
        NL = cfg["bloop"]
        for k in range(NL): bdma(seg[max(PAV[k], cfg["bstart"])], k)

    p.waittag("dma0", "dma1", "kv0", "aw0")
    p.I("s_barrier")
    st.stamp(p)
    p.L.extend(reads(0, 0))
    nxt = cfg["npre"]
    for c in range(14):
        fill = Prog()
        ln = Prog()
        if c % 2 == 0:
            b = c // 2 + 1
            if b < 7: a_write(ln, b, 0); ln_unit(ln, b, 1); a_write(ln, b, 1)
        else:
            b = (c + 3) // 2
            if b < 7: ln_unit(ln, b, 0)
        dm = Prog()
        cnt = 0
        while nxt < 14 and nxt <= c + cfg["la"] and cnt < 2:
            dma_xy(dm, nxt); nxt += 1; cnt += 1
        kvp = cfg["kvodd"]
        if c % 2 == kvp and c // 2 + 2 < 7: dma_kv(dm, c // 2 + 2)
        if cfg["spread"]:
            groups = []; cur = []
            for i in dm.L:
                cur.append(i)
                if i.kind == "dma": groups.append(cur); cur = []
            if groups: groups[-1] += cur
            n = len(groups)
            step = max(1, len(ln.L) // max(1, n))
            k = 0
            for gi in range(n):
                fill.extend(groups[gi]); fill.extend(ln.L[k:k + step]); k += step
            fill.extend(ln.L[k:])
        else:
            fill.extend(ln); fill.extend(dm)
        if cfg.get("no_dma"): fill.L = [i for i in fill.L if i.kind != "dma"]
        if cfg.get("no_lnw"): fill.L = [i for i in fill.L if i.kind != "lwrite"]
        if cfg.get("no_lnv"): fill.L = [i for i in fill.L if i.kind != "valu"]
        fill.extend(seg[c])
        F = fill.L
        nm = 12 if grp == 0 else 8
        per = len(F) / max(1.0, nm * cfg["front"] / 100.0)
        acc = 0.0; fi = 0
        if cfg["pp"]:
            per = cfg["ppin"] / 10.0
            if grp == 1:
                nin = min(len(F), int(per * nm))
                p.L.extend(F[:len(F) - nin]); fi = len(F) - nin
        if cfg["prio"] and cfg["pp"]: p.I("s_setprio", 1)
        for ks in range(2):
            nc, nks = (c, 1) if ks == 0 else (c + 1, 0)
            rd = reads(nc, nks) if nc < 14 else []
            ms = mfmas(c, ks)
            rp = 2 if grp == 0 else 3
            for m in ms:
                p.L.append(m)
                p.L.extend(rd[:rp]); rd = rd[rp:]
                acc += per
                while acc >= 1 and fi < len(F):
                    p.L.append(F[fi]); fi += 1; acc -= 1
        if cfg["prio"] and cfg["pp"]: p.I("s_setprio", 0)
        p.L.extend(F[fi:])
        if c + 1 < 14:
            if cfg.get("its") is not None and cfg["its"] <= c < cfg["its"] + 4: st.stamp(p, force=True)
            p.waittag(f"dma{c+2}", f"kv{(c+2)//2}", f"aw{(c+2)//2}", "zl")
            p.I("s_barrier")
            if cfg.get("its") is not None and cfg["its"] <= c < cfg["its"] + 4: st.stamp(p, force=True)
    st.stamp(p)
    uid = f"{typ}{grp}"
    def spin(name, vd, va, srdreg, soff, mask=None, sleep=4, first_loaded=False):
        cmp = f"    v_cmp_ne_u32 vcc, 1, {vd}\n" + (f"    s_nop 4\n    s_and_b64 vcc, vcc, {mask}\n" if mask is not None else "    s_nop 4\n")
        L = f"SP_{name}_{uid}"
        t = ""
        if first_loaded:
            p.I("v_mov_b32", vd, vd)
            t += cmp + f"    s_cbranch_vccz {L}_OK\n"
        t += (f"    s_mov_b32 s61, 0\n{L}:\n    buffer_load_dword {vd}, {va}, {srdreg}, {soff} offen sc1\n    s_add_u32 s61, s61, 1\n    s_cmp_gt_u32 s61, 0x20000\n"
              f"    s_cbranch_scc1 {L}_OK\n    s_waitcnt vmcnt(0)\n" + cmp + f"    s_cbranch_vccz {L}_OK\n    s_sleep {sleep}\n    s_branch {L}\n{L}_OK:")
        p.raw(t)
    p.I("s_barrier")
    spin("Z", vTk, vL0, SD, 0, first_loaded=True)
    OUT = V(160, 40); TMP = XR.sub(32, 24)
    cnt = [0]
    def tile_epi(q, acc, so, off):
        k = cnt[0]; cnt[0] += 1
        if typ == "F":
            o = OUT.sub(4 * (k % 6), 4)
            if cfg["pk"]: gelu_pk(q, acc, TMP.sub(8 * (k % 2), 8), o, TMP.sub(16, 2))
            else: gelu_tile(q, acc, TMP.sub(8 * (k % 2), 8), o, vC2)
            q.I("buffer_store_dwordx4", o, vSt, SWS, so, mods=f"offen offset:{off} sc1", tag="hst")
        else:
            o = OUT.sub(8 * (k % 4), 8)
            for i in range(8): q.I("v_cvt_pk_bf16_f32", o[i], acc[2 * i], acc[2 * i + 1])
            for s in range(2): q.I("buffer_store_dwordx4", o.sub(4 * s, 4), vSt, SWS, so, mods=f"offen offset:{off + s*1024} sc1", tag="hst")
    p.I("v_mov_b32", TMP[16], f2u(GC2)); p.I("v_mov_b32", TMP[17], f2u(GC1))
    vOne, vLn0 = V(241), V(242)
    p.I("v_mov_b32", vOne, 1); p.I("v_mov_b32", u5, BIG)
    p.I("v_cmp_eq_u32", VCC, 0, lane)
    p.I("v_cndmask_b32", vLn0, u5, 0, VCC)
    def set_hflag():
        p.I("s_lshl_b32", sT0, sR, 1); p.I("s_and_b32", sT1, sW, 1); p.I("s_add_u32", sT0, sT0, sT1); p.I("s_lshl_b32", sT0, sT0, 8)
        p.I("s_lshl_b32", sT1, sJ, 2); p.I("s_lshr_b32", sT2, sW, 1); p.I("s_add_u32", sT1, sT1, sT2); p.I("s_lshl_b32", sT1, sT1, 2)
        p.I("s_add_u32", sT0, sT0, sT1); p.I("s_add_u32", sT0, sT0, HF_OFF)
        p.waittag("hst")
        p.I("buffer_store_dword", vOne, vLn0, SWS, sT0, mods="offen sc1")
    if grp == 0:
        srd(p, SWO.n, 10, 448 * 896); srd(p, SO.n, 20, 2048 * 896)
        p.I("s_lshl_b32", sT0, sCB, 7)
        p.I("s_mul_i32", sBo, sW, 4 * 28 * 896); p.I("s_add_u32", sBo, sBo, sT0)
        p.I("v_cmp_gt_u32", VCC, 32, lane)
        p.I("v_cndmask_b32", vE1, u5, vE0, VCC)
        p.I("v_bfe_u32", t1, lane, 2, 2); p.I("v_lshl_add_u32", t1, u2, 2, t1)
        p.I("v_bfe_u32", t2, lane, 4, 1); p.I("v_and_b32", t3, 3, lane); p.I("v_lshlrev_b32", t3, 3, t3); p.I("v_lshl_add_u32", t2, t2, 5, t3)
        p.I("v_bfe_u32", t3, lane, 3, 1); p.I("v_lshlrev_b32", t3, 6, t3); p.I("v_xor_b32", t2, t2, t3)
        p.I("v_lshl_add_u32", vT[0][0], t1, 7, t2); p.I("v_add_u32", vT[0][0], sRing, vT[0][0])
        p.I("v_xor_b32", vT[1][0], 64, vT[0][0])
        for c in range(2): p.I("v_add_u32", vT[c][1], 7 * PAGE, vT[c][0])
        E = Prog(); Dm = Prog()
        p.I("s_add_u32", sT3, sOut, RTS)
        p.I("s_add_u32", a1, sOut, 2 * TS); p.I("s_add_u32", a2, sT3, 2 * TS)
        for t in range(3):
            for i in range(2):
                if t < 2: tile_epi(E, ACC[2 * t + i], sOut if i == 0 else sT3, t * TS)
                else: tile_epi(E, ACC[2 * t + i], a1 if i == 0 else a2, 0)
        NE = cfg["bearly"]
        NE = max(NE, NL)
        for k in range(NL, NE): bdma(Dm, k)
        grp3 = [Dm.L[i:i + 3] for i in range(0, len(Dm.L), 3)]
        step = max(1, int(len(E.L) * 0.5) // max(1, len(grp3)))
        k = 0
        for g3 in grp3:
            p.L.extend(g3); p.L.extend(E.L[k:k + step]); k += step
        p.L.extend(E.L[k:])
        set_hflag()
        st.stamp(p)
        p.I("s_cmp_lt_u32", S(2), 32)
        p.raw(f"    s_cbranch_scc1 P2_END_{uid}")
        BP = cfg["bpre"]
        for k in range(NE, BP): bdma(p, k)
        nb = [BP]
        DA = cfg["da"]
        AC2 = [[V(64 + 32 * r + 16 * c, 16) for c in range(2)] for r in range(2)]
        NR = cfg["nreg"]
        assert DA <= 4
        BB = [V(40 + 8 * i, 8) for i in range(2)]
        AB = [V(8 + 8 * d, 8) for d in range(DA)]
        RB = [V(128 + 8 * k, 8) for k in range(12)]
        def bfrag(k): return RB[k] if k < NR else BB[k & 1]
        VO = V(56, 7); XV = V(248, 8); vP, vZ, vG, vLr, vLw = V(228), V(229), V(230), V(231), V(232)
        sA = [S(70), S(71)]; sAo = [S(73), S(74)]; sFlag = S(75); sM56 = S(76, 2) if False else S(56, 2)
        p.I("s_mul_i32", sT0, sW, 28 * 1024)
        p.I("s_mul_i32", sT1, sRB, 2 * NKS * 1024); p.I("s_add_u32", sA[0], sT1, sT0); p.I("s_add_u32", sA[1], sA[0], NKS * 1024)
        p.I("s_lshl_b32", sT0, sW, 13); p.I("s_add_u32", sT0, sT0, 112 * 1024)
        p.I("s_add_u32", sAo[0], sT1, sT0); p.I("s_add_u32", sAo[1], sAo[0], NKS * 1024)
        for m in range(7): p.I("v_add_u32", VO[m], 4096 * m, vSt)
        srd(p, SX.n, 4, 2048 * 896)
        p.I("s_lshl_b32", sT0, sW, 6); p.I("v_add_u32", t1, sT0, lane)
        p.I("v_lshrrev_b32", t2, 3, t1); p.I("v_and_b32", t3, 7, t1)
        p.I("s_lshl_b32", sT0, sRB, 6)
        p.I("v_add_u32", vG, sT0, t2); p.I("v_mul_u32_u24", vG, 896, vG); p.I("v_lshl_add_u32", vG, t3, 4, vG)
        p.I("s_lshl_b32", sT0, sCB, 7); p.I("v_add_u32", vG, sT0, vG)
        p.I("v_mul_u32_u24", vLr, K2_ROW, t2); p.I("v_lshl_add_u32", vLr, t3, 5, vLr)
        p.I("v_mul_u32_u24", vLw, K2_ROW, u1); p.I("v_lshl_add_u32", vLw, u2, 4, vLw)
        p.I("s_mul_i32", sT0, sW, 64 * K2_ROW); p.I("v_add_u32", vLw, sT0, vLw)
        p.I("v_lshlrev_b32", vZ, 2, lane)
        if cfg["hmask"]:
            p.I("s_mul_i32", sT0, sW, 7); p.I("s_lshr_b32", sT0, sT0, 1); p.I("s_lshl_b32", sT0, sT0, 2)
            p.I("s_mov_b32", sM56[0], 0xFFFF); p.I("s_mov_b32", sM56[1], 0)
            p.I("s_lshl_b64", sM56, sM56, sT0)
        else:
            p.I("s_mov_b32", sM56[0], -1); p.I("s_mov_b32", sM56[1], 0x00FFFFFF)
        p.I("s_lshl_b32", sFlag, sRB, 8); p.I("s_add_u32", sFlag, sFlag, HF_OFF)
        p.I("s_mov_b32", a0, 32 * 896)
        p.I("buffer_load_dwordx4", XV.sub(0, 4), vG, SX, 0, mods="offen")
        p.I("buffer_load_dwordx4", XV.sub(4, 4), vG, SX, a0, mods="offen")
        def bread(k):
            p.waittag(f"b{k}")
            for c in range(2):
                for pp in range(2):
                    p.I("ds_read_b64_tr_b16", bfrag(k).sub(4 * c + 2 * pp, 2), vT[c][1 if PO[k % NB] >= 7 else 0], mods=f"offset:{(PO[k % NB] - (7 if PO[k % NB] >= 7 else 0)) * PAGE + pp * 1024}", tag=f"r{k}")
        for k in range(NR):
            bread(k)
            if k >= 1 and nb[0] < cfg["bpre2"] and nb[0] - NB <= k - 1:
                p.waittag(f"r{k-1}"); bdma(p, nb[0]); nb[0] += 1
        while nb[0] < cfg["bpre2"] and nb[0] - NB <= NR - 1:
            p.waittag(f"r{NR-1}"); bdma(p, nb[0]); nb[0] += 1
        spin("H", vP, vZ, SWS, sFlag, mask=sM56, sleep=cfg["slh"])
        if cfg["inv"]: p.I("buffer_inv", mods="sc1")
        st.stamp(p)
        p.I("s_lshl_b32", sFlag, sRB, 7); p.I("s_add_u32", sFlag, sFlag, OF_OFF)
        p.I("v_lshlrev_b32", vZ, 2, u1)
        pool = list(AB) + RB[NR:]
        amap = {}
        def abuf(k): return amap[k]
        def aload(k):
            amap[k] = pool.pop(0)
            kk = k if k < 28 else k - 28
            for r in range(2):
                p.I("buffer_load_dwordx4", abuf(k).sub(4 * r, 4), VO[kk // 4], SWS, (sA if k < 28 else sAo)[r], mods=f"offen offset:{(kk % 4) * 1024} sc1")
        if cfg["atouch"]:
            p.I("v_lshrrev_b32", t1, 4, lane); p.I("v_lshlrev_b32", t1, 10, t1)
            p.I("v_bfe_u32", t2, lane, 3, 1); p.I("v_mul_u32_u24", t2, NKS * 1024, t2); p.I("v_add_u32", t1, t1, t2)
            p.I("v_and_b32", t2, 7, lane); p.I("v_lshl_add_u32", t1, t2, 7, t1)
            p.I("s_lshl_b32", sT0, sCB, 12); p.I("s_add_u32", sT0, sT0, sA[0])
        na = [0]
        while pool and na[0] < cfg["damax"]: aload(na[0]); na[0] += 1
        if NR == 0: bread(0)
        KO = cfg["ko"]
        kpoll = KO - cfg["pollahead"]
        for k in range(36):
            if NR <= k + 1 < 36: bread(k + 1)
            for r in range(2):
                for c in range(2):
                    p.I(MF, AC2[r][c], bfrag(k).sub(4 * c, 4), abuf(k).sub(4 * r, 4), 0 if k == 0 else AC2[r][c])
            if k == kpoll: p.I("buffer_load_dword", vP, vZ, SWS, sFlag, mods="offen sc1")
            pool.append(amap[k])
            if k < NR: pool.append(RB[k])
            while pool and na[0] < 28 and na[0] <= k + cfg["damax"]: aload(na[0]); na[0] += 1
            if k == KO:
                if cfg["stamps"] == 2: st.stamp(p)
                spin("O", vP, vZ, SWS, sFlag, first_loaded=True, sleep=8)
                if cfg["stamps"] == 2: st.stamp(p)
                for k2 in range(28, 36): aload(k2)
            c2 = 0
            while nb[0] < 36 and nb[0] <= k + cfg["bla"] and nb[0] - NB <= max(k, NR - 1) and c2 < 2:
                if not cfg.get("hackB"): bdma(p, nb[0])
                nb[0] += 1; c2 += 1
        p.I("s_barrier")
        for r in range(2):
            for c in range(2):
                for g in range(4):
                    p.I("ds_write_b128", vLw, AC2[r][c].sub(4 * g, 4), mods=f"offset:{r*32*K2_ROW + (c*32+8*g)*4}", tag="pw")
        p.waittag("pw")
        p.I("s_barrier")
        RD = V(64, 64)
        for pp in range(2):
            for w in range(4):
                for hh in range(2):
                    p.I("ds_read_b128", RD.sub(32 * pp + 8 * w + 4 * hh, 4), vLr, mods=f"offset:{w*64*K2_ROW + pp*32*K2_ROW + hh*16}")
        for pp in range(2):
            R = RD.sub(32 * pp, 32)
            for i in range(8): p.I("v_add_f32", R[i], R[i], R[8 + i])
            for i in range(8): p.I("v_add_f32", R[16 + i], R[16 + i], R[24 + i])
            Xr = XV.sub(4 * pp, 4); T = V(8, 8)
            for i in range(4):
                p.I("v_lshlrev_b32", T[2 * i], 16, Xr[i]); p.I("v_and_b32", T[2 * i + 1], 0xFFFF0000, Xr[i])
            for i in range(8): p.I("v_add_f32", R[i], R[i], R[16 + i])
            for i in range(8): p.I("v_add_f32", R[i], R[i], T[i])
            O = V(16 + 4 * pp, 4)
            for i in range(4): p.I("v_cvt_pk_bf16_f32", O[i], R[2 * i], R[2 * i + 1])
            p.I("buffer_store_dwordx4", O, vG, SO, 0 if pp == 0 else a0, mods="offen")
        p.label(f"P2_END_{uid}")
    else:
        if cfg["sprio"]: p.I("s_setprio", cfg["sprio"])
        tile_epi(p, ACC[0], sOut, 0)
        tile_epi(p, ACC[1], sOut2, 0)
        if cfg["sprio"] and cfg["sdrop"]: p.I("s_setprio", 0)
        K, Vv, PACC = ACC[2], ACC[3], ACC[4]
        qb = LT.sub(0, 8); VB = ACC[5].sub(0, 8); NEG = ACC[5].sub(8, 8); POS = LT.sub(0, 8)
        for i in range(8): p.I("v_cvt_pk_bf16_f32", qb[i], K[2 * i], K[2 * i + 1])
        p.I(MF, PACC, WPHI.sub(0, 4), qb.sub(0, 4), 0)
        p.I(MF, PACC, WPHI.sub(4, 4), qb.sub(4, 4), PACC)
        p.I("v_mov_b32", u3, 0x3F803F80)
        for r in range(8): p.I("v_cvt_pk_bf16_f32", VB[r], Vv[2 * r], Vv[2 * r + 1])
        for r in range(8): p.I("v_cndmask_b32", VB[r], VB[r], u3, sM28)
        set_hflag()
        if cfg["stamps"] == 2: st.stamp(p)
        PKS[0] = cfg["pks"]
        softmax_core(p, PACC, K, LT.sub(8, 8), POS, NEG, vMask, sL)
        PKS[0] = 0
        Tt = [K, PACC]
        for ft, src in enumerate((POS, NEG)):
            p.I(MF, Tt[ft], src.sub(0, 4), IDN.sub(0, 4), 0)
            p.I(MF, Tt[ft], src.sub(4, 4), IDN.sub(4, 4), Tt[ft])
        if cfg["sprio"] and cfg["sdrop"]: p.I("s_setprio", 3)
        p.I("v_lshlrev_b32", u4, 2, lane)
        PT = [LT.sub(0, 8), LT.sub(8, 8)]
        for ft in range(2):
            for r in range(8): p.I("v_cvt_pk_bf16_f32", PT[ft][r], Tt[ft][2 * r], Tt[ft][2 * r + 1])
        for ft in range(2):
            p.I(MF, Tt[ft], PT[ft].sub(0, 4), VB.sub(0, 4), 0)
            p.I(MF, Tt[ft], PT[ft].sub(4, 4), VB.sub(4, 4), Tt[ft])
        p.I("s_lshl_b32", sT0, sW, 13); p.I("s_add_u32", sT0, sT0, KVP_L - 4 * 8192)
        p.I("v_add_u32", u3, sT0, vSt)
        p.I("v_mov_b32", t1, KVL); p.I("v_mov_b32", t2, 1)
        for qd in range(8):
            p.I("ds_write_b128", u3, Tt[qd >> 2].sub(4 * (qd & 3), 4), mods=f"offset:{qd*1024}", tag="kva")
        p.waittag("kva")
        lbl = f"K1_{typ}_"
        p.raw("    s_mov_b64 exec, 1\n    ds_add_u32 v1, v2\n    s_mov_b64 exec, -1")
        p.raw(f"    s_mov_b32 s61, 0\n{lbl}LSPIN:\n    ds_read_b32 v3, v1\n    s_add_u32 s61, s61, 1\n    s_lshr_b32 s62, s61, 18\n    s_waitcnt lgkmcnt(0)\n    s_nop 1\n    v_readfirstlane_b32 s60, v3\n    s_nop 3\n    s_or_b32 s60, s60, s62\n    s_cmp_lt_u32 s60, 4\n    s_cbranch_scc1 {lbl}LSPIN")
        p.I("s_lshl_b32", sT0, sW, 11); p.I("s_sub_u32", sT0, sT0, 4 * 2048)
        p.I("s_add_u32", a0, sZ, sT0)
        p.I("s_add_u32", sT0, sT0, KVP_L)
        p.I("v_add_u32", t1, sT0, u4)
        R2 = V(128, 32)
        for e in range(8):
            p.I("ds_read2st64_b32", R2.sub(4 * e, 2), t1, mods=f"offset0:{e} offset1:{e+32}")
            p.I("ds_read2st64_b32", R2.sub(4 * e + 2, 2), t1, mods=f"offset0:{e+64} offset1:{e+96}")
        for e in range(8):
            p.I("v_add_f32", R2[4 * e], R2[4 * e], R2[4 * e + 1]); p.I("v_add_f32", R2[4 * e + 2], R2[4 * e + 2], R2[4 * e + 3])
            p.I("v_add_f32", R2[4 * e], R2[4 * e], R2[4 * e + 2])
            p.I("buffer_atomic_add_f32", R2[4 * e], u4, SWS, a0, mods=f"offen offset:{e * 256}", tag="kat")
        sKF, sRT, sQF = S(64), S(65), S(66)
        p.I("s_lshl_b32", sRT, sR, 2); p.I("s_add_u32", sRT, sRT, sW); p.I("s_sub_u32", sRT, sRT, 4)
        p.I("s_lshl_b32", sKF, sJ, 8); p.I("s_add_u32", sKF, sKF, KF_OFF)
        p.I("s_lshl_b32", sT0, sRT, 2); p.I("s_add_u32", sT0, sT0, sKF)
        if cfg["stamps"] == 2: st.stamp(p)
        p.waittag("kat")
        p.I("buffer_store_dword", vOne, vLn0, SWS, sT0, mods="offen sc1")
        st.stamp(p)
        p.I("s_lshr_b32", sQF, sRT, 1); p.I("s_lshl_b32", sQF, sQF, 8)
        p.I("s_lshr_b32", sT0, sJ, 3); p.I("s_lshl_b32", sT0, sT0, 4); p.I("s_add_u32", sQF, sQF, sT0); p.I("s_add_u32", sQF, sQF, HF_OFF + 224)
        p.I("v_and_b32", t1, 12, u4)
        spin("Q", t2, t1, SWS, sQF, sleep=cfg["slk"])
        QB = V(8, 8); KA = V(64, 32); P = V(96, 16); E2 = V(112, 16); TM = V(16, 8); POS, NEG = V(24, 8), V(32, 8); KFr = V(40, 16)
        p.I("s_lshl_b32", sT0, sRT, 15); p.I("s_lshl_b32", sT1, sJ, 11); p.I("s_add_u32", sT0, sT0, sT1); p.I("s_add_u32", sT0, sT0, QF_OFF)
        for s in range(2): p.I("buffer_load_dwordx4", QB.sub(4 * s, 4), vSt, SWS, sT0, mods=f"offen offset:{s*1024} sc1")
        p.I(MF, P, WPHI.sub(0, 4), QB.sub(0, 4), 0)
        p.I(MF, P, WPHI.sub(4, 4), QB.sub(4, 4), P)
        softmax_core(p, P, E2, TM, POS, NEG, vMask, sL)
        spin("K", t2, u4, SWS, sKF, sleep=cfg["slk"])
        st.stamp(p)
        p.I("s_add_u32", sT1, sZ, 4096)
        for qd in range(8): p.I("buffer_load_dwordx4", KA.sub(4 * qd, 4), vSt, SWS, sZ if qd < 4 else sT1, mods=f"offen offset:{(qd&3)*1024} sc1")
        for ft in range(2):
            for i in range(12, 16): p.I("v_mul_f32", KA[16 * ft + i], KA[16 * ft + i], vMask)
        for i in range(16): p.I("v_cvt_pk_bf16_f32", KFr[i], KA[2 * i], KA[2 * i + 1])
        N = P
        for s in range(4):
            p.I(MF, N, KFr.sub(4 * s, 4), (POS if s < 2 else NEG).sub(4 * (s & 1), 4), 0 if s == 0 else N)
        d0, d1 = TM[0], TM[1]
        p.I("s_mul_i32", sT0, sRT, NKS * 1024); p.I("s_lshl_b32", sT2, sJ, 11); p.I("s_add_u32", sT0, sT0, sT2); p.I("s_add_u32", sT0, sT0, 112 * 1024)
        p.I("s_lshl_b32", sT1, sRT, 6); p.I("s_lshl_b32", sT2, sJ, 2); p.I("s_add_u32", sT1, sT1, sT2); p.I("s_add_u32", sT1, sT1, OF_OFF)
        p.I("v_mov_b32", d0, N[12]); p.I("v_mov_b32", d1, N[12])
        p.I("v_permlane32_swap_b32", d0, d1)
        p.I("v_add_f32", d1, f2u(1e-6), d1)
        p.I("v_rcp_f32", d1, d1)
        for i in range(16): p.I("v_mul_f32", N[i], N[i], d1)
        T = QB
        for i in range(8): p.I("v_cvt_pk_bf16_f32", T[i], N[2 * i], N[2 * i + 1])
        for s in range(2): p.I("buffer_store_dwordx4", T.sub(4 * s, 4), vSt, SWS, sT0, mods=f"offen offset:{s*1024} sc1", tag="ost")
        p.waittag("ost")
        p.I("buffer_store_dword", vOne, vLn0, SWS, sT1, mods="offen sc1")
    if cfg["stamps"] != 2: st.stamp(p)
    st.stamp(p, True)
    st.flush(p, SWS, sW, 8, t1, t3)
    if cfg.get("dbgwg") is not None and grp == 0:
        p.I("s_lshl_b32", S(100), S(2), 3); p.I("s_add_u32", S(100), S(100), sW)
        p.I("s_cmp_eq_u32", S(100), cfg["dbgwg"] * 8)
        p.I("s_cselect_b32", S(100), 0, BIG)
        p.I("v_mov_b32", t3, 0)
        for i in range(1, st.n):
            p.I("s_sub_u32", S(101), S(80 + 2 * i), S(80))
            p.I("v_mov_b32", t1, S(101))
            p.I("buffer_store_dword", t1, t3, SD, S(100), mods=f"offen offset:{4*i}")
            p.I("s_nop", 1)
    p.I("s_endpgm")

K2_ROW = 272
def build(cfg):
    hdr = open("cdna_kernels/" + NAME + ".s.ref").read().split("\n")
    head = [l for l in hdr if l.startswith(";") and "@launch" not in l]
    head.append(f"; @launch grid=(256,1,1) block=(512,1,1) lds={K1_LDS}")
    out = "\n".join(head) + '\n.amdgcn_target "amdgcn-amd-amdhsa--gfx950"\n.text\n'
    descs = ""
    for g in (gen_k1,):
        t, d = g(cfg); out += t; descs += ".p2align 6\n" + d
    out += "CODE_END:\n    s_endpgm\n" + '.section .rodata,"a"\n' + descs
    if cfg["align"]:
        import align
        out, a, b = align.align(out, cfg["minrun"])
        print("align: promoted", a, "nops", b)
    return out

if __name__ == "__main__":
    cfg = dict(k2bar=1, k1map=0, k2depth=5, stamps=0, rot=1, pollahead=2, sc1=1, npre=3, la=5, xbar=2, w2it=10, ke=4, dmaper=4, bahead=3, front=85, cpref=1, wdpf=3, wdmode=1, btouch=0, atouch=0, l2pf=0, pk=1, pks=1, ko=24, early=0, damax=8, bloop=12, bstart=9, nreg=12, bpre2=27, l2n=8, l2s=1, sdrop=1, hmask=1, bearly=15, bpre=15, bla=15, slh=4, slk=16, inv=0, da=4, sprio=1, jcont=1, xrot=1, kvodd=1, spread=1, pp=1, ppin=0, prio=0, align=1, minrun=3, attprio=1)
    for a in sys.argv[2:]:
        k, v = a.split("="); cfg[k] = int(v)
    open(sys.argv[1], "w").write(build(cfg))
```

```python
import sys, struct
from asmgen import *
from gen2 import Stamps, srd, f2u, LOG2E, GC1, GC2, gelu_tile, NAME, MF, BIG, NKS, AF_OFF, W2F_OFF, WS_BYTES, DBG_OFF
QF_OFF = 0x0C00000
FLG_OFF = 0x1100000
KVA_OFF = 0x1000000

def code_prefetch(p, start, end, vd, va, sb, sa, sc):
    lbl = "CP_L"
    p.raw(f"    s_getpc_b64 {sb}\n{lbl}:")
    p.raw(f"    s_sub_u32 {sb[0]}, {sb[0]}, {lbl}-{start}\n    s_subb_u32 {sb[1]}, {sb[1]}, 0")
    p.I("s_lshr_b32", sa, S(2), 3); p.I("s_lshl_b32", sc, S(3), 5); p.I("s_add_u32", sa, sa, sc); p.I("s_lshl_b32", sa, sa, 10)
    p.raw(f"    s_cmp_lt_u32 {sa}, {end}-{start}-1024\n    s_cbranch_scc0 {lbl}_SKIP")
    p.I("v_lshl_add_u32", va, V(0), 4, sa)
    p.raw(f"    global_load_dwordx4 {vd}, {va}, {sb}\n{lbl}_SKIP:")

def gelu_pk(p, acc, t, out, KC):
    P = lambda r, j: r.sub(2 * j, 2)
    for j in range(4): p.I("v_pk_mul_f32", P(t, j), P(acc, j), P(acc, j))
    for j in range(4): p.I("v_pk_fma_f32", P(t, j), P(t, j), KC, KC, mods="op_sel:[0,0,1] op_sel_hi:[1,0,1]")
    for j in range(4): p.I("v_pk_mul_f32", P(t, j), P(t, j), P(acc, j))
    for j in range(4):
        p.I("v_exp_f32", t[2 * j], t[2 * j]); p.I("v_exp_f32", t[2 * j + 1], t[2 * j + 1])
        p.I("v_pk_mul_f32", P(acc, 4 + j), P(acc, j), P(acc, 4 + j))
    for j in range(4): p.I("v_pk_add_f32", P(t, j), P(t, j), 1.0, mods="op_sel_hi:[1,0]")
    for j in range(8): p.I("v_rcp_f32", t[j], t[j])
    for j in range(4): p.I("v_pk_mul_f32", P(t, j), P(t, j), P(acc, 4 + j))
    for j in range(4): p.I("v_cvt_pk_bf16_f32", out[j], t[2 * j], t[2 * j + 1])

def split(L, n):
    k = (len(L) + n - 1) // n
    return [L[i * k:(i + 1) * k] for i in range(n)]

PKS = [0]
def softmax_core(p, P, E, tmp, pos, neg, vmask, sL):
    mx, mn, t0, t1, sp, sn, sp2, sn2 = [tmp[i] for i in range(8)]
    p.I("v_max3_f32", mx, P[0], P[1], P[2])
    p.I("v_min3_f32", mn, P[0], P[1], P[2])
    for i in range(6):
        p.I("v_max3_f32", mx, mx, P[3 + 2 * i], P[4 + 2 * i])
        p.I("v_min3_f32", mn, mn, P[3 + 2 * i], P[4 + 2 * i])
    p.I("v_max_f32", mx, mx, P[15])
    p.I("v_min_f32", mn, mn, P[15])
    p.I("v_mov_b32", t0, mx)
    p.I("v_mov_b32", t1, mn)
    p.I("v_permlane32_swap_b32", mx, t0)
    p.I("v_permlane32_swap_b32", mn, t1)
    p.I("v_max_f32", mx, mx, t0)
    p.I("v_min_f32", mn, mn, t1)
    p.I("v_mul_f32", mx, sL, mx)
    p.I("v_mul_f32", mn, sL, mn)
    if PKS[0]:
        p.I("v_mov_b32", t0, sL)
        for i in range(8): p.I("v_pk_fma_f32", E.sub(2 * i, 2), P.sub(2 * i, 2), tmp.sub(2, 2), tmp.sub(0, 2), mods="op_sel:[0,0,1] op_sel_hi:[1,0,1] neg_lo:[1,0,0] neg_hi:[1,0,0]")
        for i in range(8): p.I("v_pk_fma_f32", P.sub(2 * i, 2), P.sub(2 * i, 2), tmp.sub(2, 2), tmp.sub(0, 2), mods="op_sel_hi:[1,0,0] neg_lo:[0,0,1] neg_hi:[0,0,1]")
    else:
        for i in range(16): p.I("v_fma_f32", E[i], Neg(P[i]), sL, mn)
        for i in range(16): p.I("v_fma_f32", P[i], P[i], sL, Neg(mx))
    for i in range(16): p.I("v_exp_f32", E[i], E[i])
    for i in range(16): p.I("v_exp_f32", P[i], P[i])
    p.I("v_add_f32", sn, E[0], E[1]); p.I("v_add_f32", sn2, E[2], E[3])
    p.I("v_add_f32", sp, P[0], P[1]); p.I("v_add_f32", sp2, P[2], P[3])
    for i in range(4, 12, 2):
        p.I("v_add_f32", sn, sn, E[i]); p.I("v_add_f32", sn2, sn2, E[i + 1])
        p.I("v_add_f32", sp, sp, P[i]); p.I("v_add_f32", sp2, sp2, P[i + 1])
    for i in range(12, 16, 2):
        p.I("v_fmac_f32", sn, E[i], vmask); p.I("v_fmac_f32", sn2, E[i + 1], vmask)
        p.I("v_fmac_f32", sp, P[i], vmask); p.I("v_fmac_f32", sp2, P[i + 1], vmask)
    p.I("v_add_f32", sp, sp, sp2); p.I("v_add_f32", sn, sn, sn2)
    p.I("v_mov_b32", t0, sp); p.I("v_mov_b32", t1, sn)
    p.I("v_permlane32_swap_b32", sp, t0)
    p.I("v_permlane32_swap_b32", sn, t1)
    p.I("v_add_f32", sp, sp, t0); p.I("v_add_f32", sn, sn, t1)
    p.I("v_rcp_f32", sp, sp); p.I("v_rcp_f32", sn, sn)
    if PKS[0]:
        for i in range(8): p.I("v_pk_mul_f32", P.sub(2 * i, 2), P.sub(2 * i, 2), tmp.sub(4, 2), mods="op_sel_hi:[1,0]")
        for i in range(8): p.I("v_pk_mul_f32", E.sub(2 * i, 2), E.sub(2 * i, 2), tmp.sub(4, 2), mods="op_sel:[0,1] op_sel_hi:[1,1]")
    else:
        for i in range(16): p.I("v_mul_f32", P[i], P[i], sp)
        for i in range(16): p.I("v_mul_f32", E[i], E[i], sn)
    for i in range(8): p.I("v_cvt_pk_bf16_f32", pos[i], P[2 * i], P[2 * i + 1])
    for i in range(8): p.I("v_cvt_pk_bf16_f32", neg[i], E[2 * i], E[2 * i + 1])

def wphi_gather(q, WT, SPHI, sHead, sT, lane, u1, u2, u3, u4, u5):
    q.I("v_and_b32", u1, 31, lane); q.I("v_lshrrev_b32", u2, 5, lane); q.I("v_mov_b32", u5, BIG)
    q.I("v_subrev_u32", u3, 24, u1)
    q.I("v_cmp_lt_u32", VCC, 27, u1)
    q.I("v_cndmask_b32", u3, u1, u3, VCC)
    q.I("v_lshlrev_b32", u3, 1, u3)
    q.I("v_mul_u32_u24", u4, 4 * 56, u2)
    q.I("v_add_u32", u3, u3, u4)
    q.I("s_mul_i32", sT, sHead, 1568)
    q.I("v_add_u32", u3, sT, u3)
    q.I("v_cmp_eq_u32", VCC, 1, u2)
    q.I("v_cndmask_b32", u4, u3, u5, VCC)
    for s in range(2):
        for j in range(8):
            d0 = 16 * s + 8 * (j >> 2) + (j & 3)
            q.I("buffer_load_ushort", WT[8 * s + j], u4 if d0 + 4 >= 28 else u3, SPHI, 0, mods=f"offen offset:{d0*56}")

XYS = 16384; NXY = 6; KVB = XYS * NXY; PAGE = 8192; NKV = 3
ASB = KVB + NKV * PAGE; ABLK = 32 * 528
K1_LDS = ASB + 2 * ABLK
KVL = ASB + 32768
KVROW = 320
KVP_L = ASB
NB = 15; BRING = NB * 2048
HF_OFF = FLG_OFF; KF_OFF = FLG_OFF + 8192; OF_OFF = FLG_OFF + 12288

lane = V(0)
XR = V(8, 56)
def xr(b, g): return XR.sub(8 * b + 4 * g, 4)
ACC = [V(64 + 16 * i, 16) for i in range(6)]
BF = [[V(160 + 12 * s + 4 * t, 4) for t in range(3)] for s in range(2)]
AFr = [[V(184 + 8 * s + 4 * i, 4) for i in range(2)] for s in range(2)]
LT = V(200, 16)
vBt = [[V(216 + 2 * t), V(217 + 2 * t)] for t in range(3)]
vAw, vAr, vD0, vDX, vDY, vSt = [V(222 + i) for i in range(6)]
vR = [V(228), V(229)]; vNM = [V(230), V(231)]
vMask, vC2, vTk, vL0 = V(232), V(233), V(234), V(235)
u1, u2, u3, u4, u5 = [V(236 + i) for i in range(5)]
WPHI = V(244, 8)
sW = S(3); sR, sJ, sRot = S(26), S(27), S(72)
SX, SQKV, SXs, SYs, SWS, SPHI, SD, SW2 = [S(28 + 4 * i, 4) for i in range(8)]
sT0, sT1, sT2, sT3 = S(60), S(61), S(62), S(63)
sO0, sOX, sLdsW, sL = S(64), S(65), S(66), S(67)
sM28 = S(68, 2)
sOut, sW2d = S(70), S(71)
sZ, sFl, sStr, sEnd = S(73), S(74), S(75), S(76)
a0, a1, a2 = S(77), S(78), S(79)
sG = S(58)

def dma_xy(q, c):
    slot = (c % NXY) * XYS
    q.I("s_add_u32", M0, sLdsW, slot)
    q.I("buffer_load_dwordx4", vDX, SXs, sOX, mods="offen lds", tag=f"dma{c}")
    q.I("s_add_u32", M0, sLdsW, slot + PAGE)
    q.I("buffer_load_dwordx4", vDY, SYs, sOX, mods="offen lds", tag=f"dma{c}")
    if c < 13:
        q.I("s_add_u32", sOX, sOX, sStr)
        if c % 2 == 1:
            q.I("s_cmp_eq_u32", sOX, sEnd); q.I("s_cselect_b32", sOX, 0, sOX)
def dma_kv(q, b):
    q.I("s_add_u32", M0, sLdsW, KVB + (b % NKV) * PAGE)
    q.I("buffer_load_dwordx4", vD0, SQKV, sO0, mods="offen lds", tag=f"kv{b}")
    if b < 6:
        q.I("s_add_u32", sO0, sO0, 64 * 2688); q.I("s_cmp_eq_u32", sO0, 448 * 2688); q.I("s_cselect_b32", sO0, 0, sO0)
def ln_unit(q, b, g):
    x = xr(b, g); T = LT.sub(0, 8)
    for i in range(4):
        q.I("v_lshlrev_b32", T[2 * i], 16, x[i])
        q.I("v_and_b32", T[2 * i + 1], 0xFFFF0000, x[i])
    for i in range(8): q.I("v_fma_f32", T[i], T[i], vR[g], vNM[g])
    for i in range(4): q.I("v_cvt_pk_bf16_f32", x[i], T[2 * i], T[2 * i + 1])
def a_write(q, b, g):
    q.I("ds_write_b128", vAw, xr(b, g), mods=f"offset:{(b % 2) * ABLK + g * 128}", tag=f"aw{b}")

def k1_common(p, cfg, st):
    t1, t2, t3, t4, t5, t6, t7 = [V(i) for i in range(1, 8)]
    p.I("s_cmp_ge_u32", S(2), 256)
    p.raw("    s_cbranch_scc1 K1_END")
    p.I("s_load_dwordx8", S(4, 8), S(0, 2), 0)
    p.I("s_load_dwordx8", S(12, 8), S(0, 2), 32)
    p.I("s_load_dwordx4", S(20, 4), S(0, 2), 64)
    p.I("s_load_dwordx2", S(24, 2), S(0, 2), 80)
    st.stamp(p, True)
    if cfg["stamps"] != 2: st.stamp(p)
    p.I("v_lshrrev_b32", V(1), 6, V(0))
    p.I("v_readfirstlane_b32", S(3), V(1))
    p.I("v_and_b32", V(0), 63, V(0))
    p.I("s_and_b32", sT0, S(2), 7); p.I("s_lshr_b32", sT1, S(2), 3)
    lr = {0: 3, 2: 2, 1: 1}[cfg["k1map"]]
    nxr = 16 >> lr
    p.I("s_and_b32", sT2, sT0, nxr - 1); p.I("s_lshl_b32", sT2, sT2, lr)
    p.I("s_and_b32", sT3, sT1, (1 << lr) - 1); p.I("s_add_u32", sR, sT2, sT3)
    p.I("s_lshr_b32", sT2, sT0, 4 - lr)
    p.I("s_lshr_b32", sT1, sT1, lr)
    if cfg["jcont"]: p.I("s_lshl_b32", sJ, sT2, 5 - lr); p.I("s_add_u32", sJ, sJ, sT1)
    else: p.I("s_lshl_b32", sJ, sT1, lr - 1); p.I("s_add_u32", sJ, sJ, sT2)
    p.I("s_lshl_b32", sRot, sT3, 3 - lr)
    p.I("s_and_b32", a0, sT0, nxr - 1); p.I("s_add_u32", sRot, sRot, a0)
    p.I("s_cmp_ge_u32", sRot, 7); p.I("s_cselect_b32", sT2, 7, 0); p.I("s_sub_u32", sRot, sRot, sT2)
    p.I("s_cmp_ge_u32", sRot, 7); p.I("s_cselect_b32", sT2, 7, 0); p.I("s_sub_u32", sRot, sRot, sT2)
    if cfg["rot"] == 0: p.I("s_mov_b32", sRot, 0)
    elif cfg["rot"] == 2: p.I("s_and_b32", sRot, sT3, 1); p.I("s_mul_i32", sRot, sRot, 3)
    elif cfg["rot"] == 3: p.I("s_and_b32", sRot, sT3, 3); p.I("s_lshl_b32", sRot, sRot, 1)
    elif cfg["rot"] == 4: p.I("s_and_b32", sRot, sT3, 1)
    if lr == 3: p.I("s_lshl_b32", sG, sT1, 1)
    else: p.I("s_mov_b32", sG, sT1)
    if not cfg["xrot"]: p.I("s_mov_b32", sG, 0)
    p.I("s_add_u32", sG, sG, sW); p.I("s_and_b32", sG, sG, 7)
    r8, k8 = t1, t2
    p.I("v_lshrrev_b32", r8, 3, lane)
    p.I("v_and_b32", k8, 7, lane)
    p.I("s_lshl_b32", sT0, sR, 7); p.I("s_lshl_b32", sT1, sG, 4); p.I("s_add_u32", sT0, sT0, sT1)
    p.I("v_add_u32", t3, sT0, r8)
    p.I("v_mul_u32_u24", t3, 896, t3)
    p.I("v_lshl_add_u32", t3, k8, 4, t3)
    p.I("v_add_u32", t4, 8 * 896, t3)
    p.I("s_lshl_b32", sT0, sRot, 7)
    p.I("v_mov_b32", LT[8], t3); p.I("v_mov_b32", LT[9], t4); p.I("s_mov_b32", S(57), sT0)
    def xloads():
        srd(p, SX.n, 4, 2048 * 896)
        for b in range(7):
            p.I("buffer_load_dwordx4", xr(b, 0), LT[8], SX, S(57), mods="offen")
            p.I("buffer_load_dwordx4", xr(b, 1), LT[9], SX, S(57), mods="offen")
            if b < 6:
                p.I("s_add_u32", S(57), S(57), 128); p.I("s_cmp_eq_u32", S(57), 896); p.I("s_cselect_b32", S(57), 0, S(57))
    EARLY = cfg["early"]
    if EARLY != 2: xloads()
    if cfg["xbar"] == 2 and not EARLY:
        p.I("s_cmp_lt_u32", sW, 4); p.raw("    s_cbranch_scc1 K1_NB0"); p.I("s_barrier"); p.label("K1_NB0")
    if cfg["cpref"] and EARLY != 2: code_prefetch(p, NAME + "_kernel", "CODE_END", V(64, 4), t3, S(56, 2), sT0, sT1)
    srd(p, SQKV.n, 6, 448 * 2688)
    p.I("s_lshl_b32", sT1, sJ, 8)
    p.I("s_sub_u32", sT2, sJ, 14); p.I("s_mul_i32", sT2, sT2, 448)
    p.I("s_mov_b32", a0, 2688); p.I("s_mov_b32", a1, 448 * 2688)
    p.I("s_cmp_lt_u32", sJ, 14)
    p.I("s_cselect_b32", SXs[0], S(14), S(6)); p.I("s_cselect_b32", SXs[1], S(15), S(7))
    p.I("s_cselect_b32", SYs[0], S(16), S(6)); p.I("s_cselect_b32", SYs[1], S(17), S(7))
    p.I("s_cselect_b32", a0, 3584, a0)
    p.I("s_cselect_b32", sEnd, 448 * 3584, a1)
    p.I("s_cselect_b32", sT1, sT1, sT2)
    p.I("s_cselect_b32", a1, 2, 0)
    p.I("s_cselect_b32", a2, 0, 224)
    p.I("s_and_b32", SXs[1], SXs[1], 0xFFFF); p.I("s_and_b32", SYs[1], SYs[1], 0xFFFF)
    p.I("s_mov_b32", SXs[2], sEnd); p.I("s_mov_b32", SYs[2], sEnd)
    p.I("s_mov_b32", SXs[3], 0x20000); p.I("s_mov_b32", SYs[3], 0x20000)
    p.I("s_lshl_b32", sStr, a0, 5)
    p.I("s_mul_i32", sOX, sRot, sStr); p.I("s_lshl_b32", sOX, sOX, 1)
    p.I("v_lshrrev_b32", t3, 4, lane)
    p.I("v_and_b32", t4, 15, lane)
    p.I("v_lshlrev_b32", t5, 2, t3); p.I("v_xor_b32", t4, t4, t5)
    p.I("s_lshl_b32", sT0, sW, 2)
    p.I("v_add_u32", t3, sT0, t3)
    p.I("v_mul_u32_u24", t3, a0, t3)
    p.I("v_add_u32", t3, sT1, t3)
    p.I("v_lshl_add_u32", vDX, t4, 4, t3)
    p.I("v_xor_b32", t4, a1, t4)
    p.I("v_lshl_add_u32", vDY, t4, 4, t3)
    p.I("v_add_u32", vDY, a2, vDY)
    p.I("s_lshl_b32", sLdsW, sW, 10)
    p.I("v_bfe_u32", t5, r8, 1, 1)
    p.I("v_lshlrev_b32", t5, 2, t5)
    p.I("v_xor_b32", t5, t5, k8)
    p.I("s_lshl_b32", sT0, sW, 3)
    p.I("v_add_u32", t6, sT0, r8)
    p.I("v_lshrrev_b32", t3, 2, t5); p.I("v_mul_u32_u24", t3, 896, t3)
    p.I("v_and_b32", t4, 3, t5); p.I("v_lshl_add_u32", t3, t4, 4, t3)
    p.I("v_mul_u32_u24", t4, 2688, t6); p.I("v_add_u32", t3, t3, t4)
    p.I("s_mul_i32", sT1, sJ, 56); p.I("s_add_u32", sT1, sT1, 896)
    p.I("v_add_u32", vD0, sT1, t3)
    p.I("s_mul_i32", sO0, sRot, 64 * 2688)
    if EARLY == 1: p.I("s_barrier")
    if EARLY:
        dma_xy(p, 0); dma_kv(p, 0)
        if EARLY == 2:
            xloads()
            if cfg["cpref"]: code_prefetch(p, NAME + "_kernel", "CODE_END", V(64, 4), t3, S(56, 2), sT0, sT1)
        dma_xy(p, 1)
    p.I("v_mul_u32_u24", vAw, 528, k8)
    p.I("v_lshl_add_u32", vAw, r8, 4, vAw)
    p.I("s_lshr_b32", sT0, sG, 1); p.I("s_mul_i32", sT0, sT0, 8 * 528)
    p.I("s_and_b32", sT1, sG, 1); p.I("s_lshl_b32", sT2, sT1, 8)
    p.I("s_add_u32", sT0, sT0, sT2); p.I("s_add_u32", sT0, sT0, ASB)
    p.I("v_add_u32", vAw, sT0, vAw)
    p.I("s_and_b32", sT1, sW, 1)
    srd(p, SWS.n, 24, WS_BYTES)
    p.I("v_lshlrev_b32", vSt, 4, lane)
    p.I("v_and_b32", u1, 31, lane)
    p.I("v_lshrrev_b32", u2, 5, lane)
    p.I("v_mul_u32_u24", vAr, 528, u2)
    p.I("v_lshl_add_u32", vAr, u1, 4, vAr)
    p.I("s_mul_i32", sT2, sT1, 16 * 528); p.I("s_add_u32", sT2, sT2, ASB)
    p.I("v_add_u32", vAr, sT2, vAr)
    p.I("v_mov_b32", vC2, f2u(GC2))
    sm = [LT[0], LT[1]]; sq = [LT[2], LT[3]]; ones = LT[4]
    p.I("v_mov_b32", ones, 0x3F803F80)
    for r in sm + sq: p.I("v_mov_b32", r, 0)
    for b in range(7):
        for g in range(2):
            for i in range(4):
                p.I("v_dot2c_f32_bf16", sm[g], xr(b, g)[i], ones)
                p.I("v_dot2c_f32_bf16", sq[g], xr(b, g)[i], xr(b, g)[i])
    for mod in ("quad_perm:[1,0,3,2]", "quad_perm:[2,3,0,1]", "row_half_mirror"):
        for r in sm + sq:
            p.I("v_add_f32_dpp", r, r, r, mods=mod + " row_mask:0xf bank_mask:0xf")
    for g in range(2):
        p.I("v_mul_f32", sm[g], f2u(1.0 / 448), sm[g])
        p.I("v_mul_f32", sq[g], f2u(1.0 / 448), sq[g])
    for g in range(2): p.I("v_fma_f32", sq[g], Neg(sm[g]), sm[g], sq[g])
    for g in range(2): p.I("v_max_f32", sq[g], 0, sq[g])
    for g in range(2): p.I("v_add_f32", sq[g], f2u(1e-5), sq[g])
    for g in range(2): p.I("v_rsq_f32", vR[g], sq[g])
    for g in range(2): p.I("v_mul_f32_e64", vNM[g], Neg(sm[g]), vR[g])
    st.stamp(p)
    if not EARLY:
        p.I("s_lshr_b32", a0, sStr, 1)
        if cfg["xbar"] == 2:
            p.I("s_cmp_ge_u32", sW, 4); p.raw("    s_cbranch_scc1 K1_NB1"); p.I("s_barrier"); p.label("K1_NB1")
        p.I("s_cmp_ge_u32", sW, 4)
        p.raw("    s_cbranch_scc1 K1_NODMA")
        p.I("s_mov_b32", a1, sOX)
        for c in range(2):
            for hh in range(2):
                if hh: p.I("s_add_u32", a2, a1, a0)
                so = a2 if hh else a1
                p.I("s_add_u32", M0, sLdsW, c * XYS + hh * 4096)
                p.I("buffer_load_dwordx4", vDX, SXs, so, mods="offen lds", tag=f"dma{c}")
                p.I("s_add_u32", M0, sLdsW, c * XYS + PAGE + hh * 4096)
                p.I("buffer_load_dwordx4", vDY, SYs, so, mods="offen lds", tag=f"dma{c}")
            if c == 0:
                p.I("s_add_u32", a1, a1, sStr)
                p.I("s_add_u32", M0, sLdsW, KVB)
                p.I("buffer_load_dwordx4", vD0, SQKV, sO0, mods="offen lds", tag="kv0")
                if not cfg["fast0"]:
                    p.I("s_add_u32", a2, sO0, 32 * 2688)
                    p.I("s_add_u32", M0, sLdsW, KVB + 4096)
                    p.I("buffer_load_dwordx4", vD0, SQKV, a2, mods="offen lds", tag="kv0")
            elif cfg["fast0"]:
                p.I("s_add_u32", a2, sO0, 32 * 2688)
                p.I("s_add_u32", M0, sLdsW, KVB + 4096)
                p.I("buffer_load_dwordx4", vD0, SQKV, a2, mods="offen lds", tag="dma1")
        p.label("K1_NODMA")
        p.I("s_add_u32", sOX, sOX, sStr); p.I("s_add_u32", sOX, sOX, sStr)
        p.I("s_cmp_eq_u32", sOX, sEnd); p.I("s_cselect_b32", sOX, 0, sOX)
        p.I("s_add_u32", sO0, sO0, 64 * 2688); p.I("s_cmp_eq_u32", sO0, 448 * 2688); p.I("s_cselect_b32", sO0, 0, sO0)
    ln_unit(p, 0, 0); a_write(p, 0, 0); ln_unit(p, 0, 1); a_write(p, 0, 1)
    for c in range(2, cfg["npre"]): dma_xy(p, c)
    dma_kv(p, 1)
    p.I("s_cmp_ge_u32", sJ, 14)
    p.raw("    s_cbranch_scc1 K1_Q")
    p.I("s_cmp_ge_u32", S(3), 4)
    p.raw("    s_cbranch_scc1 K1_F1")

def gen_k1(cfg):
    name = NAME + "_kernel"
    txt = kernel_header(name)
    first = True
    for typ in ("F", "Q"):
        for grp in (0, 1):
            p = Prog(); st = Stamps(cfg["stamps"], 0)
            if cfg["stamps"] == 2:
                o2 = st.stamp
                st.stamp = lambda pp, real=False, o2=o2: o2(pp, True)
            if cfg.get("its") is not None:
                orig = st.stamp
                def stamp2(pp, real=False, force=False, orig=orig):
                    if real or force: orig(pp, real)
                st.stamp = stamp2
            k1_common(p, cfg, st)
            mark = p.raw("; ---- role code ----")
            if typ == "Q" and grp == 0:
                p.label("K1_Q"); p.I("s_cmp_ge_u32", S(3), 4); p.raw("    s_cbranch_scc1 K1_Q1")
            elif grp == 1: p.label(f"K1_{typ}1")
            k1_role(p, typ, grp, cfg, st)
            L = finalize(p)
            k = L.index(mark)
            txt += render(L if first else L[k:])
            first = False
    txt += "K1_END:\n    s_endpgm\n"
    return txt, kernel_desc(name, 256)

def k1_role(p, typ, grp, cfg, st):
    t1, t2, t3, t4, t5, t6, t7 = [V(i) for i in range(1, 8)]
    stp = " sc1" if cfg["sc1"] else ""
    NT = 3
    ch, r4, cq = t3, t4, t5
    p.I("v_bfe_u32", ch, lane, 4, 1); p.I("v_bfe_u32", r4, lane, 2, 2); p.I("v_and_b32", cq, 3, lane)
    p.I("v_lshl_add_u32", t6, u2, 3, r4)
    p.I("v_lshlrev_b32", cq, 3, cq)
    p.I("v_lshl_add_u32", t1, ch, 5, cq)
    p.I("v_lshlrev_b32", t7, 6, r4)
    p.I("s_lshr_b32", sT0, sW, 1); p.I("s_and_b32", sT0, sT0, 1)
    if grp == 0: p.I("s_mul_i32", sT1, sT0, 3)
    else: p.I("s_add_u32", sT1, sT0, 6)
    nxy = 3 if grp == 0 else 1
    for t in range(nxy):
        if t: p.I("s_add_u32", sT1, sT1, 1)
        if typ == "F":
            p.I("s_lshl_b32", sT2, sT1, 5)
            p.I("v_xor_b32", t2, sT2, t1); p.I("v_xor_b32", t2, t2, t7)
            p.I("v_lshl_add_u32", t2, ch, 13, t2)
        else:
            p.I("s_and_b32", sT2, sT1, 3); p.I("s_mul_i32", sT2, sT2, 56)
            p.I("s_lshr_b32", sT3, sT1, 2); p.I("s_lshl_b32", sT3, sT3, 13)
            p.I("v_add_u32", t2, sT2, t1); p.I("v_xor_b32", t2, t2, t7)
            p.I("v_add_u32", t2, sT3, t2)
        p.I("v_lshl_add_u32", vBt[t][0], t6, 8, t2)
        p.I("v_add_u32", vBt[t][1], 3 * XYS, vBt[t][0])
    if grp == 1:
        p.I("v_bfe_u32", t7, lane, 3, 1); p.I("v_lshlrev_b32", t7, 6, t7)
        p.I("v_xor_b32", t2, t1, t7)
        p.I("v_lshl_add_u32", t2, t6, 7, t2)
        p.I("v_add_u32", vBt[1][0], KVB, t2)
        p.I("v_xor_b32", vBt[2][0], 64, vBt[1][0])
    p.I("s_and_b32", sT2, sW, 1); p.I("s_lshl_b32", sT2, sT2, 1); p.I("s_lshl_b32", sT3, sR, 2); p.I("s_add_u32", sT2, sT2, sT3)
    if nxy > 1: p.I("s_sub_u32", sT1, sT1, nxy - 1)
    if typ == "F":
        p.I("s_mul_i32", sOut, sT2, NKS * 1024)
        p.I("s_lshl_b32", sT3, sJ, 3); p.I("s_add_u32", sT3, sT3, sT1); p.I("s_lshl_b32", sT3, sT3, 10)
        p.I("s_add_u32", sOut, sOut, sT3)
        RTS, TS = NKS * 1024, 1024
    else:
        p.I("s_lshl_b32", sOut, sT2, 15)
        p.I("s_sub_u32", sT3, sJ, 14); p.I("s_lshl_b32", sT3, sT3, 3); p.I("s_add_u32", sT3, sT3, sT1); p.I("s_lshl_b32", sT3, sT3, 11)
        p.I("s_add_u32", sOut, sOut, sT3); p.I("s_add_u32", sOut, sOut, QF_OFF)
        RTS, TS = 1 << 15, 2048
    if grp == 1:
        p.I("s_mul_i32", sT3, sT0, 8 * 528)
        p.I("v_add_u32", u3, 8 * 528, vAr); p.I("v_subrev_u32", u3, sT3, u3)
        p.I("v_add_u32", vAr, sT3, vAr)
        p.I("v_mov_b32", V(243), u3)
        p.I("s_mul_i32", sT3, sT0, RTS)
        p.I("s_add_u32", a0, sOut, RTS); p.I("s_sub_u32", a0, a0, sT3)
        p.I("s_add_u32", sOut, sOut, sT3)
        p.I("s_mov_b32", S(59), a0)
    vAr2 = V(243); sOut2 = S(59)
    ln_unit(p, 1, 0)

    def b_reads(c, ks, t):
        dst = BF[ks][t]
        if grp == 0 or t == 0:
            slot = c % NXY; var = slot // 3
            off = (slot % 3) * XYS + 16 * ks * 256
            return [Inst("ds_read_b64_tr_b16", (dst.sub(2 * pp, 2), vBt[t][var]), f"offset:{off + pp * 1024}") for pp in range(2)]
        off = ((c >> 1) % NKV) * PAGE + (32 * (c & 1) + 16 * ks) * 128
        return [Inst("ds_read_b64_tr_b16", (dst.sub(2 * pp, 2), vBt[t][0]), f"offset:{off + pp * 512}") for pp in range(2)]
    def a_read(c, ks, i):
        b = c >> 1; k4 = 2 * (c & 1) + ks
        if grp == 0: return Inst("ds_read_b128", (AFr[ks][i], vAr), f"offset:{(b % 2) * ABLK + (i * 4 + k4) * 2 * 528}")
        return Inst("ds_read_b128", (AFr[ks][i], vAr if i == 0 else vAr2), f"offset:{(b % 2) * ABLK + k4 * 2 * 528}")
    def reads(c, ks):
        return [a_read(c, ks, 0)] + b_reads(c, ks, 0) + [a_read(c, ks, 1)] + b_reads(c, ks, 1) + b_reads(c, ks, 2)
    def mfmas(c, ks):
        f = (c == 0 and ks == 0)
        M = lambda d, a, b: Inst(MF, (d, a, b, 0 if f else d))
        if grp == 0: return [M(ACC[2 * t + i], BF[ks][t], AFr[ks][i]) for t in range(3) for i in range(2)]
        return [M(ACC[0], BF[ks][0], AFr[ks][0]), M(ACC[1], BF[ks][0], AFr[ks][1]),
                M(ACC[2], BF[ks][1], AFr[ks][0]), M(ACC[3], AFr[ks][0], BF[ks][2])]

    seg = {n: Prog() for n in range(15)}
    W2T = XR.sub(0, 8); WT = XR.sub(8, 16)
    q = seg[11]
    srd(q, SD.n, 22, 256)
    q.I("v_lshlrev_b32", vL0, 2, lane)
    q.I("buffer_load_dword", vTk, vL0, SD, 0, mods="offen sc1")
    if cfg["wdpf"]:
        q = seg[cfg["wdpf"]]
        if cfg["wdmode"] == 0:
            q.I("s_lshr_b32", sT0, S(2), 3); q.I("s_lshl_b32", sT0, sT0, 3); q.I("s_add_u32", sT0, sT0, sW); q.I("s_lshl_b32", sT0, sT0, 13)
        else:
            q.I("s_lshl_b32", sT0, S(2), 3); q.I("s_add_u32", sT0, sT0, sW); q.I("s_lshl_b32", sT0, sT0, 10)
        q.I("s_sub_u32", sT1, sT0, 1792 * 896)
        q.I("s_mov_b32", sT2, 448 * 896)
        q.I("s_cmp_lt_u32", sT0, 1792 * 896)
        q.I("s_cselect_b32", SX[0], S(18), S(10)); q.I("s_cselect_b32", SX[1], S(19), S(11))
        q.I("s_cselect_b32", SX[2], 1792 * 896, sT2)
        q.I("s_cselect_b32", sT0, sT0, sT1)
        q.I("s_and_b32", SX[1], SX[1], 0xFFFF)
        if cfg["wdmode"] == 0:
            q.I("v_lshlrev_b32", u3, 7, lane)
            q.I("buffer_load_dword", XR[0], u3, SX, sT0, mods="offen")
        else:
            q.I("buffer_load_dwordx4", XR.sub(0, 4), vSt, SX, sT0, mods="offen")
    if cfg["l2pf"]:
        f0 = cfg["l2pf"]
        q = seg[f0]
        sPf = S(71)
        q.I("s_lshr_b32", sT0, S(2), 3); q.I("s_lshl_b32", sT0, sT0, 3); q.I("s_add_u32", sT0, sT0, sW); q.I("s_lshl_b32", sT0, sT0, 13)
        q.I("s_sub_u32", sT1, sT0, 1792 * 896)
        q.I("s_mov_b32", sT2, 448 * 896)
        q.I("s_cmp_lt_u32", sT0, 1792 * 896)
        q.I("s_cselect_b32", SX[0], S(18), S(10)); q.I("s_cselect_b32", SX[1], S(19), S(11))
        q.I("s_cselect_b32", SX[2], 1792 * 896, sT2)
        q.I("s_cselect_b32", sPf, sT0, sT1)
        q.I("s_and_b32", SX[1], SX[1], 0xFFFF)
        q.I("v_lshlrev_b32", V(252), 7, lane); q.I("v_mov_b32", V(253), BIG)
        q.I("v_cmp_gt_u32", VCC, 64 // cfg["l2n"], lane); q.I("v_cndmask_b32", V(252), V(253), V(252), VCC)
        for i in range(cfg["l2n"]):
            q = seg[f0 + i * cfg["l2s"]]
            q.I("buffer_load_dword", V(254), V(252), SX, sPf, mods="offen")
            q.I("s_add_u32", sPf, sPf, 8192 // cfg["l2n"])
    IDN = XR.sub(24, 8)
    if grp == 1:
        q = seg[0]
        srd(q, SD.n, 22, 256)
        q.I("v_mov_b32", u5, BIG)
        q.I("v_cmp_eq_u32", VCC, 0, lane)
        q.I("v_cndmask_b32", vL0, u5, 0, VCC)
        q.I("s_lshl_b32", sT0, sJ, 2); q.I("s_add_u32", sT0, sT0, sW); q.I("s_sub_u32", sT0, sT0, 4)
        q.I("s_lshl_b32", sT1, sT0, 11); q.I("s_add_u32", sT1, sT1, KVA_OFF)
        q.I("s_lshl_b32", sT2, sT0, 8); q.I("s_add_u32", sT2, sT2, FLG_OFF)
        q.I("s_lshl_b32", sFl, sT0, 2)
        q.I("s_lshl_b32", sZ, sJ, 13); q.I("s_add_u32", sZ, sZ, KVA_OFF)
        q.I("s_cmp_eq_u32", sR, sJ)
        q.I("s_cselect_b32", sT2, sT2, BIG)
        q.I("s_cselect_b32", sT1, sT1, BIG)
        q.I("s_cselect_b32", sFl, sFl, BIG)
        ZR = V(128, 4)
        for i in range(4): q.I("v_mov_b32", ZR[i], 0)
        for s in range(2): q.I("buffer_store_dwordx4", ZR, vSt, SWS, sT1, mods=f"offen offset:{s*1024} sc1", tag="zs")
        q.I("v_cmp_gt_u32", VCC, 16, lane)
        q.I("v_cndmask_b32", u3, u5, vSt, VCC)
        q.I("buffer_store_dwordx4", ZR, u3, SWS, sT2, mods="offen sc1", tag="zs")
        q = seg[5]
        q.I("v_mov_b32", vTk, 1)
        q.waittag("zs")
        q.I("buffer_store_dword", vTk, vL0, SD, sFl, mods="offen sc1")
        q = seg[10]
        srd(q, SPHI.n, 8, 16 * 1568)
        q.I("s_mov_b32", sL, f2u(LOG2E))
        wphi_gather(q, WT, SPHI, sJ, sT0, lane, u1, u2, u3, u4, u5)
        q.I("v_cmp_eq_u32", VCC, 0, u2)
        q.I("v_cndmask_b32", vMask, 0, 1.0, VCC)
        q = seg[12]
        q.I("v_cmp_eq_u32", sM28, 28, u1)
        q.I("v_lshlrev_b32", u3, 2, u2); q.I("v_sub_u32", u3, u1, u3)
        q.I("v_and_b32", u4, 1, u3); q.I("v_lshlrev_b32", u4, 4, u4); q.I("v_mov_b32", u5, 0x3F80); q.I("v_lshlrev_b32", u4, u4, u5)
        q.I("v_lshrrev_b32", u3, 1, u3)
        for s in range(2):
            for i in range(4):
                f0 = 16 * s + 8 * ((2 * i) >> 2) + ((2 * i) & 3)
                q.I("v_cmp_eq_u32", VCC, f0 // 2, u3)
                q.I("v_cndmask_b32", IDN[4 * s + i], 0, u4, VCC)
        q = seg[13]
        for i in range(8): q.I("v_lshl_or_b32", WPHI[i], WT[2 * i + 1], 16, WT[2 * i])
    q = seg[12]
    q.I("v_mov_b32", LT[8], 0); q.I("v_mov_b32", LT[9], KVL)
    q.I("ds_write_b32", LT[9], LT[8], tag="zl")

    PO = [4, 5, 6, 7, 13, 8, 9, 10, 11, 14, 0, 1, 2, 3, 12]
    PAV = [9, 9, 10, 10, 10, 11, 11, 12, 12, 12, 13, 13]
    if grp == 0:
        SWD, SWO, SO = SPHI, SXs, SYs
        sRB, sCB, sBd, sBo, sRing, sTm = S(67), S(68), S(69), S(66), S(58), S(59)
        vE0, vE1 = V(244), V(245); vT = [[V(246), V(247)], [V(238), V(239)]]
        q = seg[8]
        srd(q, SWD.n, 18, 1792 * 896)
        q.I("s_sub_u32", sT2, S(2), 32)
        q.I("s_and_b32", sT0, sT2, 7); q.I("s_lshr_b32", sT1, sT2, 3)
        q.I("s_mul_i32", sT2, sT1, 37); q.I("s_lshr_b32", sT2, sT2, 8)
        q.I("s_lshl_b32", sRB, sT0, 2); q.I("s_add_u32", sRB, sRB, sT2)
        q.I("s_mul_i32", sT2, sT2, 7); q.I("s_sub_u32", sCB, sT1, sT2)
        q.I("s_lshl_b32", sT0, sCB, 7)
        q.I("s_mul_i32", sBd, sW, 28 * 16 * 896); q.I("s_add_u32", sBd, sBd, sT0)
        q.I("s_cmp_lt_u32", S(2), 32); q.I("s_cselect_b32", sBd, BIG, sBd)
        q.I("s_lshl_b32", sRing, sW, 11)
        q.I("v_lshrrev_b32", t1, 3, lane); q.I("v_and_b32", t2, 7, lane)
        q.I("v_bfe_u32", t3, lane, 4, 1); q.I("v_lshlrev_b32", t3, 2, t3); q.I("v_xor_b32", t2, t2, t3)
        q.I("v_mul_u32_u24", vE0, 896, t1); q.I("v_lshl_add_u32", vE0, t2, 4, vE0)
        def bdma(q, k):
            for i in range(2):
                if k < 28:
                    q.I("s_add_u32", sTm, sBd, (16 * k + 8 * i) * 896); sr, va = SWD, vE0
                else:
                    kk = k - 28
                    q.I("s_add_u32", sTm, sBo, ((kk >> 1) * 28 + 16 * (kk & 1) + 8 * i) * 896); sr = SWO
                    va = vE1 if (kk & 1 and i == 1) else vE0
                q.I("s_add_u32", M0, sRing, PO[k % NB] * PAGE + i * 1024)
                q.I("buffer_load_dwordx4", va, sr, sTm, mods="offen lds", tag=f"b{k}")
        NL = cfg["bloop"]
        for k in range(NL): bdma(seg[max(PAV[k], cfg["bstart"])], k)

    if cfg["fast0"]: p.waittag("dma0", "kv0", "aw0")
    else: p.waittag("dma0", "dma1", "kv0", "aw0")
    p.I("s_barrier")
    st.stamp(p)
    p.L.extend(reads(0, 0))
    nxt = cfg["npre"]
    for c in range(14):
        fill = Prog()
        ln = Prog()
        if c % 2 == 0:
            b = c // 2 + 1
            if b < 7: a_write(ln, b, 0); ln_unit(ln, b, 1); a_write(ln, b, 1)
        else:
            b = (c + 3) // 2
            if b < 7: ln_unit(ln, b, 0)
        dm = Prog()
        cnt = 0
        while nxt < 14 and nxt <= c + cfg["la"] and cnt < 2:
            dma_xy(dm, nxt); nxt += 1; cnt += 1
        kvp = cfg["kvodd"]
        if c % 2 == kvp and c // 2 + 2 < 7: dma_kv(dm, c // 2 + 2)
        if cfg["spread"]:
            groups = []; cur = []
            for i in dm.L:
                cur.append(i)
                if i.kind == "dma": groups.append(cur); cur = []
            if groups: groups[-1] += cur
            n = len(groups)
            step = max(1, len(ln.L) // max(1, n))
            k = 0
            for gi in range(n):
                fill.extend(groups[gi]); fill.extend(ln.L[k:k + step]); k += step
            fill.extend(ln.L[k:])
        else:
            fill.extend(ln); fill.extend(dm)
        if cfg.get("no_dma"): fill.L = [i for i in fill.L if i.kind != "dma"]
        if cfg.get("no_lnw"): fill.L = [i for i in fill.L if i.kind != "lwrite"]
        if cfg.get("no_lnv"): fill.L = [i for i in fill.L if i.kind != "valu"]
        fill.extend(seg[c])
        F = fill.L
        nm = 12 if grp == 0 else 8
        per = len(F) / max(1.0, nm * cfg["front"] / 100.0)
        acc = 0.0; fi = 0
        if cfg["pp"]:
            per = cfg["ppin"] / 10.0
            if grp == 1:
                nin = min(len(F), int(per * nm))
                p.L.extend(F[:len(F) - nin]); fi = len(F) - nin
        if cfg["prio"] and cfg["pp"]: p.I("s_setprio", 1)
        for ks in range(2):
            nc, nks = (c, 1) if ks == 0 else (c + 1, 0)
            if cfg["fast0"] and c == 0 and ks == 1:
                p.waittag("dma1"); p.I("s_barrier")
            rd = reads(nc, nks) if nc < 14 else []
            ms = mfmas(c, ks)
            rp = 2 if grp == 0 else 3
            for m in ms:
                p.L.append(m)
                p.L.extend(rd[:rp]); rd = rd[rp:]
                acc += per
                while acc >= 1 and fi < len(F):
                    p.L.append(F[fi]); fi += 1; acc -= 1
        if cfg["prio"] and cfg["pp"]: p.I("s_setprio", 0)
        p.L.extend(F[fi:])
        if c + 1 < 14:
            if cfg.get("its") is not None and cfg["its"] <= c < cfg["its"] + 4: st.stamp(p, force=True)
            p.waittag(f"dma{c+2}", f"kv{(c+2)//2}", f"aw{(c+2)//2}", "zl")
            p.I("s_barrier")
            if cfg.get("its") is not None and cfg["its"] <= c < cfg["its"] + 4: st.stamp(p, force=True)
    st.stamp(p)
    uid = f"{typ}{grp}"
    def spin(name, vd, va, srdreg, soff, mask=None, sleep=4, first_loaded=False):
        cmp = f"    v_cmp_ne_u32 vcc, 1, {vd}\n" + (f"    s_nop 4\n    s_and_b64 vcc, vcc, {mask}\n" if mask is not None else "    s_nop 4\n")
        L = f"SP_{name}_{uid}"
        t = ""
        if first_loaded:
            p.I("v_mov_b32", vd, vd)
            t += cmp + f"    s_cbranch_vccz {L}_OK\n"
        t += (f"    s_mov_b32 s61, 0\n{L}:\n    buffer_load_dword {vd}, {va}, {srdreg}, {soff} offen sc1\n    s_add_u32 s61, s61, 1\n    s_cmp_gt_u32 s61, 0x20000\n"
              f"    s_cbranch_scc1 {L}_OK\n    s_waitcnt vmcnt(0)\n" + cmp + f"    s_cbranch_vccz {L}_OK\n    s_sleep {sleep}\n    s_branch {L}\n{L}_OK:")
        p.raw(t)
    p.I("s_barrier")
    spin("Z", vTk, vL0, SD, 0, first_loaded=True)
    OUT = V(160, 40); TMP = XR.sub(32, 24)
    cnt = [0]
    def tile_epi(q, acc, so, off):
        k = cnt[0]; cnt[0] += 1
        if typ == "F":
            o = OUT.sub(4 * (k % 6), 4)
            if cfg["pk"]: gelu_pk(q, acc, TMP.sub(8 * (k % 2), 8), o, TMP.sub(16, 2))
            else: gelu_tile(q, acc, TMP.sub(8 * (k % 2), 8), o, vC2)
            q.I("buffer_store_dwordx4", o, vSt, SWS, so, mods=f"offen offset:{off} sc1", tag="hst")
        else:
            o = OUT.sub(8 * (k % 4), 8)
            for i in range(8): q.I("v_cvt_pk_bf16_f32", o[i], acc[2 * i], acc[2 * i + 1])
            for s in range(2): q.I("buffer_store_dwordx4", o.sub(4 * s, 4), vSt, SWS, so, mods=f"offen offset:{off + s*1024} sc1", tag="hst")
    p.I("v_mov_b32", TMP[16], f2u(GC2)); p.I("v_mov_b32", TMP[17], f2u(GC1))
    vOne, vLn0 = V(241), V(242)
    p.I("v_mov_b32", vOne, 1); p.I("v_mov_b32", u5, BIG)
    p.I("v_cmp_eq_u32", VCC, 0, lane)
    p.I("v_cndmask_b32", vLn0, u5, 0, VCC)
    def set_hflag():
        p.I("s_lshl_b32", sT0, sR, 1); p.I("s_and_b32", sT1, sW, 1); p.I("s_add_u32", sT0, sT0, sT1); p.I("s_lshl_b32", sT0, sT0, 8)
        p.I("s_lshl_b32", sT1, sJ, 2); p.I("s_lshr_b32", sT2, sW, 1); p.I("s_add_u32", sT1, sT1, sT2); p.I("s_lshl_b32", sT1, sT1, 2)
        p.I("s_add_u32", sT0, sT0, sT1); p.I("s_add_u32", sT0, sT0, HF_OFF)
        p.waittag("hst")
        p.I("buffer_store_dword", vOne, vLn0, SWS, sT0, mods="offen sc1")
    if grp == 0:
        srd(p, SWO.n, 10, 448 * 896); srd(p, SO.n, 20, 2048 * 896)
        p.I("s_lshl_b32", sT0, sCB, 7)
        p.I("s_mul_i32", sBo, sW, 4 * 28 * 896); p.I("s_add_u32", sBo, sBo, sT0)
        p.I("v_cmp_gt_u32", VCC, 32, lane)
        p.I("v_cndmask_b32", vE1, u5, vE0, VCC)
        p.I("v_bfe_u32", t1, lane, 2, 2); p.I("v_lshl_add_u32", t1, u2, 2, t1)
        p.I("v_bfe_u32", t2, lane, 4, 1); p.I("v_and_b32", t3, 3, lane); p.I("v_lshlrev_b32", t3, 3, t3); p.I("v_lshl_add_u32", t2, t2, 5, t3)
        p.I("v_bfe_u32", t3, lane, 3, 1); p.I("v_lshlrev_b32", t3, 6, t3); p.I("v_xor_b32", t2, t2, t3)
        p.I("v_lshl_add_u32", vT[0][0], t1, 7, t2); p.I("v_add_u32", vT[0][0], sRing, vT[0][0])
        p.I("v_xor_b32", vT[1][0], 64, vT[0][0])
        for c in range(2): p.I("v_add_u32", vT[c][1], 7 * PAGE, vT[c][0])
        E = Prog(); Dm = Prog()
        p.I("s_add_u32", sT3, sOut, RTS)
        p.I("s_add_u32", a1, sOut, 2 * TS); p.I("s_add_u32", a2, sT3, 2 * TS)
        for t in range(3):
            for i in range(2):
                if t < 2: tile_epi(E, ACC[2 * t + i], sOut if i == 0 else sT3, t * TS)
                else: tile_epi(E, ACC[2 * t + i], a1 if i == 0 else a2, 0)
        NE = cfg["bearly"]
        NE = max(NE, NL)
        for k in range(NL, NE): bdma(Dm, k)
        grp3 = [Dm.L[i:i + 3] for i in range(0, len(Dm.L), 3)]
        step = max(1, int(len(E.L) * 0.5) // max(1, len(grp3)))
        k = 0
        for g3 in grp3:
            p.L.extend(g3); p.L.extend(E.L[k:k + step]); k += step
        p.L.extend(E.L[k:])
        set_hflag()
        st.stamp(p)
        p.I("s_cmp_lt_u32", S(2), 32)
        p.raw(f"    s_cbranch_scc1 P2_END_{uid}")
        BP = cfg["bpre"]
        for k in range(NE, BP): bdma(p, k)
        nb = [BP]
        DA = cfg["da"]
        AC2 = [[V(64 + 32 * r + 16 * c, 16) for c in range(2)] for r in range(2)]
        NR = cfg["nreg"]
        assert DA <= 4
        BB = [V(40 + 8 * i, 8) for i in range(2)]
        AB = [V(8 + 8 * d, 8) for d in range(DA)]
        RB = [V(128 + 8 * k, 8) for k in range(12)]
        def bfrag(k): return RB[k] if k < NR else BB[k & 1]
        VO = V(56, 7); XV = V(248, 8); vP, vZ, vG, vLr, vLw = V(228), V(229), V(230), V(231), V(232)
        sA = [S(70), S(71)]; sAo = [S(73), S(74)]; sFlag = S(75); sM56 = S(76, 2) if False else S(56, 2)
        p.I("s_mul_i32", sT0, sW, 28 * 1024)
        p.I("s_mul_i32", sT1, sRB, 2 * NKS * 1024); p.I("s_add_u32", sA[0], sT1, sT0); p.I("s_add_u32", sA[1], sA[0], NKS * 1024)
        p.I("s_lshl_b32", sT0, sW, 13); p.I("s_add_u32", sT0, sT0, 112 * 1024)
        p.I("s_add_u32", sAo[0], sT1, sT0); p.I("s_add_u32", sAo[1], sAo[0], NKS * 1024)
        for m in range(7): p.I("v_add_u32", VO[m], 4096 * m, vSt)
        srd(p, SX.n, 4, 2048 * 896)
        p.I("s_lshl_b32", sT0, sW, 6); p.I("v_add_u32", t1, sT0, lane)
        p.I("v_lshrrev_b32", t2, 3, t1); p.I("v_and_b32", t3, 7, t1)
        p.I("s_lshl_b32", sT0, sRB, 6)
        p.I("v_add_u32", vG, sT0, t2); p.I("v_mul_u32_u24", vG, 896, vG); p.I("v_lshl_add_u32", vG, t3, 4, vG)
        p.I("s_lshl_b32", sT0, sCB, 7); p.I("v_add_u32", vG, sT0, vG)
        p.I("v_mul_u32_u24", vLr, K2_ROW, t2); p.I("v_lshl_add_u32", vLr, t3, 5, vLr)
        p.I("v_mul_u32_u24", vLw, K2_ROW, u1); p.I("v_lshl_add_u32", vLw, u2, 4, vLw)
        p.I("s_mul_i32", sT0, sW, 64 * K2_ROW); p.I("v_add_u32", vLw, sT0, vLw)
        p.I("v_lshlrev_b32", vZ, 2, lane)
        if cfg["hmask"]:
            p.I("s_mul_i32", sT0, sW, 7); p.I("s_lshr_b32", sT0, sT0, 1); p.I("s_lshl_b32", sT0, sT0, 2)
            p.I("s_mov_b32", sM56[0], 0xFFFF); p.I("s_mov_b32", sM56[1], 0)
            p.I("s_lshl_b64", sM56, sM56, sT0)
        else:
            p.I("s_mov_b32", sM56[0], -1); p.I("s_mov_b32", sM56[1], 0x00FFFFFF)
        p.I("s_lshl_b32", sFlag, sRB, 8); p.I("s_add_u32", sFlag, sFlag, HF_OFF)
        p.I("s_mov_b32", a0, 32 * 896)
        p.I("buffer_load_dwordx4", XV.sub(0, 4), vG, SX, 0, mods="offen")
        p.I("buffer_load_dwordx4", XV.sub(4, 4), vG, SX, a0, mods="offen")
        def bread(k):
            p.waittag(f"b{k}")
            for c in range(2):
                for pp in range(2):
                    p.I("ds_read_b64_tr_b16", bfrag(k).sub(4 * c + 2 * pp, 2), vT[c][1 if PO[k % NB] >= 7 else 0], mods=f"offset:{(PO[k % NB] - (7 if PO[k % NB] >= 7 else 0)) * PAGE + pp * 1024}", tag=f"r{k}")
        for k in range(NR):
            bread(k)
            if k >= 1 and nb[0] < cfg["bpre2"] and nb[0] - NB <= k - 1:
                p.waittag(f"r{k-1}"); bdma(p, nb[0]); nb[0] += 1
        while nb[0] < cfg["bpre2"] and nb[0] - NB <= NR - 1:
            p.waittag(f"r{NR-1}"); bdma(p, nb[0]); nb[0] += 1
        spin("H", vP, vZ, SWS, sFlag, mask=sM56, sleep=cfg["slh"])
        if cfg["inv"]: p.I("buffer_inv", mods="sc1")
        st.stamp(p)
        p.I("s_lshl_b32", sFlag, sRB, 7); p.I("s_add_u32", sFlag, sFlag, OF_OFF)
        p.I("v_lshlrev_b32", vZ, 2, u1)
        pool = list(AB) + RB[NR:]
        amap = {}
        def abuf(k): return amap[k]
        def aload(k):
            amap[k] = pool.pop(0)
            kk = k if k < 28 else k - 28
            for r in range(2):
                p.I("buffer_load_dwordx4", abuf(k).sub(4 * r, 4), VO[kk // 4], SWS, (sA if k < 28 else sAo)[r], mods=f"offen offset:{(kk % 4) * 1024} sc1")
        if cfg["atouch"]:
            p.I("v_lshrrev_b32", t1, 4, lane); p.I("v_lshlrev_b32", t1, 10, t1)
            p.I("v_bfe_u32", t2, lane, 3, 1); p.I("v_mul_u32_u24", t2, NKS * 1024, t2); p.I("v_add_u32", t1, t1, t2)
            p.I("v_and_b32", t2, 7, lane); p.I("v_lshl_add_u32", t1, t2, 7, t1)
            p.I("s_lshl_b32", sT0, sCB, 12); p.I("s_add_u32", sT0, sT0, sA[0])
        na = [0]
        while pool and na[0] < cfg["damax"]: aload(na[0]); na[0] += 1
        if NR == 0: bread(0)
        KO = cfg["ko"]
        kpoll = KO - cfg["pollahead"]
        for k in range(36):
            if NR <= k + 1 < 36: bread(k + 1)
            for r in range(2):
                for c in range(2):
                    p.I(MF, AC2[r][c], bfrag(k).sub(4 * c, 4), abuf(k).sub(4 * r, 4), 0 if k == 0 else AC2[r][c])
            if k == kpoll: p.I("buffer_load_dword", vP, vZ, SWS, sFlag, mods="offen sc1")
            pool.append(amap[k])
            if k < NR: pool.append(RB[k])
            while pool and na[0] < 28 and na[0] <= k + cfg["damax"]: aload(na[0]); na[0] += 1
            if k == KO:
                if cfg["stamps"] == 2: st.stamp(p)
                spin("O", vP, vZ, SWS, sFlag, first_loaded=True, sleep=8)
                if cfg["stamps"] == 2: st.stamp(p)
                for k2 in range(28, 36): aload(k2)
            c2 = 0
            while nb[0] < 36 and nb[0] <= k + cfg["bla"] and nb[0] - NB <= max(k, NR - 1) and c2 < 2:
                if not cfg.get("hackB"): bdma(p, nb[0])
                nb[0] += 1; c2 += 1
        p.I("s_barrier")
        for r in range(2):
            for c in range(2):
                for g in range(4):
                    p.I("ds_write_b128", vLw, AC2[r][c].sub(4 * g, 4), mods=f"offset:{r*32*K2_ROW + (c*32+8*g)*4}", tag="pw")
        p.waittag("pw")
        p.I("s_barrier")
        RD = V(64, 64)
        for pp in range(2):
            for w in range(4):
                for hh in range(2):
                    p.I("ds_read_b128", RD.sub(32 * pp + 8 * w + 4 * hh, 4), vLr, mods=f"offset:{w*64*K2_ROW + pp*32*K2_ROW + hh*16}")
        for pp in range(2):
            R = RD.sub(32 * pp, 32)
            for i in range(8): p.I("v_add_f32", R[i], R[i], R[8 + i])
            for i in range(8): p.I("v_add_f32", R[16 + i], R[16 + i], R[24 + i])
            Xr = XV.sub(4 * pp, 4); T = V(8, 8)
            for i in range(4):
                p.I("v_lshlrev_b32", T[2 * i], 16, Xr[i]); p.I("v_and_b32", T[2 * i + 1], 0xFFFF0000, Xr[i])
            for i in range(8): p.I("v_add_f32", R[i], R[i], R[16 + i])
            for i in range(8): p.I("v_add_f32", R[i], R[i], T[i])
            O = V(16 + 4 * pp, 4)
            for i in range(4): p.I("v_cvt_pk_bf16_f32", O[i], R[2 * i], R[2 * i + 1])
            p.I("buffer_store_dwordx4", O, vG, SO, 0 if pp == 0 else a0, mods="offen" + ["", " sc1", " nt", " sc0 sc1"][cfg.get("opol", 0)])
        p.label(f"P2_END_{uid}")
    else:
        if cfg["sprio"]: p.I("s_setprio", cfg["sprio"])
        tile_epi(p, ACC[0], sOut, 0)
        tile_epi(p, ACC[1], sOut2, 0)
        if cfg["sprio"] and cfg["sdrop"]: p.I("s_setprio", 0)
        K, Vv, PACC = ACC[2], ACC[3], ACC[4]
        qb = LT.sub(0, 8); VB = ACC[5].sub(0, 8); NEG = ACC[5].sub(8, 8); POS = LT.sub(0, 8)
        for i in range(8): p.I("v_cvt_pk_bf16_f32", qb[i], K[2 * i], K[2 * i + 1])
        p.I(MF, PACC, WPHI.sub(0, 4), qb.sub(0, 4), 0)
        p.I(MF, PACC, WPHI.sub(4, 4), qb.sub(4, 4), PACC)
        p.I("v_mov_b32", u3, 0x3F803F80)
        for r in range(8): p.I("v_cvt_pk_bf16_f32", VB[r], Vv[2 * r], Vv[2 * r + 1])
        for r in range(8): p.I("v_cndmask_b32", VB[r], VB[r], u3, sM28)
        set_hflag()
        if cfg["stamps"] == 2: st.stamp(p)
        PKS[0] = cfg["pks"]
        softmax_core(p, PACC, K, LT.sub(8, 8), POS, NEG, vMask, sL)
        PKS[0] = 0
        Tt = [K, PACC]
        for ft, src in enumerate((POS, NEG)):
            p.I(MF, Tt[ft], src.sub(0, 4), IDN.sub(0, 4), 0)
            p.I(MF, Tt[ft], src.sub(4, 4), IDN.sub(4, 4), Tt[ft])
        if cfg["sprio"] and cfg["sdrop"]: p.I("s_setprio", 3)
        p.I("v_lshlrev_b32", u4, 2, lane)
        PT = [LT.sub(0, 8), LT.sub(8, 8)]
        for ft in range(2):
            for r in range(8): p.I("v_cvt_pk_bf16_f32", PT[ft][r], Tt[ft][2 * r], Tt[ft][2 * r + 1])
        for ft in range(2):
            p.I(MF, Tt[ft], PT[ft].sub(0, 4), VB.sub(0, 4), 0)
            p.I(MF, Tt[ft], PT[ft].sub(4, 4), VB.sub(4, 4), Tt[ft])
        p.I("s_lshl_b32", sT0, sW, 13); p.I("s_add_u32", sT0, sT0, KVP_L - 4 * 8192)
        p.I("v_add_u32", u3, sT0, vSt)
        p.I("v_mov_b32", t1, KVL); p.I("v_mov_b32", t2, 1)
        for qd in range(8):
            p.I("ds_write_b128", u3, Tt[qd >> 2].sub(4 * (qd & 3), 4), mods=f"offset:{qd*1024}", tag="kva")
        p.waittag("kva")
        lbl = f"K1_{typ}_"
        p.raw("    s_mov_b64 exec, 1\n    ds_add_u32 v1, v2\n    s_mov_b64 exec, -1")
        p.raw(f"    s_mov_b32 s61, 0\n{lbl}LSPIN:\n    ds_read_b32 v3, v1\n    s_add_u32 s61, s61, 1\n    s_lshr_b32 s62, s61, 18\n    s_waitcnt lgkmcnt(0)\n    s_nop 1\n    v_readfirstlane_b32 s60, v3\n    s_nop 3\n    s_or_b32 s60, s60, s62\n    s_cmp_lt_u32 s60, 4\n    s_cbranch_scc1 {lbl}LSPIN")
        p.I("s_lshl_b32", sT0, sW, 11); p.I("s_sub_u32", sT0, sT0, 4 * 2048)
        p.I("s_add_u32", a0, sZ, sT0)
        p.I("s_add_u32", sT0, sT0, KVP_L)
        p.I("v_add_u32", t1, sT0, u4)
        R2 = V(128, 32)
        for e in range(8):
            p.I("ds_read2st64_b32", R2.sub(4 * e, 2), t1, mods=f"offset0:{e} offset1:{e+32}")
            p.I("ds_read2st64_b32", R2.sub(4 * e + 2, 2), t1, mods=f"offset0:{e+64} offset1:{e+96}")
        for e in range(8):
            p.I("v_add_f32", R2[4 * e], R2[4 * e], R2[4 * e + 1]); p.I("v_add_f32", R2[4 * e + 2], R2[4 * e + 2], R2[4 * e + 3])
            p.I("v_add_f32", R2[4 * e], R2[4 * e], R2[4 * e + 2])
            p.I("buffer_atomic_add_f32", R2[4 * e], u4, SWS, a0, mods=f"offen offset:{e * 256}", tag="kat")
        sKF, sRT, sQF = S(64), S(65), S(66)
        p.I("s_lshl_b32", sRT, sR, 2); p.I("s_add_u32", sRT, sRT, sW); p.I("s_sub_u32", sRT, sRT, 4)
        p.I("s_lshl_b32", sKF, sJ, 8); p.I("s_add_u32", sKF, sKF, KF_OFF)
        p.I("s_lshl_b32", sT0, sRT, 2); p.I("s_add_u32", sT0, sT0, sKF)
        if cfg["stamps"] == 2: st.stamp(p)
        p.waittag("kat")
        p.I("buffer_store_dword", vOne, vLn0, SWS, sT0, mods="offen sc1")
        st.stamp(p)
        p.I("s_lshr_b32", sQF, sRT, 1); p.I("s_lshl_b32", sQF, sQF, 8)
        p.I("s_lshr_b32", sT0, sJ, 3); p.I("s_lshl_b32", sT0, sT0, 4); p.I("s_add_u32", sQF, sQF, sT0); p.I("s_add_u32", sQF, sQF, HF_OFF + 224)
        p.I("v_and_b32", t1, 12, u4)
        spin("Q", t2, t1, SWS, sQF, sleep=cfg["slk"])
        QB = V(8, 8); KA = V(64, 32); P = V(96, 16); E2 = V(112, 16); TM = V(16, 8); POS, NEG = V(24, 8), V(32, 8); KFr = V(40, 16)
        p.I("s_lshl_b32", sT0, sRT, 15); p.I("s_lshl_b32", sT1, sJ, 11); p.I("s_add_u32", sT0, sT0, sT1); p.I("s_add_u32", sT0, sT0, QF_OFF)
        for s in range(2): p.I("buffer_load_dwordx4", QB.sub(4 * s, 4), vSt, SWS, sT0, mods=f"offen offset:{s*1024} sc1")
        p.I(MF, P, WPHI.sub(0, 4), QB.sub(0, 4), 0)
        p.I(MF, P, WPHI.sub(4, 4), QB.sub(4, 4), P)
        softmax_core(p, P, E2, TM, POS, NEG, vMask, sL)
        spin("K", t2, u4, SWS, sKF, sleep=cfg["slk"])
        st.stamp(p)
        p.I("s_add_u32", sT1, sZ, 4096)
        for qd in range(8): p.I("buffer_load_dwordx4", KA.sub(4 * qd, 4), vSt, SWS, sZ if qd < 4 else sT1, mods=f"offen offset:{(qd&3)*1024} sc1")
        for ft in range(2):
            for i in range(12, 16): p.I("v_mul_f32", KA[16 * ft + i], KA[16 * ft + i], vMask)
        for i in range(16): p.I("v_cvt_pk_bf16_f32", KFr[i], KA[2 * i], KA[2 * i + 1])
        N = P
        for s in range(4):
            p.I(MF, N, KFr.sub(4 * s, 4), (POS if s < 2 else NEG).sub(4 * (s & 1), 4), 0 if s == 0 else N)
        d0, d1 = TM[0], TM[1]
        p.I("s_mul_i32", sT0, sRT, NKS * 1024); p.I("s_lshl_b32", sT2, sJ, 11); p.I("s_add_u32", sT0, sT0, sT2); p.I("s_add_u32", sT0, sT0, 112 * 1024)
        p.I("s_lshl_b32", sT1, sRT, 6); p.I("s_lshl_b32", sT2, sJ, 2); p.I("s_add_u32", sT1, sT1, sT2); p.I("s_add_u32", sT1, sT1, OF_OFF)
        p.I("v_mov_b32", d0, N[12]); p.I("v_mov_b32", d1, N[12])
        p.I("v_permlane32_swap_b32", d0, d1)
        p.I("v_add_f32", d1, f2u(1e-6), d1)
        p.I("v_rcp_f32", d1, d1)
        for i in range(16): p.I("v_mul_f32", N[i], N[i], d1)
        T = QB
        for i in range(8): p.I("v_cvt_pk_bf16_f32", T[i], N[2 * i], N[2 * i + 1])
        for s in range(2): p.I("buffer_store_dwordx4", T.sub(4 * s, 4), vSt, SWS, sT0, mods=f"offen offset:{s*1024} sc1", tag="ost")
        p.waittag("ost")
        p.I("buffer_store_dword", vOne, vLn0, SWS, sT1, mods="offen sc1")
    if cfg["stamps"] != 2: st.stamp(p)
    st.stamp(p, True)
    st.flush(p, SWS, sW, 8, t1, t3)
    if cfg.get("dbgwg") is not None and grp == 0:
        p.I("s_lshl_b32", S(100), S(2), 3); p.I("s_add_u32", S(100), S(100), sW)
        p.I("s_cmp_eq_u32", S(100), cfg["dbgwg"] * 8)
        p.I("s_cselect_b32", S(100), 0, BIG)
        p.I("v_mov_b32", t3, 0)
        for i in range(1, st.n):
            p.I("s_sub_u32", S(101), S(80 + 2 * i), S(80))
            p.I("v_mov_b32", t1, S(101))
            p.I("buffer_store_dword", t1, t3, SD, S(100), mods=f"offen offset:{4*i}")
            p.I("s_nop", 1)
    p.I("s_endpgm")

K2_ROW = 272
def build(cfg):
    hdr = open("cdna_kernels/" + NAME + ".s.ref").read().split("\n")
    head = [l for l in hdr if l.startswith(";") and "@launch" not in l]
    head.append(f"; @launch grid=(256,1,1) block=(512,1,1) lds={K1_LDS}")
    out = "\n".join(head) + '\n.amdgcn_target "amdgcn-amd-amdhsa--gfx950"\n.text\n'
    descs = ""
    for g in (gen_k1,):
        t, d = g(cfg); out += t; descs += ".p2align 6\n" + d
    out += "CODE_END:\n    s_endpgm\n" + '.section .rodata,"a"\n' + descs
    if cfg["align"]:
        import align
        out, a, b = align.align(out, cfg["minrun"])
        print("align: promoted", a, "nops", b)
    return out

if __name__ == "__main__":
    cfg = dict(k2bar=1, k1map=0, k2depth=5, stamps=0, rot=1, pollahead=2, sc1=1, npre=3, la=5, xbar=2, w2it=10, ke=4, dmaper=4, bahead=3, front=85, cpref=1, wdpf=3, wdmode=1, btouch=0, atouch=0, l2pf=0, pk=1, pks=1, ko=26, early=0, damax=8, fast0=0, opol=1, bloop=12, bstart=9, nreg=12, bpre2=27, l2n=8, l2s=1, sdrop=1, hmask=1, bearly=15, bpre=15, bla=15, slh=4, slk=8, inv=0, da=4, sprio=3, jcont=1, xrot=1, kvodd=1, spread=1, pp=1, ppin=0, prio=0, align=1, minrun=3, attprio=1)
    for a in sys.argv[2:]:
        k, v = a.split("="); cfg[k] = int(v)
    open(sys.argv[1], "w").write(build(cfg))
```

```python
import sys, struct
from asmgen import *
from gen2 import Stamps, srd, f2u, LOG2E, GC1, GC2, gelu_tile, NAME, MF, BIG, NKS, AF_OFF, W2F_OFF, WS_BYTES, DBG_OFF
QF_OFF = 0x0C00000
FLG_OFF = 0x1100000
KVA_OFF = 0x1000000

def code_prefetch(p, start, end, vd, va, sb, sa, sc):
    lbl = "CP_L"
    p.raw(f"    s_getpc_b64 {sb}\n{lbl}:")
    p.raw(f"    s_sub_u32 {sb[0]}, {sb[0]}, {lbl}-{start}\n    s_subb_u32 {sb[1]}, {sb[1]}, 0")
    p.I("s_lshr_b32", sa, S(2), 3); p.I("s_lshl_b32", sc, S(3), 5); p.I("s_add_u32", sa, sa, sc); p.I("s_lshl_b32", sa, sa, 10)
    p.raw(f"    s_cmp_lt_u32 {sa}, {end}-{start}-1024\n    s_cbranch_scc0 {lbl}_SKIP")
    p.I("v_lshl_add_u32", va, V(0), 4, sa)
    p.raw(f"    global_load_dwordx4 {vd}, {va}, {sb}\n{lbl}_SKIP:")

def gelu_pk(p, acc, t, out, KC):
    P = lambda r, j: r.sub(2 * j, 2)
    for j in range(4): p.I("v_pk_mul_f32", P(t, j), P(acc, j), P(acc, j))
    for j in range(4): p.I("v_pk_fma_f32", P(t, j), P(t, j), KC, KC, mods="op_sel:[0,0,1] op_sel_hi:[1,0,1]")
    for j in range(4): p.I("v_pk_mul_f32", P(t, j), P(t, j), P(acc, j))
    for j in range(4):
        p.I("v_exp_f32", t[2 * j], t[2 * j]); p.I("v_exp_f32", t[2 * j + 1], t[2 * j + 1])
        p.I("v_pk_mul_f32", P(acc, 4 + j), P(acc, j), P(acc, 4 + j))
    for j in range(4): p.I("v_pk_add_f32", P(t, j), P(t, j), 1.0, mods="op_sel_hi:[1,0]")
    for j in range(8): p.I("v_rcp_f32", t[j], t[j])
    for j in range(4): p.I("v_pk_mul_f32", P(t, j), P(t, j), P(acc, 4 + j))
    for j in range(4): p.I("v_cvt_pk_bf16_f32", out[j], t[2 * j], t[2 * j + 1])

def split(L, n):
    k = (len(L) + n - 1) // n
    return [L[i * k:(i + 1) * k] for i in range(n)]

PKS = [0]
def softmax_core(p, P, E, tmp, pos, neg, vmask, sL):
    mx, mn, t0, t1, sp, sn, sp2, sn2 = [tmp[i] for i in range(8)]
    p.I("v_max3_f32", mx, P[0], P[1], P[2])
    p.I("v_min3_f32", mn, P[0], P[1], P[2])
    for i in range(6):
        p.I("v_max3_f32", mx, mx, P[3 + 2 * i], P[4 + 2 * i])
        p.I("v_min3_f32", mn, mn, P[3 + 2 * i], P[4 + 2 * i])
    p.I("v_max_f32", mx, mx, P[15])
    p.I("v_min_f32", mn, mn, P[15])
    p.I("v_mov_b32", t0, mx)
    p.I("v_mov_b32", t1, mn)
    p.I("v_permlane32_swap_b32", mx, t0)
    p.I("v_permlane32_swap_b32", mn, t1)
    p.I("v_max_f32", mx, mx, t0)
    p.I("v_min_f32", mn, mn, t1)
    p.I("v_mul_f32", mx, sL, mx)
    p.I("v_mul_f32", mn, sL, mn)
    if PKS[0]:
        p.I("v_mov_b32", t0, sL)
        for i in range(8): p.I("v_pk_fma_f32", E.sub(2 * i, 2), P.sub(2 * i, 2), tmp.sub(2, 2), tmp.sub(0, 2), mods="op_sel:[0,0,1] op_sel_hi:[1,0,1] neg_lo:[1,0,0] neg_hi:[1,0,0]")
        for i in range(8): p.I("v_pk_fma_f32", P.sub(2 * i, 2), P.sub(2 * i, 2), tmp.sub(2, 2), tmp.sub(0, 2), mods="op_sel_hi:[1,0,0] neg_lo:[0,0,1] neg_hi:[0,0,1]")
    else:
        for i in range(16): p.I("v_fma_f32", E[i], Neg(P[i]), sL, mn)
        for i in range(16): p.I("v_fma_f32", P[i], P[i], sL, Neg(mx))
    for i in range(16): p.I("v_exp_f32", E[i], E[i])
    for i in range(16): p.I("v_exp_f32", P[i], P[i])
    p.I("v_add_f32", sn, E[0], E[1]); p.I("v_add_f32", sn2, E[2], E[3])
    p.I("v_add_f32", sp, P[0], P[1]); p.I("v_add_f32", sp2, P[2], P[3])
    for i in range(4, 12, 2):
        p.I("v_add_f32", sn, sn, E[i]); p.I("v_add_f32", sn2, sn2, E[i + 1])
        p.I("v_add_f32", sp, sp, P[i]); p.I("v_add_f32", sp2, sp2, P[i + 1])
    for i in range(12, 16, 2):
        p.I("v_fmac_f32", sn, E[i], vmask); p.I("v_fmac_f32", sn2, E[i + 1], vmask)
        p.I("v_fmac_f32", sp, P[i], vmask); p.I("v_fmac_f32", sp2, P[i + 1], vmask)
    p.I("v_add_f32", sp, sp, sp2); p.I("v_add_f32", sn, sn, sn2)
    p.I("v_mov_b32", t0, sp); p.I("v_mov_b32", t1, sn)
    p.I("v_permlane32_swap_b32", sp, t0)
    p.I("v_permlane32_swap_b32", sn, t1)
    p.I("v_add_f32", sp, sp, t0); p.I("v_add_f32", sn, sn, t1)
    p.I("v_rcp_f32", sp, sp); p.I("v_rcp_f32", sn, sn)
    if PKS[0]:
        for i in range(8): p.I("v_pk_mul_f32", P.sub(2 * i, 2), P.sub(2 * i, 2), tmp.sub(4, 2), mods="op_sel_hi:[1,0]")
        for i in range(8): p.I("v_pk_mul_f32", E.sub(2 * i, 2), E.sub(2 * i, 2), tmp.sub(4, 2), mods="op_sel:[0,1] op_sel_hi:[1,1]")
    else:
        for i in range(16): p.I("v_mul_f32", P[i], P[i], sp)
        for i in range(16): p.I("v_mul_f32", E[i], E[i], sn)
    for i in range(8): p.I("v_cvt_pk_bf16_f32", pos[i], P[2 * i], P[2 * i + 1])
    for i in range(8): p.I("v_cvt_pk_bf16_f32", neg[i], E[2 * i], E[2 * i + 1])

def wphi_gather(q, WT, SPHI, sHead, sT, lane, u1, u2, u3, u4, u5):
    q.I("v_and_b32", u1, 31, lane); q.I("v_lshrrev_b32", u2, 5, lane); q.I("v_mov_b32", u5, BIG)
    q.I("v_subrev_u32", u3, 24, u1)
    q.I("v_cmp_lt_u32", VCC, 27, u1)
    q.I("v_cndmask_b32", u3, u1, u3, VCC)
    q.I("v_lshlrev_b32", u3, 1, u3)
    q.I("v_mul_u32_u24", u4, 4 * 56, u2)
    q.I("v_add_u32", u3, u3, u4)
    q.I("s_mul_i32", sT, sHead, 1568)
    q.I("v_add_u32", u3, sT, u3)
    q.I("v_cmp_eq_u32", VCC, 1, u2)
    q.I("v_cndmask_b32", u4, u3, u5, VCC)
    for s in range(2):
        for j in range(8):
            d0 = 16 * s + 8 * (j >> 2) + (j & 3)
            q.I("buffer_load_ushort", WT[8 * s + j], u4 if d0 + 4 >= 28 else u3, SPHI, 0, mods=f"offen offset:{d0*56}")

XYS = 16384; NXY = 6; KVB = XYS * NXY; PAGE = 8192; NKV = 3
ASB = KVB + NKV * PAGE; ABLK = 32 * 528
K1_LDS = ASB + 2 * ABLK
KVL = ASB + 32768
KVROW = 320
KVP_L = ASB
NB = 15; BRING = NB * 2048
HF_OFF = FLG_OFF; KF_OFF = FLG_OFF + 8192; OF_OFF = FLG_OFF + 12288

lane = V(0)
XR = V(8, 56)
def xr(b, g): return XR.sub(8 * b + 4 * g, 4)
ACC = [V(64 + 16 * i, 16) for i in range(6)]
BF = [[V(160 + 12 * s + 4 * t, 4) for t in range(3)] for s in range(2)]
AFr = [[V(184 + 8 * s + 4 * i, 4) for i in range(2)] for s in range(2)]
LT = V(200, 16)
vBt = [[V(216 + 2 * t), V(217 + 2 * t)] for t in range(3)]
vAw, vAr, vD0, vDX, vDY, vSt = [V(222 + i) for i in range(6)]
vR = [V(228), V(229)]; vNM = [V(230), V(231)]
vMask, vC2, vTk, vL0 = V(232), V(233), V(234), V(235)
u1, u2, u3, u4, u5 = [V(236 + i) for i in range(5)]
WPHI = V(244, 8)
sW = S(3); sR, sJ, sRot = S(26), S(27), S(72)
SX, SQKV, SXs, SYs, SWS, SPHI, SD, SW2 = [S(28 + 4 * i, 4) for i in range(8)]
sT0, sT1, sT2, sT3 = S(60), S(61), S(62), S(63)
sO0, sOX, sLdsW, sL = S(64), S(65), S(66), S(67)
sM28 = S(68, 2)
sOut, sW2d = S(70), S(71)
sZ, sFl, sStr, sEnd = S(73), S(74), S(75), S(76)
a0, a1, a2 = S(77), S(78), S(79)
sG = S(58)

def dma_xy(q, c):
    slot = (c % NXY) * XYS
    q.I("s_add_u32", M0, sLdsW, slot)
    q.I("buffer_load_dwordx4", vDX, SXs, sOX, mods="offen lds", tag=f"dma{c}")
    q.I("s_add_u32", M0, sLdsW, slot + PAGE)
    q.I("buffer_load_dwordx4", vDY, SYs, sOX, mods="offen lds", tag=f"dma{c}")
    if c < 13:
        q.I("s_add_u32", sOX, sOX, sStr)
        if c % 2 == 1:
            q.I("s_cmp_eq_u32", sOX, sEnd); q.I("s_cselect_b32", sOX, 0, sOX)
def dma_kv(q, b):
    q.I("s_add_u32", M0, sLdsW, KVB + (b % NKV) * PAGE)
    q.I("buffer_load_dwordx4", vD0, SQKV, sO0, mods="offen lds", tag=f"kv{b}")
    if b < 6:
        q.I("s_add_u32", sO0, sO0, 64 * 2688); q.I("s_cmp_eq_u32", sO0, 448 * 2688); q.I("s_cselect_b32", sO0, 0, sO0)
def ln_unit(q, b, g):
    x = xr(b, g); T = LT.sub(0, 8)
    for i in range(4):
        q.I("v_lshlrev_b32", T[2 * i], 16, x[i])
        q.I("v_and_b32", T[2 * i + 1], 0xFFFF0000, x[i])
    for i in range(8): q.I("v_fma_f32", T[i], T[i], vR[g], vNM[g])
    for i in range(4): q.I("v_cvt_pk_bf16_f32", x[i], T[2 * i], T[2 * i + 1])
def a_write(q, b, g):
    q.I("ds_write_b128", vAw, xr(b, g), mods=f"offset:{(b % 2) * ABLK + g * 128}", tag=f"aw{b}")

def k1_common(p, cfg, st):
    t1, t2, t3, t4, t5, t6, t7 = [V(i) for i in range(1, 8)]
    p.I("s_cmp_ge_u32", S(2), 256)
    p.raw("    s_cbranch_scc1 K1_END")
    p.I("s_load_dwordx8", S(4, 8), S(0, 2), 0)
    p.I("s_load_dwordx8", S(12, 8), S(0, 2), 32)
    p.I("s_load_dwordx4", S(20, 4), S(0, 2), 64)
    p.I("s_load_dwordx2", S(24, 2), S(0, 2), 80)
    st.stamp(p, True)
    if cfg["stamps"] != 2: st.stamp(p)
    p.I("v_lshrrev_b32", V(1), 6, V(0))
    p.I("v_readfirstlane_b32", S(3), V(1))
    p.I("v_and_b32", V(0), 63, V(0))
    p.I("s_and_b32", sT0, S(2), 7); p.I("s_lshr_b32", sT1, S(2), 3)
    lr = {0: 3, 2: 2, 1: 1}[cfg["k1map"]]
    nxr = 16 >> lr
    p.I("s_and_b32", sT2, sT0, nxr - 1); p.I("s_lshl_b32", sT2, sT2, lr)
    p.I("s_and_b32", sT3, sT1, (1 << lr) - 1); p.I("s_add_u32", sR, sT2, sT3)
    p.I("s_lshr_b32", sT2, sT0, 4 - lr)
    p.I("s_lshr_b32", sT1, sT1, lr)
    if cfg["jcont"]: p.I("s_lshl_b32", sJ, sT2, 5 - lr); p.I("s_add_u32", sJ, sJ, sT1)
    else: p.I("s_lshl_b32", sJ, sT1, lr - 1); p.I("s_add_u32", sJ, sJ, sT2)
    p.I("s_lshl_b32", sRot, sT3, 3 - lr)
    p.I("s_and_b32", a0, sT0, nxr - 1); p.I("s_add_u32", sRot, sRot, a0)
    p.I("s_cmp_ge_u32", sRot, 7); p.I("s_cselect_b32", sT2, 7, 0); p.I("s_sub_u32", sRot, sRot, sT2)
    p.I("s_cmp_ge_u32", sRot, 7); p.I("s_cselect_b32", sT2, 7, 0); p.I("s_sub_u32", sRot, sRot, sT2)
    if cfg["rot"] == 0: p.I("s_mov_b32", sRot, 0)
    elif cfg["rot"] == 2: p.I("s_and_b32", sRot, sT3, 1); p.I("s_mul_i32", sRot, sRot, 3)
    elif cfg["rot"] == 3: p.I("s_and_b32", sRot, sT3, 3); p.I("s_lshl_b32", sRot, sRot, 1)
    elif cfg["rot"] == 4: p.I("s_and_b32", sRot, sT3, 1)
    if lr == 3: p.I("s_lshl_b32", sG, sT1, 1)
    else: p.I("s_mov_b32", sG, sT1)
    if not cfg["xrot"]: p.I("s_mov_b32", sG, 0)
    p.I("s_add_u32", sG, sG, sW); p.I("s_and_b32", sG, sG, 7)
    r8, k8 = t1, t2
    p.I("v_lshrrev_b32", r8, 3, lane)
    p.I("v_and_b32", k8, 7, lane)
    p.I("s_lshl_b32", sT0, sR, 7); p.I("s_lshl_b32", sT1, sG, 4); p.I("s_add_u32", sT0, sT0, sT1)
    p.I("v_add_u32", t3, sT0, r8)
    p.I("v_mul_u32_u24", t3, 896, t3)
    p.I("v_lshl_add_u32", t3, k8, 4, t3)
    p.I("v_add_u32", t4, 8 * 896, t3)
    p.I("s_lshl_b32", sT0, sRot, 7)
    p.I("v_mov_b32", LT[8], t3); p.I("v_mov_b32", LT[9], t4); p.I("s_mov_b32", S(57), sT0)
    def xloads():
        srd(p, SX.n, 4, 2048 * 896)
        for b in range(7):
            p.I("buffer_load_dwordx4", xr(b, 0), LT[8], SX, S(57), mods="offen")
            p.I("buffer_load_dwordx4", xr(b, 1), LT[9], SX, S(57), mods="offen")
            if b < 6:
                p.I("s_add_u32", S(57), S(57), 128); p.I("s_cmp_eq_u32", S(57), 896); p.I("s_cselect_b32", S(57), 0, S(57))
    EARLY = cfg["early"]
    if EARLY != 2: xloads()
    if cfg["xbar"] == 2 and not EARLY:
        p.I("s_cmp_lt_u32", sW, 4); p.raw("    s_cbranch_scc1 K1_NB0"); p.I("s_barrier"); p.label("K1_NB0")
    if cfg["cpref"] and EARLY != 2: code_prefetch(p, NAME + "_kernel", "CODE_END", V(64, 4), t3, S(56, 2), sT0, sT1)
    srd(p, SQKV.n, 6, 448 * 2688)
    p.I("s_lshl_b32", sT1, sJ, 8)
    p.I("s_sub_u32", sT2, sJ, 14); p.I("s_mul_i32", sT2, sT2, 448)
    p.I("s_mov_b32", a0, 2688); p.I("s_mov_b32", a1, 448 * 2688)
    p.I("s_cmp_lt_u32", sJ, 14)
    p.I("s_cselect_b32", SXs[0], S(14), S(6)); p.I("s_cselect_b32", SXs[1], S(15), S(7))
    p.I("s_cselect_b32", SYs[0], S(16), S(6)); p.I("s_cselect_b32", SYs[1], S(17), S(7))
    p.I("s_cselect_b32", a0, 3584, a0)
    p.I("s_cselect_b32", sEnd, 448 * 3584, a1)
    p.I("s_cselect_b32", sT1, sT1, sT2)
    p.I("s_cselect_b32", a1, 2, 0)
    p.I("s_cselect_b32", a2, 0, 224)
    p.I("s_and_b32", SXs[1], SXs[1], 0xFFFF); p.I("s_and_b32", SYs[1], SYs[1], 0xFFFF)
    p.I("s_mov_b32", SXs[2], sEnd); p.I("s_mov_b32", SYs[2], sEnd)
    p.I("s_mov_b32", SXs[3], 0x20000); p.I("s_mov_b32", SYs[3], 0x20000)
    p.I("s_lshl_b32", sStr, a0, 5)
    p.I("s_mul_i32", sOX, sRot, sStr); p.I("s_lshl_b32", sOX, sOX, 1)
    p.I("v_lshrrev_b32", t3, 4, lane)
    p.I("v_and_b32", t4, 15, lane)
    p.I("v_lshlrev_b32", t5, 2, t3); p.I("v_xor_b32", t4, t4, t5)
    p.I("s_lshl_b32", sT0, sW, 2)
    p.I("v_add_u32", t3, sT0, t3)
    p.I("v_mul_u32_u24", t3, a0, t3)
    p.I("v_add_u32", t3, sT1, t3)
    p.I("v_lshl_add_u32", vDX, t4, 4, t3)
    p.I("v_xor_b32", t4, a1, t4)
    p.I("v_lshl_add_u32", vDY, t4, 4, t3)
    p.I("v_add_u32", vDY, a2, vDY)
    p.I("s_lshl_b32", sLdsW, sW, 10)
    p.I("v_bfe_u32", t5, r8, 1, 1)
    p.I("v_lshlrev_b32", t5, 2, t5)
    p.I("v_xor_b32", t5, t5, k8)
    p.I("s_lshl_b32", sT0, sW, 3)
    p.I("v_add_u32", t6, sT0, r8)
    p.I("v_lshrrev_b32", t3, 2, t5); p.I("v_mul_u32_u24", t3, 896, t3)
    p.I("v_and_b32", t4, 3, t5); p.I("v_lshl_add_u32", t3, t4, 4, t3)
    p.I("v_mul_u32_u24", t4, 2688, t6); p.I("v_add_u32", t3, t3, t4)
    p.I("s_mul_i32", sT1, sJ, 56); p.I("s_add_u32", sT1, sT1, 896)
    p.I("v_add_u32", vD0, sT1, t3)
    p.I("s_mul_i32", sO0, sRot, 64 * 2688)
    if EARLY == 1: p.I("s_barrier")
    if EARLY:
        dma_xy(p, 0); dma_kv(p, 0)
        if EARLY == 2:
            xloads()
            if cfg["cpref"]: code_prefetch(p, NAME + "_kernel", "CODE_END", V(64, 4), t3, S(56, 2), sT0, sT1)
        dma_xy(p, 1)
    p.I("v_mul_u32_u24", vAw, 528, k8)
    p.I("v_lshl_add_u32", vAw, r8, 4, vAw)
    p.I("s_lshr_b32", sT0, sG, 1); p.I("s_mul_i32", sT0, sT0, 8 * 528)
    p.I("s_and_b32", sT1, sG, 1); p.I("s_lshl_b32", sT2, sT1, 8)
    p.I("s_add_u32", sT0, sT0, sT2); p.I("s_add_u32", sT0, sT0, ASB)
    p.I("v_add_u32", vAw, sT0, vAw)
    p.I("s_and_b32", sT1, sW, 1)
    srd(p, SWS.n, 24, WS_BYTES)
    p.I("v_lshlrev_b32", vSt, 4, lane)
    p.I("v_and_b32", u1, 31, lane)
    p.I("v_lshrrev_b32", u2, 5, lane)
    p.I("v_mul_u32_u24", vAr, 528, u2)
    p.I("v_lshl_add_u32", vAr, u1, 4, vAr)
    p.I("s_mul_i32", sT2, sT1, 16 * 528); p.I("s_add_u32", sT2, sT2, ASB)
    p.I("v_add_u32", vAr, sT2, vAr)
    p.I("v_mov_b32", vC2, f2u(GC2))
    sm = [LT[0], LT[1]]; sq = [LT[2], LT[3]]; ones = LT[4]
    p.I("v_mov_b32", ones, 0x3F803F80)
    for r in sm + sq: p.I("v_mov_b32", r, 0)
    for b in range(7):
        for g in range(2):
            for i in range(4):
                p.I("v_dot2c_f32_bf16", sm[g], xr(b, g)[i], ones)
                p.I("v_dot2c_f32_bf16", sq[g], xr(b, g)[i], xr(b, g)[i])
    for mod in ("quad_perm:[1,0,3,2]", "quad_perm:[2,3,0,1]", "row_half_mirror"):
        for r in sm + sq:
            p.I("v_add_f32_dpp", r, r, r, mods=mod + " row_mask:0xf bank_mask:0xf")
    for g in range(2):
        p.I("v_mul_f32", sm[g], f2u(1.0 / 448), sm[g])
        p.I("v_mul_f32", sq[g], f2u(1.0 / 448), sq[g])
    for g in range(2): p.I("v_fma_f32", sq[g], Neg(sm[g]), sm[g], sq[g])
    for g in range(2): p.I("v_max_f32", sq[g], 0, sq[g])
    for g in range(2): p.I("v_add_f32", sq[g], f2u(1e-5), sq[g])
    for g in range(2): p.I("v_rsq_f32", vR[g], sq[g])
    for g in range(2): p.I("v_mul_f32_e64", vNM[g], Neg(sm[g]), vR[g])
    st.stamp(p)
    if not EARLY:
        p.I("s_lshr_b32", a0, sStr, 1)
        if cfg["xbar"] == 2:
            p.I("s_cmp_ge_u32", sW, 4); p.raw("    s_cbranch_scc1 K1_NB1"); p.I("s_barrier"); p.label("K1_NB1")
        p.I("s_cmp_ge_u32", sW, 4)
        p.raw("    s_cbranch_scc1 K1_NODMA")
        p.I("s_mov_b32", a1, sOX)
        for c in range(2):
            for hh in range(2):
                if hh: p.I("s_add_u32", a2, a1, a0)
                so = a2 if hh else a1
                p.I("s_add_u32", M0, sLdsW, c * XYS + hh * 4096)
                p.I("buffer_load_dwordx4", vDX, SXs, so, mods="offen lds", tag=f"dma{c}")
                p.I("s_add_u32", M0, sLdsW, c * XYS + PAGE + hh * 4096)
                p.I("buffer_load_dwordx4", vDY, SYs, so, mods="offen lds", tag=f"dma{c}")
            if c == 0:
                p.I("s_add_u32", a1, a1, sStr)
                p.I("s_add_u32", M0, sLdsW, KVB)
                p.I("buffer_load_dwordx4", vD0, SQKV, sO0, mods="offen lds", tag="kv0")
                if not cfg["fast0"]:
                    p.I("s_add_u32", a2, sO0, 32 * 2688)
                    p.I("s_add_u32", M0, sLdsW, KVB + 4096)
                    p.I("buffer_load_dwordx4", vD0, SQKV, a2, mods="offen lds", tag="kv0")
            elif cfg["fast0"]:
                p.I("s_add_u32", a2, sO0, 32 * 2688)
                p.I("s_add_u32", M0, sLdsW, KVB + 4096)
                p.I("buffer_load_dwordx4", vD0, SQKV, a2, mods="offen lds", tag="dma1")
        p.label("K1_NODMA")
        p.I("s_add_u32", sOX, sOX, sStr); p.I("s_add_u32", sOX, sOX, sStr)
        p.I("s_cmp_eq_u32", sOX, sEnd); p.I("s_cselect_b32", sOX, 0, sOX)
        p.I("s_add_u32", sO0, sO0, 64 * 2688); p.I("s_cmp_eq_u32", sO0, 448 * 2688); p.I("s_cselect_b32", sO0, 0, sO0)
    ln_unit(p, 0, 0); a_write(p, 0, 0); ln_unit(p, 0, 1); a_write(p, 0, 1)
    for c in range(2, cfg["npre"]): dma_xy(p, c)
    dma_kv(p, 1)
    p.I("s_cmp_ge_u32", sJ, 14)
    p.raw("    s_cbranch_scc1 K1_Q")
    p.I("s_cmp_ge_u32", S(3), 4)
    p.raw("    s_cbranch_scc1 K1_F1")

def gen_k1(cfg):
    name = NAME + "_kernel"
    txt = kernel_header(name)
    first = True
    for typ in ("F", "Q"):
        for grp in (0, 1):
            p = Prog(); st = Stamps(cfg["stamps"], 0)
            if cfg["stamps"] == 2:
                o2 = st.stamp
                st.stamp = lambda pp, real=False, o2=o2: o2(pp, True)
            if cfg.get("its") is not None:
                orig = st.stamp
                def stamp2(pp, real=False, force=False, orig=orig):
                    if real or force: orig(pp, real)
                st.stamp = stamp2
            k1_common(p, cfg, st)
            mark = p.raw("; ---- role code ----")
            if typ == "Q" and grp == 0:
                p.label("K1_Q"); p.I("s_cmp_ge_u32", S(3), 4); p.raw("    s_cbranch_scc1 K1_Q1")
            elif grp == 1: p.label(f"K1_{typ}1")
            k1_role(p, typ, grp, cfg, st)
            L = finalize(p)
            k = L.index(mark)
            txt += render(L if first else L[k:])
            first = False
    txt += "K1_END:\n    s_endpgm\n"
    return txt, kernel_desc(name, 256)

def k1_role(p, typ, grp, cfg, st):
    t1, t2, t3, t4, t5, t6, t7 = [V(i) for i in range(1, 8)]
    stp = " sc1" if cfg["sc1"] else ""
    NT = 3
    ch, r4, cq = t3, t4, t5
    p.I("v_bfe_u32", ch, lane, 4, 1); p.I("v_bfe_u32", r4, lane, 2, 2); p.I("v_and_b32", cq, 3, lane)
    p.I("v_lshl_add_u32", t6, u2, 3, r4)
    p.I("v_lshlrev_b32", cq, 3, cq)
    p.I("v_lshl_add_u32", t1, ch, 5, cq)
    p.I("v_lshlrev_b32", t7, 6, r4)
    p.I("s_lshr_b32", sT0, sW, 1); p.I("s_and_b32", sT0, sT0, 1)
    if grp == 0: p.I("s_mul_i32", sT1, sT0, 3)
    else: p.I("s_add_u32", sT1, sT0, 6)
    nxy = 3 if grp == 0 else 1
    for t in range(nxy):
        if t: p.I("s_add_u32", sT1, sT1, 1)
        if typ == "F":
            p.I("s_lshl_b32", sT2, sT1, 5)
            p.I("v_xor_b32", t2, sT2, t1); p.I("v_xor_b32", t2, t2, t7)
            p.I("v_lshl_add_u32", t2, ch, 13, t2)
        else:
            p.I("s_and_b32", sT2, sT1, 3); p.I("s_mul_i32", sT2, sT2, 56)
            p.I("s_lshr_b32", sT3, sT1, 2); p.I("s_lshl_b32", sT3, sT3, 13)
            p.I("v_add_u32", t2, sT2, t1); p.I("v_xor_b32", t2, t2, t7)
            p.I("v_add_u32", t2, sT3, t2)
        p.I("v_lshl_add_u32", vBt[t][0], t6, 8, t2)
        p.I("v_add_u32", vBt[t][1], 3 * XYS, vBt[t][0])
    if grp == 1:
        p.I("v_bfe_u32", t7, lane, 3, 1); p.I("v_lshlrev_b32", t7, 6, t7)
        p.I("v_xor_b32", t2, t1, t7)
        p.I("v_lshl_add_u32", t2, t6, 7, t2)
        p.I("v_add_u32", vBt[1][0], KVB, t2)
        p.I("v_xor_b32", vBt[2][0], 64, vBt[1][0])
    p.I("s_and_b32", sT2, sW, 1); p.I("s_lshl_b32", sT2, sT2, 1); p.I("s_lshl_b32", sT3, sR, 2); p.I("s_add_u32", sT2, sT2, sT3)
    if nxy > 1: p.I("s_sub_u32", sT1, sT1, nxy - 1)
    if typ == "F":
        p.I("s_mul_i32", sOut, sT2, NKS * 1024)
        p.I("s_lshl_b32", sT3, sJ, 3); p.I("s_add_u32", sT3, sT3, sT1); p.I("s_lshl_b32", sT3, sT3, 10)
        p.I("s_add_u32", sOut, sOut, sT3)
        RTS, TS = NKS * 1024, 1024
    else:
        p.I("s_lshl_b32", sOut, sT2, 15)
        p.I("s_sub_u32", sT3, sJ, 14); p.I("s_lshl_b32", sT3, sT3, 3); p.I("s_add_u32", sT3, sT3, sT1); p.I("s_lshl_b32", sT3, sT3, 11)
        p.I("s_add_u32", sOut, sOut, sT3); p.I("s_add_u32", sOut, sOut, QF_OFF)
        RTS, TS = 1 << 15, 2048
    if grp == 1:
        p.I("s_mul_i32", sT3, sT0, 8 * 528)
        p.I("v_add_u32", u3, 8 * 528, vAr); p.I("v_subrev_u32", u3, sT3, u3)
        p.I("v_add_u32", vAr, sT3, vAr)
        p.I("v_mov_b32", V(243), u3)
        p.I("s_mul_i32", sT3, sT0, RTS)
        p.I("s_add_u32", a0, sOut, RTS); p.I("s_sub_u32", a0, a0, sT3)
        p.I("s_add_u32", sOut, sOut, sT3)
        p.I("s_mov_b32", S(59), a0)
    vAr2 = V(243); sOut2 = S(59)
    ln_unit(p, 1, 0)

    def b_reads(c, ks, t):
        dst = BF[ks][t]
        if grp == 0 or t == 0:
            slot = c % NXY; var = slot // 3
            off = (slot % 3) * XYS + 16 * ks * 256
            return [Inst("ds_read_b64_tr_b16", (dst.sub(2 * pp, 2), vBt[t][var]), f"offset:{off + pp * 1024}") for pp in range(2)]
        off = ((c >> 1) % NKV) * PAGE + (32 * (c & 1) + 16 * ks) * 128
        return [Inst("ds_read_b64_tr_b16", (dst.sub(2 * pp, 2), vBt[t][0]), f"offset:{off + pp * 512}") for pp in range(2)]
    def a_read(c, ks, i):
        b = c >> 1; k4 = 2 * (c & 1) + ks
        if grp == 0: return Inst("ds_read_b128", (AFr[ks][i], vAr), f"offset:{(b % 2) * ABLK + (i * 4 + k4) * 2 * 528}")
        return Inst("ds_read_b128", (AFr[ks][i], vAr if i == 0 else vAr2), f"offset:{(b % 2) * ABLK + k4 * 2 * 528}")
    def reads(c, ks):
        return [a_read(c, ks, 0)] + b_reads(c, ks, 0) + [a_read(c, ks, 1)] + b_reads(c, ks, 1) + b_reads(c, ks, 2)
    def mfmas(c, ks):
        f = (c == 0 and ks == 0)
        M = lambda d, a, b: Inst(MF, (d, a, b, 0 if f else d))
        if grp == 0: return [M(ACC[2 * t + i], BF[ks][t], AFr[ks][i]) for t in range(3) for i in range(2)]
        return [M(ACC[0], BF[ks][0], AFr[ks][0]), M(ACC[1], BF[ks][0], AFr[ks][1]),
                M(ACC[2], BF[ks][1], AFr[ks][0]), M(ACC[3], AFr[ks][0], BF[ks][2])]

    seg = {n: Prog() for n in range(15)}
    W2T = XR.sub(0, 8); WT = XR.sub(8, 16)
    q = seg[11]
    srd(q, SD.n, 22, 256)
    q.I("v_lshlrev_b32", vL0, 2, lane)
    q.I("buffer_load_dword", vTk, vL0, SD, 0, mods="offen sc1")
    if cfg["wdpf"]:
        q = seg[cfg["wdpf"]]
        if cfg["wdmode"] == 0:
            q.I("s_lshr_b32", sT0, S(2), 3); q.I("s_lshl_b32", sT0, sT0, 3); q.I("s_add_u32", sT0, sT0, sW); q.I("s_lshl_b32", sT0, sT0, 13)
        else:
            q.I("s_lshl_b32", sT0, S(2), 3); q.I("s_add_u32", sT0, sT0, sW); q.I("s_lshl_b32", sT0, sT0, 10)
        q.I("s_sub_u32", sT1, sT0, 1792 * 896)
        q.I("s_mov_b32", sT2, 448 * 896)
        q.I("s_cmp_lt_u32", sT0, 1792 * 896)
        q.I("s_cselect_b32", SX[0], S(18), S(10)); q.I("s_cselect_b32", SX[1], S(19), S(11))
        q.I("s_cselect_b32", SX[2], 1792 * 896, sT2)
        q.I("s_cselect_b32", sT0, sT0, sT1)
        q.I("s_and_b32", SX[1], SX[1], 0xFFFF)
        if cfg["wdmode"] == 0:
            q.I("v_lshlrev_b32", u3, 7, lane)
            q.I("buffer_load_dword", XR[0], u3, SX, sT0, mods="offen")
        else:
            q.I("buffer_load_dwordx4", XR.sub(0, 4), vSt, SX, sT0, mods="offen")
    if cfg["l2pf"]:
        f0 = cfg["l2pf"]
        q = seg[f0]
        sPf = S(71)
        q.I("s_lshr_b32", sT0, S(2), 3); q.I("s_lshl_b32", sT0, sT0, 3); q.I("s_add_u32", sT0, sT0, sW); q.I("s_lshl_b32", sT0, sT0, 13)
        q.I("s_sub_u32", sT1, sT0, 1792 * 896)
        q.I("s_mov_b32", sT2, 448 * 896)
        q.I("s_cmp_lt_u32", sT0, 1792 * 896)
        q.I("s_cselect_b32", SX[0], S(18), S(10)); q.I("s_cselect_b32", SX[1], S(19), S(11))
        q.I("s_cselect_b32", SX[2], 1792 * 896, sT2)
        q.I("s_cselect_b32", sPf, sT0, sT1)
        q.I("s_and_b32", SX[1], SX[1], 0xFFFF)
        q.I("v_lshlrev_b32", V(252), 7, lane); q.I("v_mov_b32", V(253), BIG)
        q.I("v_cmp_gt_u32", VCC, 64 // cfg["l2n"], lane); q.I("v_cndmask_b32", V(252), V(253), V(252), VCC)
        for i in range(cfg["l2n"]):
            q = seg[f0 + i * cfg["l2s"]]
            q.I("buffer_load_dword", V(254), V(252), SX, sPf, mods="offen")
            q.I("s_add_u32", sPf, sPf, 8192 // cfg["l2n"])
    IDN = XR.sub(24, 8)
    if grp == 1:
        q = seg[0]
        srd(q, SD.n, 22, 256)
        q.I("v_mov_b32", u5, BIG)
        q.I("v_cmp_eq_u32", VCC, 0, lane)
        q.I("v_cndmask_b32", vL0, u5, 0, VCC)
        q.I("s_lshl_b32", sT0, sJ, 2); q.I("s_add_u32", sT0, sT0, sW); q.I("s_sub_u32", sT0, sT0, 4)
        q.I("s_lshl_b32", sT1, sT0, 11); q.I("s_add_u32", sT1, sT1, KVA_OFF)
        q.I("s_lshl_b32", sT2, sT0, 8); q.I("s_add_u32", sT2, sT2, FLG_OFF)
        q.I("s_lshl_b32", sFl, sT0, 2)
        q.I("s_lshl_b32", sZ, sJ, 13); q.I("s_add_u32", sZ, sZ, KVA_OFF)
        q.I("s_cmp_eq_u32", sR, sJ)
        q.I("s_cselect_b32", sT2, sT2, BIG)
        q.I("s_cselect_b32", sT1, sT1, BIG)
        q.I("s_cselect_b32", sFl, sFl, BIG)
        ZR = V(128, 4)
        for i in range(4): q.I("v_mov_b32", ZR[i], 0)
        for s in range(2): q.I("buffer_store_dwordx4", ZR, vSt, SWS, sT1, mods=f"offen offset:{s*1024} sc1", tag="zs")
        q.I("v_cmp_gt_u32", VCC, 16, lane)
        q.I("v_cndmask_b32", u3, u5, vSt, VCC)
        q.I("buffer_store_dwordx4", ZR, u3, SWS, sT2, mods="offen sc1", tag="zs")
        q = seg[5]
        q.I("v_mov_b32", vTk, 1)
        q.waittag("zs")
        q.I("buffer_store_dword", vTk, vL0, SD, sFl, mods="offen sc1")
        q = seg[10]
        srd(q, SPHI.n, 8, 16 * 1568)
        q.I("s_mov_b32", sL, f2u(LOG2E))
        wphi_gather(q, WT, SPHI, sJ, sT0, lane, u1, u2, u3, u4, u5)
        q.I("v_cmp_eq_u32", VCC, 0, u2)
        q.I("v_cndmask_b32", vMask, 0, 1.0, VCC)
        q = seg[12]
        q.I("v_cmp_eq_u32", sM28, 28, u1)
        q.I("v_lshlrev_b32", u3, 2, u2); q.I("v_sub_u32", u3, u1, u3)
        q.I("v_and_b32", u4, 1, u3); q.I("v_lshlrev_b32", u4, 4, u4); q.I("v_mov_b32", u5, 0x3F80); q.I("v_lshlrev_b32", u4, u4, u5)
        q.I("v_lshrrev_b32", u3, 1, u3)
        for s in range(2):
            for i in range(4):
                f0 = 16 * s + 8 * ((2 * i) >> 2) + ((2 * i) & 3)
                q.I("v_cmp_eq_u32", VCC, f0 // 2, u3)
                q.I("v_cndmask_b32", IDN[4 * s + i], 0, u4, VCC)
        q = seg[13]
        for i in range(8): q.I("v_lshl_or_b32", WPHI[i], WT[2 * i + 1], 16, WT[2 * i])
    q = seg[12]
    q.I("v_mov_b32", LT[8], 0); q.I("v_mov_b32", LT[9], KVL)
    q.I("ds_write_b32", LT[9], LT[8], tag="zl")

    PO = [4, 5, 6, 7, 13, 8, 9, 10, 11, 14, 0, 1, 2, 3, 12]
    PAV = [9, 9, 10, 10, 10, 11, 11, 12, 12, 12, 13, 13]
    if grp == 0:
        SWD, SWO, SO = SPHI, SXs, SYs
        sRB, sCB, sBd, sBo, sRing, sTm = S(67), S(68), S(69), S(66), S(58), S(59)
        vE0, vE1 = V(244), V(245); vT = [[V(246), V(247)], [V(238), V(239)]]
        q = seg[8]
        srd(q, SWD.n, 18, 1792 * 896)
        q.I("s_sub_u32", sT2, S(2), 32)
        q.I("s_and_b32", sT0, sT2, 7); q.I("s_lshr_b32", sT1, sT2, 3)
        q.I("s_mul_i32", sT2, sT1, 37); q.I("s_lshr_b32", sT2, sT2, 8)
        q.I("s_lshl_b32", sRB, sT0, 2); q.I("s_add_u32", sRB, sRB, sT2)
        q.I("s_mul_i32", sT2, sT2, 7); q.I("s_sub_u32", sCB, sT1, sT2)
        q.I("s_lshl_b32", sT0, sCB, 7)
        q.I("s_mul_i32", sBd, sW, 28 * 16 * 896); q.I("s_add_u32", sBd, sBd, sT0)
        q.I("s_cmp_lt_u32", S(2), 32); q.I("s_cselect_b32", sBd, BIG, sBd)
        q.I("s_lshl_b32", sRing, sW, 11)
        q.I("v_lshrrev_b32", t1, 3, lane); q.I("v_and_b32", t2, 7, lane)
        q.I("v_bfe_u32", t3, lane, 4, 1); q.I("v_lshlrev_b32", t3, 2, t3); q.I("v_xor_b32", t2, t2, t3)
        q.I("v_mul_u32_u24", vE0, 896, t1); q.I("v_lshl_add_u32", vE0, t2, 4, vE0)
        def bdma(q, k):
            for i in range(2):
                if k < 28:
                    q.I("s_add_u32", sTm, sBd, (16 * k + 8 * i) * 896); sr, va = SWD, vE0
                else:
                    kk = k - 28
                    q.I("s_add_u32", sTm, sBo, ((kk >> 1) * 28 + 16 * (kk & 1) + 8 * i) * 896); sr = SWO
                    va = vE1 if (kk & 1 and i == 1) else vE0
                q.I("s_add_u32", M0, sRing, PO[k % NB] * PAGE + i * 1024)
                q.I("buffer_load_dwordx4", va, sr, sTm, mods="offen lds", tag=f"b{k}")
        NL = cfg["bloop"]
        for k in range(NL): bdma(seg[max(PAV[k], cfg["bstart"])], k)

    if cfg["fast0"]: p.waittag("dma0", "kv0", "aw0")
    else: p.waittag("dma0", "dma1", "kv0", "aw0")
    p.I("s_barrier")
    st.stamp(p)
    p.L.extend(reads(0, 0))
    nxt = cfg["npre"]
    for c in range(14):
        fill = Prog()
        ln = Prog()
        if c % 2 == 0:
            b = c // 2 + 1
            if b < 7: a_write(ln, b, 0); ln_unit(ln, b, 1); a_write(ln, b, 1)
        else:
            b = (c + 3) // 2
            if b < 7: ln_unit(ln, b, 0)
        dm = Prog()
        cnt = 0
        while nxt < 14 and nxt <= c + cfg["la"] and cnt < 2:
            dma_xy(dm, nxt); nxt += 1; cnt += 1
        kvp = cfg["kvodd"]
        if c % 2 == kvp and c // 2 + 2 < 7: dma_kv(dm, c // 2 + 2)
        if cfg["spread"]:
            groups = []; cur = []
            for i in dm.L:
                cur.append(i)
                if i.kind == "dma": groups.append(cur); cur = []
            if groups: groups[-1] += cur
            n = len(groups)
            step = max(1, len(ln.L) // max(1, n))
            k = 0
            for gi in range(n):
                fill.extend(groups[gi]); fill.extend(ln.L[k:k + step]); k += step
            fill.extend(ln.L[k:])
        else:
            fill.extend(ln); fill.extend(dm)
        if cfg.get("no_dma"): fill.L = [i for i in fill.L if i.kind != "dma"]
        if cfg.get("no_lnw"): fill.L = [i for i in fill.L if i.kind != "lwrite"]
        if cfg.get("no_lnv"): fill.L = [i for i in fill.L if i.kind != "valu"]
        fill.extend(seg[c])
        F = fill.L
        nm = 12 if grp == 0 else 8
        per = len(F) / max(1.0, nm * cfg["front"] / 100.0)
        acc = 0.0; fi = 0
        if cfg["pp"]:
            per = cfg["ppin"] / 10.0
            if grp == 1:
                nin = min(len(F), int(per * nm))
                p.L.extend(F[:len(F) - nin]); fi = len(F) - nin
        if cfg["prio"] and cfg["pp"]: p.I("s_setprio", 1)
        for ks in range(2):
            nc, nks = (c, 1) if ks == 0 else (c + 1, 0)
            if cfg["fast0"] and c == 0 and ks == 1:
                p.waittag("dma1"); p.I("s_barrier")
            rd = reads(nc, nks) if nc < 14 else []
            ms = mfmas(c, ks)
            rp = 2 if grp == 0 else 3
            for m in ms:
                p.L.append(m)
                p.L.extend(rd[:rp]); rd = rd[rp:]
                acc += per
                while acc >= 1 and fi < len(F):
                    p.L.append(F[fi]); fi += 1; acc -= 1
        if cfg["prio"] and cfg["pp"]: p.I("s_setprio", 0)
        p.L.extend(F[fi:])
        if c + 1 < 14:
            if cfg.get("its") is not None and cfg["its"] <= c < cfg["its"] + 4: st.stamp(p, force=True)
            p.waittag(f"dma{c+2}", f"kv{(c+2)//2}", f"aw{(c+2)//2}", "zl")
            p.I("s_barrier")
            if cfg.get("its") is not None and cfg["its"] <= c < cfg["its"] + 4: st.stamp(p, force=True)
    st.stamp(p)
    uid = f"{typ}{grp}"
    def spin(name, vd, va, srdreg, soff, mask=None, sleep=4, first_loaded=False):
        cmp = f"    v_cmp_ne_u32 vcc, 1, {vd}\n" + (f"    s_nop 4\n    s_and_b64 vcc, vcc, {mask}\n" if mask is not None else "    s_nop 4\n")
        L = f"SP_{name}_{uid}"
        t = ""
        if first_loaded:
            p.I("v_mov_b32", vd, vd)
            t += cmp + f"    s_cbranch_vccz {L}_OK\n"
        t += (f"    s_mov_b32 s61, 0\n{L}:\n    buffer_load_dword {vd}, {va}, {srdreg}, {soff} offen sc1\n    s_add_u32 s61, s61, 1\n    s_cmp_gt_u32 s61, 0x20000\n"
              f"    s_cbranch_scc1 {L}_OK\n    s_waitcnt vmcnt(0)\n" + cmp + f"    s_cbranch_vccz {L}_OK\n    s_sleep {sleep}\n    s_branch {L}\n{L}_OK:")
        p.raw(t)
    p.I("s_barrier")
    spin("Z", vTk, vL0, SD, 0, first_loaded=True)
    OUT = V(160, 40); TMP = XR.sub(32, 24)
    cnt = [0]
    def tile_epi(q, acc, so, off):
        k = cnt[0]; cnt[0] += 1
        if typ == "F":
            o = OUT.sub(4 * (k % 6), 4)
            if cfg["pk"]: gelu_pk(q, acc, TMP.sub(8 * (k % 2), 8), o, TMP.sub(16, 2))
            else: gelu_tile(q, acc, TMP.sub(8 * (k % 2), 8), o, vC2)
            q.I("buffer_store_dwordx4", o, vSt, SWS, so, mods=f"offen offset:{off} sc1", tag="hst")
        else:
            o = OUT.sub(8 * (k % 4), 8)
            for i in range(8): q.I("v_cvt_pk_bf16_f32", o[i], acc[2 * i], acc[2 * i + 1])
            for s in range(2): q.I("buffer_store_dwordx4", o.sub(4 * s, 4), vSt, SWS, so, mods=f"offen offset:{off + s*1024} sc1", tag="hst")
    p.I("v_mov_b32", TMP[16], f2u(GC2)); p.I("v_mov_b32", TMP[17], f2u(GC1))
    vOne, vLn0 = V(241), V(242)
    p.I("v_mov_b32", vOne, 1); p.I("v_mov_b32", u5, BIG)
    p.I("v_cmp_eq_u32", VCC, 0, lane)
    p.I("v_cndmask_b32", vLn0, u5, 0, VCC)
    def set_hflag():
        p.I("s_lshl_b32", sT0, sR, 1); p.I("s_and_b32", sT1, sW, 1); p.I("s_add_u32", sT0, sT0, sT1); p.I("s_lshl_b32", sT0, sT0, 8)
        p.I("s_lshl_b32", sT1, sJ, 2); p.I("s_lshr_b32", sT2, sW, 1); p.I("s_add_u32", sT1, sT1, sT2); p.I("s_lshl_b32", sT1, sT1, 2)
        p.I("s_add_u32", sT0, sT0, sT1); p.I("s_add_u32", sT0, sT0, HF_OFF)
        p.waittag("hst")
        p.I("buffer_store_dword", vOne, vLn0, SWS, sT0, mods="offen sc1")
    if grp == 0:
        srd(p, SWO.n, 10, 448 * 896); srd(p, SO.n, 20, 2048 * 896)
        p.I("s_lshl_b32", sT0, sCB, 7)
        p.I("s_mul_i32", sBo, sW, 4 * 28 * 896); p.I("s_add_u32", sBo, sBo, sT0)
        p.I("v_cmp_gt_u32", VCC, 32, lane)
        p.I("v_cndmask_b32", vE1, u5, vE0, VCC)
        p.I("v_bfe_u32", t1, lane, 2, 2); p.I("v_lshl_add_u32", t1, u2, 2, t1)
        p.I("v_bfe_u32", t2, lane, 4, 1); p.I("v_and_b32", t3, 3, lane); p.I("v_lshlrev_b32", t3, 3, t3); p.I("v_lshl_add_u32", t2, t2, 5, t3)
        p.I("v_bfe_u32", t3, lane, 3, 1); p.I("v_lshlrev_b32", t3, 6, t3); p.I("v_xor_b32", t2, t2, t3)
        p.I("v_lshl_add_u32", vT[0][0], t1, 7, t2); p.I("v_add_u32", vT[0][0], sRing, vT[0][0])
        p.I("v_xor_b32", vT[1][0], 64, vT[0][0])
        for c in range(2): p.I("v_add_u32", vT[c][1], 7 * PAGE, vT[c][0])
        E = Prog(); Dm = Prog()
        p.I("s_add_u32", sT3, sOut, RTS)
        p.I("s_add_u32", a1, sOut, 2 * TS); p.I("s_add_u32", a2, sT3, 2 * TS)
        for t in range(3):
            for i in range(2):
                if t < 2: tile_epi(E, ACC[2 * t + i], sOut if i == 0 else sT3, t * TS)
                else: tile_epi(E, ACC[2 * t + i], a1 if i == 0 else a2, 0)
        NE = cfg["bearly"]
        NE = max(NE, NL)
        for k in range(NL, NE): bdma(Dm, k)
        grp3 = [Dm.L[i:i + 3] for i in range(0, len(Dm.L), 3)]
        step = max(1, int(len(E.L) * 0.5) // max(1, len(grp3)))
        k = 0
        for g3 in grp3:
            p.L.extend(g3); p.L.extend(E.L[k:k + step]); k += step
        p.L.extend(E.L[k:])
        set_hflag()
        st.stamp(p)
        p.I("s_cmp_lt_u32", S(2), 32)
        p.raw(f"    s_cbranch_scc1 P2_END_{uid}")
        BP = cfg["bpre"]
        for k in range(NE, BP): bdma(p, k)
        nb = [BP]
        DA = cfg["da"]
        AC2 = [[V(64 + 32 * r + 16 * c, 16) for c in range(2)] for r in range(2)]
        NR = cfg["nreg"]
        assert DA <= 4
        BB = [V(40 + 8 * i, 8) for i in range(2)]
        AB = [V(8 + 8 * d, 8) for d in range(DA)]
        RB = [V(128 + 8 * k, 8) for k in range(12)]
        def bfrag(k): return RB[k] if k < NR else BB[k & 1]
        VO = V(56, 7); XV = V(248, 8); vP, vZ, vG, vLr, vLw = V(228), V(229), V(230), V(231), V(232)
        sA = [S(70), S(71)]; sAo = [S(73), S(74)]; sFlag = S(75); sM56 = S(76, 2) if False else S(56, 2)
        p.I("s_mul_i32", sT0, sW, 28 * 1024)
        p.I("s_mul_i32", sT1, sRB, 2 * NKS * 1024); p.I("s_add_u32", sA[0], sT1, sT0); p.I("s_add_u32", sA[1], sA[0], NKS * 1024)
        p.I("s_lshl_b32", sT0, sW, 13); p.I("s_add_u32", sT0, sT0, 112 * 1024)
        p.I("s_add_u32", sAo[0], sT1, sT0); p.I("s_add_u32", sAo[1], sAo[0], NKS * 1024)
        for m in range(7): p.I("v_add_u32", VO[m], 4096 * m, vSt)
        srd(p, SX.n, 4, 2048 * 896)
        p.I("s_lshl_b32", sT0, sW, 6); p.I("v_add_u32", t1, sT0, lane)
        p.I("v_lshrrev_b32", t2, 3, t1); p.I("v_and_b32", t3, 7, t1)
        p.I("s_lshl_b32", sT0, sRB, 6)
        p.I("v_add_u32", vG, sT0, t2); p.I("v_mul_u32_u24", vG, 896, vG); p.I("v_lshl_add_u32", vG, t3, 4, vG)
        p.I("s_lshl_b32", sT0, sCB, 7); p.I("v_add_u32", vG, sT0, vG)
        p.I("v_mul_u32_u24", vLr, K2_ROW, t2); p.I("v_lshl_add_u32", vLr, t3, 5, vLr)
        p.I("v_mul_u32_u24", vLw, K2_ROW, u1); p.I("v_lshl_add_u32", vLw, u2, 4, vLw)
        p.I("s_mul_i32", sT0, sW, 64 * K2_ROW); p.I("v_add_u32", vLw, sT0, vLw)
        p.I("v_lshlrev_b32", vZ, 2, lane)
        if cfg["hmask"]:
            p.I("s_mul_i32", sT0, sW, 7); p.I("s_lshr_b32", sT0, sT0, 1); p.I("s_lshl_b32", sT0, sT0, 2)
            p.I("s_mov_b32", sM56[0], 0xFFFF); p.I("s_mov_b32", sM56[1], 0)
            p.I("s_lshl_b64", sM56, sM56, sT0)
        else:
            p.I("s_mov_b32", sM56[0], -1); p.I("s_mov_b32", sM56[1], 0x00FFFFFF)
        p.I("s_lshl_b32", sFlag, sRB, 8); p.I("s_add_u32", sFlag, sFlag, HF_OFF)
        p.I("s_mov_b32", a0, 32 * 896)
        p.I("buffer_load_dwordx4", XV.sub(0, 4), vG, SX, 0, mods="offen")
        p.I("buffer_load_dwordx4", XV.sub(4, 4), vG, SX, a0, mods="offen")
        def bread(k):
            p.waittag(f"b{k}")
            for c in range(2):
                for pp in range(2):
                    p.I("ds_read_b64_tr_b16", bfrag(k).sub(4 * c + 2 * pp, 2), vT[c][1 if PO[k % NB] >= 7 else 0], mods=f"offset:{(PO[k % NB] - (7 if PO[k % NB] >= 7 else 0)) * PAGE + pp * 1024}", tag=f"r{k}")
        for k in range(NR):
            bread(k)
            if k >= 1 and nb[0] < cfg["bpre2"] and nb[0] - NB <= k - 1:
                p.waittag(f"r{k-1}"); bdma(p, nb[0]); nb[0] += 1
        while nb[0] < cfg["bpre2"] and nb[0] - NB <= NR - 1:
            p.waittag(f"r{NR-1}"); bdma(p, nb[0]); nb[0] += 1
        spin("H", vP, vZ, SWS, sFlag, mask=sM56, sleep=cfg["slh"])
        if cfg["inv"]: p.I("buffer_inv", mods="sc1")
        st.stamp(p)
        p.I("s_lshl_b32", sFlag, sRB, 7); p.I("s_add_u32", sFlag, sFlag, OF_OFF)
        p.I("v_lshlrev_b32", vZ, 2, u1)
        p.I("s_lshl_b32", sT0, sW, 2)
        p.I("s_lshl_b32", sM56[0], 0x000F000F if cfg["omask"] else 0, sT0); p.I("s_mov_b32", sM56[1], 0)
        if not cfg["omask"]: p.I("s_mov_b32", sM56[0], -1)
        pool = list(AB) + RB[NR:]
        amap = {}
        def abuf(k): return amap[k]
        def aload(k):
            amap[k] = pool.pop(0)
            kk = k if k < 28 else k - 28
            for r in range(2):
                p.I("buffer_load_dwordx4", abuf(k).sub(4 * r, 4), VO[kk // 4], SWS, (sA if k < 28 else sAo)[r], mods=f"offen offset:{(kk % 4) * 1024} sc1")
        if cfg["atouch"]:
            p.I("v_lshrrev_b32", t1, 4, lane); p.I("v_lshlrev_b32", t1, 10, t1)
            p.I("v_bfe_u32", t2, lane, 3, 1); p.I("v_mul_u32_u24", t2, NKS * 1024, t2); p.I("v_add_u32", t1, t1, t2)
            p.I("v_and_b32", t2, 7, lane); p.I("v_lshl_add_u32", t1, t2, 7, t1)
            p.I("s_lshl_b32", sT0, sCB, 12); p.I("s_add_u32", sT0, sT0, sA[0])
        na = [0]
        while pool and na[0] < cfg["damax"]: aload(na[0]); na[0] += 1
        if NR == 0: bread(0)
        KO = cfg["ko"]
        kpoll = KO - cfg["pollahead"]
        for k in range(36):
            if NR <= k + 1 < 36: bread(k + 1)
            for r in range(2):
                for c in range(2):
                    p.I(MF, AC2[r][c], bfrag(k).sub(4 * c, 4), abuf(k).sub(4 * r, 4), 0 if k == 0 else AC2[r][c])
            if k == kpoll: p.I("buffer_load_dword", vP, vZ, SWS, sFlag, mods="offen sc1")
            pool.append(amap[k])
            if k < NR: pool.append(RB[k])
            while pool and na[0] < 28 and na[0] <= k + cfg["damax"]: aload(na[0]); na[0] += 1
            if k == KO:
                if cfg["stamps"] == 2: st.stamp(p)
                spin("O", vP, vZ, SWS, sFlag, mask=sM56, first_loaded=True, sleep=cfg["slo"])
                if cfg["stamps"] == 2: st.stamp(p)
                for k2 in range(28, 36): aload(k2)
            c2 = 0
            while nb[0] < 36 and nb[0] <= k + cfg["bla"] and nb[0] - NB <= max(k, NR - 1) and c2 < 2:
                if not cfg.get("hackB"): bdma(p, nb[0])
                nb[0] += 1; c2 += 1
        p.I("s_barrier")
        for r in range(2):
            for c in range(2):
                for g in range(4):
                    p.I("ds_write_b128", vLw, AC2[r][c].sub(4 * g, 4), mods=f"offset:{r*32*K2_ROW + (c*32+8*g)*4}", tag="pw")
        p.waittag("pw")
        p.I("s_barrier")
        RD = V(64, 64)
        for pp in range(2):
            for w in range(4):
                for hh in range(2):
                    p.I("ds_read_b128", RD.sub(32 * pp + 8 * w + 4 * hh, 4), vLr, mods=f"offset:{w*64*K2_ROW + pp*32*K2_ROW + hh*16}")
        for pp in range(2):
            R = RD.sub(32 * pp, 32)
            for i in range(8): p.I("v_add_f32", R[i], R[i], R[8 + i])
            for i in range(8): p.I("v_add_f32", R[16 + i], R[16 + i], R[24 + i])
            Xr = XV.sub(4 * pp, 4); T = V(8, 8)
            for i in range(4):
                p.I("v_lshlrev_b32", T[2 * i], 16, Xr[i]); p.I("v_and_b32", T[2 * i + 1], 0xFFFF0000, Xr[i])
            for i in range(8): p.I("v_add_f32", R[i], R[i], R[16 + i])
            for i in range(8): p.I("v_add_f32", R[i], R[i], T[i])
            O = V(16 + 4 * pp, 4)
            for i in range(4): p.I("v_cvt_pk_bf16_f32", O[i], R[2 * i], R[2 * i + 1])
            p.I("buffer_store_dwordx4", O, vG, SO, 0 if pp == 0 else a0, mods="offen" + ["", " sc1", " nt", " sc0 sc1"][cfg.get("opol", 0)])
        p.label(f"P2_END_{uid}")
    else:
        if cfg["sprio"]: p.I("s_setprio", cfg["sprio"])
        tile_epi(p, ACC[0], sOut, 0)
        tile_epi(p, ACC[1], sOut2, 0)
        if cfg["sprio"] and cfg["sdrop"]: p.I("s_setprio", 0)
        K, Vv, PACC = ACC[2], ACC[3], ACC[4]
        qb = LT.sub(0, 8); VB = ACC[5].sub(0, 8); NEG = ACC[5].sub(8, 8); POS = LT.sub(0, 8)
        for i in range(8): p.I("v_cvt_pk_bf16_f32", qb[i], K[2 * i], K[2 * i + 1])
        p.I(MF, PACC, WPHI.sub(0, 4), qb.sub(0, 4), 0)
        p.I(MF, PACC, WPHI.sub(4, 4), qb.sub(4, 4), PACC)
        p.I("v_mov_b32", u3, 0x3F803F80)
        for r in range(8): p.I("v_cvt_pk_bf16_f32", VB[r], Vv[2 * r], Vv[2 * r + 1])
        for r in range(8): p.I("v_cndmask_b32", VB[r], VB[r], u3, sM28)
        set_hflag()
        if cfg["stamps"] == 2: st.stamp(p)
        PKS[0] = cfg["pks"]
        softmax_core(p, PACC, K, LT.sub(8, 8), POS, NEG, vMask, sL)
        PKS[0] = 0
        Tt = [K, PACC]
        for ft, src in enumerate((POS, NEG)):
            p.I(MF, Tt[ft], src.sub(0, 4), IDN.sub(0, 4), 0)
            p.I(MF, Tt[ft], src.sub(4, 4), IDN.sub(4, 4), Tt[ft])
        if cfg["sprio"] and cfg["sdrop"]: p.I("s_setprio", 3)
        p.I("v_lshlrev_b32", u4, 2, lane)
        PT = [LT.sub(0, 8), LT.sub(8, 8)]
        for ft in range(2):
            for r in range(8): p.I("v_cvt_pk_bf16_f32", PT[ft][r], Tt[ft][2 * r], Tt[ft][2 * r + 1])
        for ft in range(2):
            p.I(MF, Tt[ft], PT[ft].sub(0, 4), VB.sub(0, 4), 0)
            p.I(MF, Tt[ft], PT[ft].sub(4, 4), VB.sub(4, 4), Tt[ft])
        p.I("s_lshl_b32", sT0, sW, 13); p.I("s_add_u32", sT0, sT0, KVP_L - 4 * 8192)
        p.I("v_add_u32", u3, sT0, vSt)
        p.I("v_mov_b32", t1, KVL); p.I("v_mov_b32", t2, 1)
        for qd in range(8):
            p.I("ds_write_b128", u3, Tt[qd >> 2].sub(4 * (qd & 3), 4), mods=f"offset:{qd*1024}", tag="kva")
        p.waittag("kva")
        lbl = f"K1_{typ}_"
        p.raw("    s_mov_b64 exec, 1\n    ds_add_u32 v1, v2\n    s_mov_b64 exec, -1")
        p.raw(f"    s_mov_b32 s61, 0\n{lbl}LSPIN:\n    ds_read_b32 v3, v1\n    s_add_u32 s61, s61, 1\n    s_lshr_b32 s62, s61, 18\n    s_waitcnt lgkmcnt(0)\n    s_nop 1\n    v_readfirstlane_b32 s60, v3\n    s_nop 3\n    s_or_b32 s60, s60, s62\n    s_cmp_lt_u32 s60, 4\n    s_cbranch_scc1 {lbl}LSPIN")
        p.I("s_lshl_b32", sT0, sW, 11); p.I("s_sub_u32", sT0, sT0, 4 * 2048)
        p.I("s_add_u32", a0, sZ, sT0)
        p.I("s_add_u32", sT0, sT0, KVP_L)
        p.I("v_add_u32", t1, sT0, u4)
        R2 = V(128, 32)
        for e in range(8):
            p.I("ds_read2st64_b32", R2.sub(4 * e, 2), t1, mods=f"offset0:{e} offset1:{e+32}")
            p.I("ds_read2st64_b32", R2.sub(4 * e + 2, 2), t1, mods=f"offset0:{e+64} offset1:{e+96}")
        for e in range(8):
            p.I("v_add_f32", R2[4 * e], R2[4 * e], R2[4 * e + 1]); p.I("v_add_f32", R2[4 * e + 2], R2[4 * e + 2], R2[4 * e + 3])
            p.I("v_add_f32", R2[4 * e], R2[4 * e], R2[4 * e + 2])
            p.I("buffer_atomic_add_f32", R2[4 * e], u4, SWS, a0, mods=f"offen offset:{e * 256}", tag="kat")
        sKF, sRT, sQF = S(64), S(65), S(66)
        p.I("s_lshl_b32", sRT, sR, 2); p.I("s_add_u32", sRT, sRT, sW); p.I("s_sub_u32", sRT, sRT, 4)
        p.I("s_lshl_b32", sKF, sJ, 8); p.I("s_add_u32", sKF, sKF, KF_OFF)
        p.I("s_lshl_b32", sT0, sRT, 2); p.I("s_add_u32", sT0, sT0, sKF)
        if cfg["stamps"] == 2: st.stamp(p)
        p.waittag("kat")
        p.I("buffer_store_dword", vOne, vLn0, SWS, sT0, mods="offen sc1")
        st.stamp(p)
        p.I("s_lshr_b32", sQF, sRT, 1); p.I("s_lshl_b32", sQF, sQF, 8)
        p.I("s_lshr_b32", sT0, sJ, 3); p.I("s_lshl_b32", sT0, sT0, 4); p.I("s_add_u32", sQF, sQF, sT0); p.I("s_add_u32", sQF, sQF, HF_OFF + 224)
        p.I("v_and_b32", t1, 12, u4)
        spin("Q", t2, t1, SWS, sQF, sleep=cfg["slk"])
        QB = V(8, 8); KA = V(64, 32); P = V(96, 16); E2 = V(112, 16); TM = V(16, 8); POS, NEG = V(24, 8), V(32, 8); KFr = V(40, 16)
        p.I("s_lshl_b32", sT0, sRT, 15); p.I("s_lshl_b32", sT1, sJ, 11); p.I("s_add_u32", sT0, sT0, sT1); p.I("s_add_u32", sT0, sT0, QF_OFF)
        for s in range(2): p.I("buffer_load_dwordx4", QB.sub(4 * s, 4), vSt, SWS, sT0, mods=f"offen offset:{s*1024} sc1")
        p.I(MF, P, WPHI.sub(0, 4), QB.sub(0, 4), 0)
        p.I(MF, P, WPHI.sub(4, 4), QB.sub(4, 4), P)
        softmax_core(p, P, E2, TM, POS, NEG, vMask, sL)
        spin("K", t2, u4, SWS, sKF, sleep=cfg["slk"])
        st.stamp(p)
        p.I("s_add_u32", sT1, sZ, 4096)
        for qd in range(8): p.I("buffer_load_dwordx4", KA.sub(4 * qd, 4), vSt, SWS, sZ if qd < 4 else sT1, mods=f"offen offset:{(qd&3)*1024} sc1")
        for ft in range(2):
            for i in range(12, 16): p.I("v_mul_f32", KA[16 * ft + i], KA[16 * ft + i], vMask)
        for i in range(16): p.I("v_cvt_pk_bf16_f32", KFr[i], KA[2 * i], KA[2 * i + 1])
        N = P
        for s in range(4):
            p.I(MF, N, KFr.sub(4 * s, 4), (POS if s < 2 else NEG).sub(4 * (s & 1), 4), 0 if s == 0 else N)
        d0, d1 = TM[0], TM[1]
        p.I("s_mul_i32", sT0, sRT, NKS * 1024); p.I("s_lshl_b32", sT2, sJ, 11); p.I("s_add_u32", sT0, sT0, sT2); p.I("s_add_u32", sT0, sT0, 112 * 1024)
        p.I("s_lshl_b32", sT1, sRT, 6); p.I("s_lshl_b32", sT2, sJ, 2); p.I("s_add_u32", sT1, sT1, sT2); p.I("s_add_u32", sT1, sT1, OF_OFF)
        p.I("v_mov_b32", d0, N[12]); p.I("v_mov_b32", d1, N[12])
        p.I("v_permlane32_swap_b32", d0, d1)
        p.I("v_add_f32", d1, f2u(1e-6), d1)
        p.I("v_rcp_f32", d1, d1)
        for i in range(16): p.I("v_mul_f32", N[i], N[i], d1)
        T = QB
        for i in range(8): p.I("v_cvt_pk_bf16_f32", T[i], N[2 * i], N[2 * i + 1])
        for s in range(2): p.I("buffer_store_dwordx4", T.sub(4 * s, 4), vSt, SWS, sT0, mods=f"offen offset:{s*1024} sc1", tag="ost")
        p.waittag("ost")
        p.I("buffer_store_dword", vOne, vLn0, SWS, sT1, mods="offen sc1")
    if cfg["stamps"] != 2: st.stamp(p)
    st.stamp(p, True)
    st.flush(p, SWS, sW, 8, t1, t3)
    if cfg.get("dbgwg") is not None and grp == 0:
        p.I("s_lshl_b32", S(100), S(2), 3); p.I("s_add_u32", S(100), S(100), sW)
        p.I("s_cmp_eq_u32", S(100), cfg["dbgwg"] * 8)
        p.I("s_cselect_b32", S(100), 0, BIG)
        p.I("v_mov_b32", t3, 0)
        for i in range(1, st.n):
            p.I("s_sub_u32", S(101), S(80 + 2 * i), S(80))
            p.I("v_mov_b32", t1, S(101))
            p.I("buffer_store_dword", t1, t3, SD, S(100), mods=f"offen offset:{4*i}")
            p.I("s_nop", 1)
    p.I("s_endpgm")

K2_ROW = 272
def build(cfg):
    hdr = open("cdna_kernels/" + NAME + ".s.ref").read().split("\n")
    head = [l for l in hdr if l.startswith(";") and "@launch" not in l]
    head.append(f"; @launch grid=(256,1,1) block=(512,1,1) lds={K1_LDS}")
    out = "\n".join(head) + '\n.amdgcn_target "amdgcn-amd-amdhsa--gfx950"\n.text\n'
    descs = ""
    for g in (gen_k1,):
        t, d = g(cfg); out += t; descs += ".p2align 6\n" + d
    out += "CODE_END:\n    s_endpgm\n" + '.section .rodata,"a"\n' + descs
    if cfg["align"]:
        import align
        out, a, b = align.align(out, cfg["minrun"])
        print("align: promoted", a, "nops", b)
    return out

if __name__ == "__main__":
    cfg = dict(k2bar=1, k1map=0, k2depth=5, stamps=0, rot=1, pollahead=2, sc1=1, npre=3, la=5, xbar=2, w2it=10, ke=4, dmaper=4, bahead=3, front=85, cpref=1, wdpf=3, wdmode=1, btouch=0, atouch=0, l2pf=0, pk=1, pks=1, ko=26, early=0, damax=8, fast0=0, omask=1, slo=4, opol=1, bloop=12, bstart=9, nreg=12, bpre2=27, l2n=8, l2s=1, sdrop=1, hmask=1, bearly=15, bpre=15, bla=15, slh=4, slk=8, inv=0, da=4, sprio=3, jcont=1, xrot=1, kvodd=1, spread=1, pp=1, ppin=0, prio=0, align=1, minrun=3, attprio=1)
    for a in sys.argv[2:]:
        k, v = a.split("="); cfg[k] = int(v)
    open(sys.argv[1], "w").write(build(cfg))
```
